```python
import torch

def _softmax(x, axis=-1):
    return torch.softmax(x, dim=axis)
def _gelu(x):
    return torch.nn.functional.gelu(x, approximate="tanh")
def _silu(x):
    return torch.nn.functional.silu(x)
def _sigmoid(x):
    return torch.sigmoid(x)
def _layernorm(x, axis=-1, eps=1e-5):
    m = x.mean(dim=axis, keepdim=True)
    v = x.var(dim=axis, keepdim=True, unbiased=False)
    return (x - m) / torch.sqrt(v + eps)
def _scatter_add(tgt, idx, src, axis=0):
    return tgt.clone().index_add_(axis, idx, src)
def _segment_sum(src, seg, n):
    out = torch.zeros((n,) + src.shape[1:], dtype=src.dtype)
    return out.index_add_(0, seg, src)
def _pad(x, pw):
    flat = tuple(v for pair in reversed(pw) for v in pair)
    return torch.nn.functional.pad(x, flat)

kernel_name = 'sequential_preLN__sliding_block__mixer_channel_mlp__prompt'

def setup_inputs():

    _w = (lambda a: (lambda t: t.to(torch.bfloat16) if t.is_floating_point() else t)(torch.as_tensor(a)))
    def _A_setup():
        B, S, D = 1, 2048, 512
        return {
            "x": _w((lambda *s: torch.randn(*s, dtype=torch.bfloat16) * 0.05)(B, S, D)),
            "wqkv": _w((lambda *s: torch.randn(*s, dtype=torch.bfloat16) * 0.05)(D, 3 * D)),
            "wo": _w((lambda *s: torch.randn(*s, dtype=torch.bfloat16) * 0.05)(D, D)),
        }
    _A_in = _A_setup()

    def _B_setup():
        B, S, D, F = 1, 2048, 512, 1376
        return {
            "x": _w((lambda *s: torch.randn(*s, dtype=torch.bfloat16) * 0.05)(B, S, D)),
            "w1": _w((lambda *s: torch.randn(*s, dtype=torch.bfloat16) * 3.2)(D, F) * (D ** -0.5)),
            "b1": _w((lambda *s: torch.randn(*s, dtype=torch.bfloat16) * 1.6)(F)),
            "w2": _w((lambda *s: torch.randn(*s, dtype=torch.bfloat16) * 0.2)(F, D) * (F ** -0.5)),
            "b2": _w((lambda *s: torch.randn(*s, dtype=torch.bfloat16) * 0.2)(D)),
        }
    _B_in = _B_setup()

    return {
        "A_x": _A_in["x"],
        "A_wqkv": _A_in["wqkv"],
        "A_wo": _A_in["wo"],
        "B_x": _B_in["x"],
        "B_w1": _B_in["w1"],
        "B_b1": _B_in["b1"],
        "B_w2": _B_in["w2"],
        "B_b2": _B_in["b2"],
    }

def reference(A_x, A_wqkv, A_wo, B_x, B_w1, B_b1, B_w2, B_b2):
    def _A_ref(x, wqkv, wo):
        B, S, D = x.shape
        H = 32; Dh = D // H; W = 256
        qkv = (lambda x, *d: x.permute(*d))((x @ wqkv).reshape(B, S, 3, H, Dh), 2, 0, 3, 1, 4)
        q, k, v = qkv[0], qkv[1], qkv[2]
        scores = torch.einsum("bhqd,bhkd->bhqk", q, k) * (Dh ** -0.5)
        idx = torch.arange(S)
        mask = (idx[:, None] - idx[None, :] >= 0) & (idx[:, None] - idx[None, :] < W)
        scores = torch.where(mask[None, None], scores, -1e9)
        p = _softmax(scores, axis=-1)
        o = torch.einsum("bhqk,bhkd->bhqd", p, v)
        return (lambda x, *d: x.permute(*d))(o, 0, 2, 1, 3).reshape(B, S, D) @ wo

    def _B_ref(x, w1, b1, w2, b2):
        y = _layernorm(x, axis=-1)
        h = _gelu(torch.einsum("bsd,df->bsf", y, w1) + b1)
        return torch.einsum("bsf,fd->bsd", h, w2) + b2

    x = A_x
    h = x + _A_ref(_layernorm(x, axis=-1), A_wqkv, A_wo)
    h2 = h + _B_ref(_layernorm(h, axis=-1), B_w1, B_b1, B_w2, B_b2)
    return h2
```

```python
import re

TRANS = ("v_exp_f32", "v_log_f32", "v_rcp_f32", "v_rsq_f32", "v_sqrt_f32", "v_sin_f32", "v_cos_f32")
NO_DST_SALU = ("s_cmp", "s_cbranch", "s_branch", "s_waitcnt", "s_barrier", "s_nop", "s_bitcmp", "s_endpgm",
               "s_setprio", "s_sleep", "s_setreg")

_reg_re = re.compile(r"^-?(?:abs\()?\|?([vas])(?:(\d+)|\[(\d+):(\d+)\])\|?\)?$")


def regs_of(op):
    op = op.strip()
    if op in ("vcc", "exec"):
        return {op}
    if op in ("vcc_lo", "vcc_hi"):
        return {"vcc"}
    if op in ("exec_lo", "exec_hi"):
        return {"exec"}
    if op == "m0":
        return {"m0"}
    m = _reg_re.match(op)
    if not m:
        return set()
    if m.group(2) is not None:
        return {m.group(1) + m.group(2)}
    return {m.group(1) + str(i) for i in range(int(m.group(3)), int(m.group(4)) + 1)}


class Ins:
    __slots__ = ("text", "mn", "ops", "rd", "wr", "cls", "tag", "cond", "shadow", "srcC", "dstD", "passes",
                 "wide", "data", "dpp", "ab")

    def __init__(self, text, tag=None, cond=False, shadow=False):
        self.text = text
        self.tag = tag
        self.cond = cond
        self.shadow = shadow
        self.rd = set()
        self.wr = set()
        self.srcC = set()
        self.dstD = set()
        self.ab = set()
        self.data = set()
        self.passes = 0
        self.wide = False
        self.dpp = False
        t = text.split(";")[0].strip()
        if not t or t.endswith(":") or t.startswith("."):
            self.mn = ""
            self.ops = []
            self.cls = "label" if t.endswith(":") else "none"
            return
        parts = t.split(None, 1)
        self.mn = mn = parts[0]
        rest = parts[1] if len(parts) > 1 else ""
        ops, depth, cur = [], 0, ""
        for ch in rest:
            if ch in "[(":
                depth += 1
            if ch in "])":
                depth -= 1
            if ch == "," and depth == 0:
                ops.append(cur.strip())
                cur = ""
            else:
                cur += ch
        if cur.strip():
            ops.append(cur.strip())
        mods = ""
        if ops:
            last = ops[-1].split(None, 1)
            ops[-1] = last[0]
            mods = last[1] if len(last) > 1 else ""
        self.ops = ops
        R = [regs_of(o) for o in ops]
        un = lambda l: set().union(*l) if l else set()
        if mn.startswith("v_mfma"):
            self.cls = "mfma"
            self.wr = R[0]
            self.dstD = R[0]
            self.ab = R[1] | R[2]
            self.srcC = R[3]
            self.rd = R[1] | R[2] | R[3]
            self.passes = 8 if "32x32x16" in mn else 4
            assert "32x32x16" in mn or "16x16x32" in mn
        elif mn.startswith("v_"):
            base = mn.replace("_e32", "").replace("_e64", "").replace("_dpp", "")
            self.cls = "trans" if base in TRANS else ("dot" if base.startswith("v_dot") else "valu")
            self.dpp = mn.endswith("_dpp")
            if base == "v_nop":
                pass
            elif base.startswith("v_permlane"):
                self.wr = R[0] | R[1]
                self.rd = R[0] | R[1]
            elif "_co_" in base:
                self.wr = R[0] | R[1]
                self.rd = un(R[2:])
            else:
                self.wr = R[0]
                self.rd = un(R[1:])
                if base.startswith(("v_fmac", "v_dot2c", "v_pk_fmac")) or self.dpp or base.startswith("v_writelane"):
                    self.rd |= R[0]
        elif mn.startswith("ds_"):
            self.cls = "ds"
            if mn.startswith(("ds_read", "ds_bpermute", "ds_permute", "ds_swizzle")):
                self.wr = R[0]
                self.rd = un(R[1:])
            else:
                self.rd = un(R)
        elif mn.startswith("buffer_"):
            self.cls = "vmem"
            if mn.startswith("buffer_load"):
                if " lds" in " " + mods:
                    self.rd = un(R) | {"m0"}
                else:
                    self.wr = R[0]
                    self.rd = un(R[1:])
            elif mn.startswith("buffer_store"):
                self.rd = un(R)
                self.data = R[0]
                self.wide = mn.endswith(("x3", "x4"))
            elif mn.startswith("buffer_atomic"):
                self.rd = un(R)
                if "sc0" in mods:
                    self.wr = R[0]
        elif mn.startswith(("s_load", "s_memtime", "s_memrealtime", "s_buffer_load")):
            self.cls = "smem"
            self.wr = R[0]
            self.rd = un(R[1:])
        elif mn.startswith("s_"):
            self.cls = "salu"
            if mn.startswith(NO_DST_SALU):
                self.rd = un(R)
                if mn.startswith("s_cbranch_vcc"):
                    self.rd = {"vcc"}
            else:
                self.wr = R[0]
                self.rd = un(R[1:])
                if "saveexec" in mn:
                    self.wr = self.wr | {"exec"}
        else:
            raise ValueError("unknown instr: " + text)


class Prog:
    def __init__(self):
        self.ins = []

    def __call__(self, text, **kw):
        for line in text.strip("\n").split("\n"):
            line = line.strip()
            if line:
                self.ins.append(Ins(line, **kw))
        return self

    def wait_vm(self, tag):
        i = Ins("")
        i.cls = "wait_vm"
        i.tag = tag
        self.ins.append(i)

    def wait_ds(self, tag=None):
        i = Ins("")
        i.cls = "wait_ds"
        i.tag = tag
        self.ins.append(i)

    def extend(self, other):
        self.ins.extend(other.ins if isinstance(other, Prog) else other)


def interleave(main, fills):
    n = len(main)
    extra = [[] for _ in range(n)]
    for groups, a, b in fills:
        m = len(groups)
        span = b - a + 1
        for i, g in enumerate(groups):
            extra[a + (i * span) // m].extend(g)
    out = []
    for s, e in zip(main, extra):
        out.extend(s)
        out.extend(e)
    return out


def G(text, **kw):
    return Prog()(text, **kw).ins


def insert_waits(ins, verbose=False):
    out = []
    vm = []
    lg = []

    def emit_wait(nv, nl):
        parts = []
        if nv is not None:
            parts.append("vmcnt(%d)" % min(nv, 63))
            keep = min(nv, 63)
            cnt, idx = 0, len(vm)
            while idx > 0 and (cnt < keep):
                idx -= 1
                if not vm[idx].cond:
                    cnt += 1
            del vm[:idx]
        if nl is not None:
            parts.append("lgkmcnt(%d)" % min(nl, 15))
            keep = min(nl, 15)
            del lg[:max(0, len(lg) - keep)]
        out.append(Ins("s_waitcnt " + " ".join(parts)))

    def younger_vm(idx):
        return sum(1 for x in vm[idx + 1:] if not x.cond)

    for I in ins:
        if I.cls == "wait_vm":
            idx = [k for k, x in enumerate(vm) if x.tag == I.tag]
            if idx:
                emit_wait(younger_vm(idx[-1]), None)
            continue
        if I.cls == "wait_ds":
            if I.tag is None:
                if lg:
                    emit_wait(None, 0)
            else:
                idx = [k for k, x in enumerate(lg) if x.tag == I.tag]
                if idx:
                    n = len(lg) - 1 - idx[-1]
                    if any(x.cls == "smem" for x in lg):
                        n = 0
                    emit_wait(None, n)
            continue
        if I.shadow:
            out.append(I)
            continue
        if I.mn == "s_waitcnt":
            m = re.search(r"vmcnt\((\d+)\)", I.text)
            if m:
                assert int(m.group(1)) == 0
                vm.clear()
            m = re.search(r"lgkmcnt\((\d+)\)", I.text)
            if m:
                assert int(m.group(1)) == 0
                lg.clear()
            out.append(I)
            continue
        touch = I.rd | I.wr
        nv = nl = None
        for k in range(len(vm) - 1, -1, -1):
            if vm[k].wr & touch:
                nv = younger_vm(k)
                break
        for k in range(len(lg) - 1, -1, -1):
            if lg[k].wr & touch:
                nl = len(lg) - 1 - k
                if any(x.cls == "smem" for x in lg):
                    nl = 0
                break
        if nv is not None or nl is not None:
            emit_wait(nv, nl)
        out.append(I)
        if I.cls == "vmem":
            vm.append(I)
            assert sum(1 for x in vm) <= 63 or True
        elif I.cls in ("ds", "smem"):
            assert not I.cond
            lg.append(I)
    return out


def need_states(P, C):
    n = 0
    pv = P.cls in ("valu", "trans", "dot")
    cv = C.cls in ("valu", "trans", "dot")
    vw = {r for r in P.wr if r[0] in "va" and r != "vcc"}
    sw = {r for r in P.wr if r[0] == "s" or r == "vcc"}
    if pv:
        if C.cls == "mfma" and vw & C.rd:
            n = max(n, 3 if P.cls == "dot" else 2)
        if cv:
            if C.mn.startswith(("v_readfirstlane", "v_readlane")) and vw & C.rd:
                n = max(n, 1)
            if C.mn.startswith("v_permlane") and vw & C.rd:
                n = max(n, 2)
            if C.dpp and vw & C.rd:
                n = max(n, 2)
            if sw & C.rd:
                n = max(n, 4 if C.mn.startswith(("v_readlane", "v_writelane")) else 2)
            if P.cls == "trans" and C.cls != "trans" and vw & C.rd:
                n = max(n, 1)
        if P.cls == "trans" and C.cls in ("vmem", "ds") and vw & C.rd:
            n = max(n, 1)
        if C.cls == "vmem" and sw & C.rd:
            n = max(n, 5)
        if P.cls == "dot" and vw & (C.rd | C.wr):
            same = C.mn == P.mn
            onlyC = False
            if same:
                if P.mn.startswith("v_dot2c"):
                    onlyC = not (vw & set().union(*[regs_of(o) for o in C.ops[1:]]))
                else:
                    onlyC = not (vw & (regs_of(C.ops[1]) | regs_of(C.ops[2])))
            if not (same and onlyC):
                n = max(n, 3)
    if P.cls == "mfma":
        far = {8: 12, 4: 8}[P.passes]
        ovl = {8: 10, 4: 6}[P.passes]
        war = {8: 7, 4: 3}[P.passes]
        if C.cls == "mfma":
            if P.dstD & C.ab:
                n = max(n, far)
            if P.dstD & C.srcC:
                if not (P.dstD == C.srcC and P.passes == C.passes):
                    n = max(n, ovl)
            elif P.dstD & C.dstD:
                n = max(n, ovl)
        elif cv:
            if P.dstD & (C.rd | C.wr):
                n = max(n, far)
            if P.srcC & C.wr:
                n = max(n, war)
        elif C.cls in ("vmem", "ds"):
            if P.dstD & (C.rd | C.wr):
                n = max(n, far)
            if P.srcC & C.wr:
                n = max(n, war)
    if P.cls == "salu" and "m0" in P.wr and C.cls == "vmem" and "m0" in C.rd:
        n = max(n, 1)
    if P.cls == "vmem" and P.wide and P.data & C.wr:
        n = max(n, 2)
    return n


def states_of(I):
    if I.cls in ("label", "none"):
        return 0
    if I.mn == "s_nop":
        return int(I.ops[0]) + 1
    return 1


def insert_nops(ins):
    out = []
    total = 0
    for I in ins:
        if I.cls not in ("label", "none"):
            need, dist = 0, 0
            for P in reversed(out):
                if dist >= 12:
                    break
                if P.cls in ("label", "none"):
                    continue
                r = need_states(P, I) - dist
                if r > need:
                    need = r
                if not P.cond:
                    dist += states_of(P)
            if need > 0:
                nop = Ins("s_nop %d" % (need - 1))
                nop.cond = I.cond
                out.append(nop)
                total += need
        out.append(I)
    return out, total


def finalize(prog):
    ins = insert_waits(prog.ins)
    ins, nops = insert_nops(ins)
    text = []
    for I in ins:
        if I.cls == "label":
            text.append(I.text)
        else:
            text.append("    " + I.text)
    return "\n".join(text) + "\n", ins, nops
```

```python
import sys, os, struct, math
sys.path.insert(0, os.path.dirname(os.path.abspath(__file__)))
from asmgen import *

NAME = "sequential_preLN__sliding_block__mixer_channel_mlp__prompt_kernel"
STAMPS = int(os.environ.get("STAMPS", "0"))
FORCE_FB = int(os.environ.get("FORCE_FB", "0"))


def f2u(x):
    return "0x%08x" % struct.unpack("<I", struct.pack("<f", x))[0]


WS_KVF = 0x0000
WS_OF = 0x8000
WS_HF = 0x9000
WS_HHF = 0xA000
WS_KV = 0x100000
WS_O = 0x500000
WS_H = 0x700000
WS_HH = 0x900000
WS_ST = 0x1000000
WS_SIZE = 0x1100000

SX, SWQ, SWO, SW1, SW2, SOUT, SWS, SDBG, SB1, SB2, SKV = 8, 12, 16, 20, 24, 28, 32, 36, 40, 44, 48
sW, sJ, sRB, sVID, sROT, sT0 = 52, 53, 54, 55, 56, 57
sRT, sLO = 58, 59
sONE, sMSK = 60, 61
sT = list(range(62, 72))
sSPIN = 72
sVAL = [73, 74, 75, 76]
sC = list(range(78, 84))
sSTMP = 84


def srd(n):
    return "s[%d:%d]" % (n, n + 3)


def v(n, c=1):
    return "v%d" % n if c == 1 else "v[%d:%d]" % (n, n + c - 1)


def a(n, c=1):
    return "a%d" % n if c == 1 else "a[%d:%d]" % (n, n + c - 1)


def mfma(d, A, B, C):
    return "v_mfma_f32_32x32x16_bf16 %s, %s, %s, %s" % (d, A, B, C)


p = Prog()
nst = [0]


def stamp(name):
    if not STAMPS:
        return
    i = nst[0]
    nst[0] += 1
    assert i < 16
    p("s_waitcnt lgkmcnt(0)")
    p("s_memtime s[4:5]")
    p("s_waitcnt lgkmcnt(0)")
    p("s_mov_b32 s%d, s4 ; stamp %s" % (sSTMP + 2 + i, name))
    print("stamp", i, name, file=sys.stderr)


lab = [0]


def poll(vaddr, srdn, ld, aux="sc1"):
    lab[0] += 1
    L = "L_poll%d" % lab[0]
    p("s_mov_b32 s%d, 0" % sSPIN)
    p(L + ":")
    p("%s v3, %s, %s, 0 offen %s" % (ld, v(vaddr), srd(srdn), aux))
    p("s_add_u32 s%d, s%d, 1" % (sSPIN, sSPIN))
    p("s_bitcmp1_b32 s%d, 20" % sSPIN)
    p("s_cbranch_scc1 %s_x" % L)
    p("s_waitcnt vmcnt(0)")
    p("v_cmp_eq_u32 vcc, 0, v3")
    p("s_cbranch_vccnz %s" % L)
    p(L + "_x:")
    p("s_waitcnt vmcnt(0)")


def flag_store(soff, aux="sc1"):
    lab[0] += 1
    L = "L_fl%d" % lab[0]
    p("s_cmp_eq_u32 s%d, 0" % sW)
    p("s_cbranch_scc0 %s" % L)
    p("s_mov_b64 exec, 1", cond=True)
    p("buffer_store_dword v4, v5, %s, s%d offen %s" % (srd(SWS), soff, aux), cond=True)
    p("s_mov_b64 exec, -1", cond=True)
    p(L + ":")


p("s_cmp_ge_u32 s2, 256")
p("s_cbranch_scc1 L_end")
if STAMPS:
    p("s_memrealtime s[%d:%d]" % (sSTMP, sSTMP + 1))
p("""
s_load_dwordx2 s[8:9], s[0:1], 0
s_load_dwordx2 s[12:13], s[0:1], 8
s_load_dwordx2 s[16:17], s[0:1], 16
s_load_dwordx2 s[20:21], s[0:1], 32
s_load_dwordx2 s[40:41], s[0:1], 40
s_load_dwordx2 s[24:25], s[0:1], 48
s_load_dwordx2 s[44:45], s[0:1], 56
s_load_dwordx2 s[28:29], s[0:1], 64
s_load_dwordx2 s[36:37], s[0:1], 72
s_load_dwordx2 s[32:33], s[0:1], 80
v_lshrrev_b32 v1, 6, v0
""")
p("v_readfirstlane_b32 s%d, v1" % sW)
p("v_and_b32 v1, 63, v0")
p("v_lshlrev_b32 v2, 4, v1")
p("v_mov_b32 v4, 1")
p("v_mov_b32 v5, 0")
t0, t1, t2, t3, t4, t5 = sT[:6]
p(f"""
s_and_b32 s{sROT}, s2, 7
s_lshr_b32 s{t0}, s2, 3
s_and_b32 s{sJ}, s{t0}, 7
s_lshr_b32 s{t0}, s{t0}, 3
s_lshl_b32 s{sRB}, s{sROT}, 2
s_add_u32 s{sRB}, s{sRB}, s{t0}
s_lshl_b32 s{sVID}, s{sRB}, 3
s_add_u32 s{sVID}, s{sVID}, s{sJ}
s_and_b32 s{t0}, s{sVID}, 15
s_mul_i32 s{t0}, s{t0}, 3
s_min_u32 s{sT0}, s{t0}, 40
s_lshr_b32 s{sRT}, s{sW}, 1
s_and_b32 s{sLO}, s{sW}, 1
s_mov_b32 s{sONE}, 0x3f803f80
s_mov_b32 s{sMSK}, 0xffff0000
""")
for n in (SX, SWQ, SWO, SW1, SW2, SOUT, SWS, SDBG, SB1, SB2, SKV):
    p("s_mov_b32 s%d, 0x20000" % (n + 3))
vXA = 6
p(f"""
v_lshrrev_b32 v8, 3, v1
v_and_b32 v9, 7, v1
s_lshl_b32 s{t0}, s{sW}, 14
v_lshlrev_b32 v{vXA}, 10, v8
v_lshl_add_u32 v{vXA}, v9, 4, v{vXA}
v_add_u32 v{vXA}, s{t0}, v{vXA}
""")
p("""
v_lshrrev_b32 v10, 2, v1
v_and_b32 v10, 4, v10
v_xor_b32 v10, v10, v9
v_lshlrev_b32 v10, 4, v10
""")
p(f"""
v_mul_u32_u24 v11, 3072, v8
v_add_u32 v11, v11, v10
s_mul_i32 s{t0}, s{sW}, 49152
v_add_u32 v14, s{t0}, v11
v_add_u32 v12, 1024, v14
v_add_u32 v13, 24576, v14
v_add_u32 v15, {24576 - 1024}, v14
s_mul_i32 s{t0}, s{sLO}, 98304
v_add_u32 v16, s{t0}, v11
v_add_u32 v17, {1 * (24576 - 1024)}, v16
v_add_u32 v18, {2 * (24576 - 1024)}, v16
v_add_u32 v19, {3 * (24576 - 1024)}, v16
""")
p("s_waitcnt lgkmcnt(0)")


def mk_srd(n, soff, size_expr_total):
    if soff is None:
        p("s_mov_b32 s%d, %d" % (n + 2, size_expr_total))
    else:
        p("s_add_u32 s%d, s%d, s%d" % (n, n, soff))
        p("s_addc_u32 s%d, s%d, 0" % (n + 1, n + 1))
        p("s_sub_u32 s%d, %d, s%d" % (n + 2, size_expr_total, soff))


p(f"s_lshl_b32 s{t0}, s{sRB}, 16")
mk_srd(SX, t0, 2048 * 1024)
p(f"s_lshl_b32 s{t1}, s{sJ}, 7")
mk_srd(SWQ, t1, 512 * 3072)
mk_srd(SWS, None, WS_SIZE)
sFKV, sFO, sFH, sFHH = sT[6], sT[7], sT[8], sT[9]
p(f"""
s_lshl_b32 s{sFKV}, s{sVID}, 7
s_lshl_b32 s{sFO}, s{sRB}, 7
s_lshl_b32 s{t2}, s{sJ}, 2
s_add_u32 s{sFO}, s{sFO}, s{t2}
s_add_u32 s{sFO}, s{sFO}, {WS_OF}
s_lshr_b32 s{sFH}, s{sVID}, 4
s_lshl_b32 s{sFH}, s{sFH}, 7
s_and_b32 s{t2}, s{sVID}, 15
s_lshl_b32 s{t2}, s{t2}, 2
s_add_u32 s{sFH}, s{sFH}, s{t2}
s_add_u32 s{sFHH}, s{sFH}, {WS_HHF}
s_add_u32 s{sFH}, s{sFH}, {WS_HF}
s_cmp_eq_u32 s{sLO}, 0
s_cselect_b32 s{t2}, s{sFKV}, s{sFO}
s_cselect_b32 s{t3}, s{sFH}, s{sFHH}
s_cmp_eq_u32 s{sRT}, 0
s_cselect_b32 s{t2}, s{t2}, s{t3}
s_mov_b64 exec, 1
buffer_store_dword v5, v5, {srd(SWS)}, s{t2} offen sc1
s_mov_b64 exec, -1
""")

XR = 64


def x_load(i):
    p(f"s_add_u32 s{t2}, s{sJ}, {i}")
    p(f"s_and_b32 s{t2}, s{t2}, 7")
    p(f"s_lshl_b32 s{t2}, s{t2}, 7")
    p(f"s_add_u32 s{t3}, s{t2}, 8192")
    p(f"buffer_load_dwordx4 {v(XR + i * 8, 4)}, v{vXA}, {srd(SX)}, s{t2} offen")
    p(f"buffer_load_dwordx4 {v(XR + i * 8 + 4, 4)}, v{vXA}, {srd(SX)}, s{t3} offen")


KVSLOT = [65536 + n * 16384 for n in range(6)] + [0, 16384]
QSLOT = [32768, 49152, 65536, 81920]
sW4K = 77
p(f"s_lshl_b32 s{sW4K}, s{sW}, 12")


def kv_dma(n):
    g = Prog()
    g(f"s_add_u32 s{t2}, s{sROT}, {n}")
    g(f"s_and_b32 s{t2}, s{t2}, 7")
    g(f"s_mul_i32 s{t2}, s{t2}, 196608")
    g(f"s_add_u32 m0, s{sW4K}, {KVSLOT[n]}")
    for i in range(4):
        g(f"buffer_load_dwordx4 v{12 + i}, {srd(SWQ)}, s{t2} offen offset:{i * 1024} lds", tag="kv%d" % n)
    return g.ins


def q_dma(n):
    g = Prog()
    g(f"s_add_u32 s{t2}, s{sROT}, {2 * n}")
    g(f"s_add_u32 s{t2}, s{t2}, s{sRT}")
    g(f"s_and_b32 s{t2}, s{t2}, 7")
    g(f"s_mul_i32 s{t2}, s{t2}, 196608")
    g(f"s_add_u32 m0, s{sW4K}, {QSLOT[n]}")
    for i in range(4):
        g(f"buffer_load_dwordx4 v{16 + i}, {srd(SWQ)}, s{t2} offen offset:{i * 1024} lds", tag="q%d" % n)
    return g.ins


x_load(0)
p.extend(kv_dma(0))
for i in range(1, 8):
    x_load(i)
p(f"""
s_getpc_b64 s[{SKV}:{SKV + 1}]
s_lshr_b32 s{t2}, s2, 3
s_lshl_b32 s{t2}, s{t2}, 2
s_add_u32 s{t2}, s{t2}, s{sW}
s_lshl_b32 s{t2}, s{t2}, 9
v_and_b32 v3, 3, v1
v_lshlrev_b32 v3, 7, v3
v_add_u32 v3, s{t2}, v3
""")
p(f"s_mov_b32 s{SKV + 2}, L_fallback-L_pc0")
p("L_pc0:")
p(f"buffer_load_dword v7, v3, {srd(SKV)}, 0 offen")
for n in range(1, 6):
    p.extend(kv_dma(n))

mk_srd(SWO, t1, 512 * 1024)
mk_srd(SW2, t1, 1376 * 1024)
mk_srd(SB2, t1, 1024)
p(f"s_add_u32 s{t0}, s{t0}, s{t1}")
mk_srd(SOUT, t0, 2048 * 1024)
p(f"s_lshl_b32 s{t0}, s{sT0}, 6")
mk_srd(SW1, t0, 512 * 2752)
mk_srd(SB1, t0, 2752)
mk_srd(SDBG, None, 256)
p(f"s_mov_b32 s{SKV}, s{SWS}")
p(f"s_mov_b32 s{SKV + 1}, s{SWS + 1}")
HV, OV, OK_, OQ, HK = 160, 224, 240, 248, 176
for b in range(4):
    p(f"s_cmp_ge_u32 s{sRB}, {4 - b}")
    p(f"s_cselect_b32 s{sVAL[b]}, {WS_SIZE}, 0")
    p(f"s_cselect_b32 s{t2}, s{sONE}, 0")
    for i in range(16):
        p(f"v_accvgpr_write_b32 a{HV + b * 16 + i}, s{t2}")
for i in range(16):
    p(f"v_accvgpr_write_b32 a{OV + i}, s{sONE}")
CC, CA = 208, 224
p(f"""
v_and_b32 v20, 31, v1
v_lshrrev_b32 v21, 5, v1
v_lshlrev_b32 v22, 2, v21
v_sub_u32 v22, v20, v22
v_mov_b32 v23, 0xf149f2ca
""")
for r in range(16):
    p(f"v_cmp_le_i32 vcc, {(r & 3) + 8 * (r >> 2)}, v22")
    p(f"v_cndmask_b32_e64 v{CC + r}, v23, 0, vcc")
    p(f"v_cndmask_b32 v{CA + r}, 0, v23, vcc")
p(f"""
v_xor_b32 v24, v8, v9
v_lshlrev_b32 v24, 4, v24
v_lshl_add_u32 v24, v9, 9, v24
s_lshl_b32 s{t2}, s{sRT}, 15
s_lshl_b32 s{t3}, s{sLO}, 8
s_add_u32 s{t3}, s{t3}, s{t2}
v_add_u32 v24, s{t3}, v24
""")
for e in range(4):
    p(f"""
v_or_b32 v{26 + e}, {2 * e}, v21
v_xor_b32 v{26 + e}, v{26 + e}, v20
v_lshlrev_b32 v{26 + e}, 4, v{26 + e}
v_lshl_add_u32 v{26 + e}, v21, 9, v{26 + e}
v_add_u32 v{26 + e}, s{t2}, v{26 + e}
""")
p(f"""
v_bfe_u32 v22, v1, 2, 2
v_lshrrev_b32 v23, 1, v22
v_xor_b32 v23, s{sLO}, v23
v_lshlrev_b32 v23, 6, v23
v_lshl_add_u32 v30, v22, 7, v23
v_bfe_u32 v23, v1, 4, 1
v_lshl_add_u32 v30, v23, 5, v30
v_and_b32 v25, 3, v1
v_lshl_add_u32 v30, v25, 3, v30
v_mul_u32_u24 v31, 192, v22
v_lshl_add_u32 v31, v23, 5, v31
v_lshl_add_u32 v31, v25, 3, v31
v_mul_u32_u24 v22, 768, v21
v_add_u32 v31, v31, v22
""")
p("""
v_lshl_add_u32 v32, v21, 10, v30
v_add_u32 v33, 0x10000, v32
v_add_u32 v34, 0x20000, v32
""")
stamp("setup")

ST = 36
for i in range(4):
    p(f"v_mov_b32 v{ST + i}, 0")
for i in range(8):
    for r in range(4):
        for gq in range(2):
            x = XR + i * 8 + gq * 4 + r
            p(f"v_dot2c_f32_bf16 v{ST + 2 * gq}, s{sONE}, v{x}")
            p(f"v_dot2c_f32_bf16 v{ST + 2 * gq + 1}, v{x}, v{x}")
for mod in ("quad_perm:[1,0,3,2]", "quad_perm:[2,3,0,1]", "row_half_mirror"):
    for i in range(4):
        p(f"v_add_f32_dpp v{ST + i}, v{ST + i}, v{ST + i} {mod} row_mask:0xf bank_mask:0xf")
p(f"s_mov_b32 s{t2}, {f2u(1.0 / 512)}")
p(f"s_mov_b32 s{t3}, {f2u(1e-5)}")
for gq in range(2):
    s_, ss = ST + 2 * gq, ST + 2 * gq + 1
    p(f"v_mul_f32 v{s_}, s{t2}, v{s_}")
    p(f"v_mul_f32 v{ss}, s{t2}, v{ss}")
for gq in range(2):
    s_, ss = ST + 2 * gq, ST + 2 * gq + 1
    p(f"v_fma_f32 v{ss}, -v{s_}, v{s_}, v{ss}")
for gq in range(2):
    s_, ss = ST + 2 * gq, ST + 2 * gq + 1
    p(f"v_max_f32 v{ss}, 0, v{ss}")
for gq in range(2):
    s_, ss = ST + 2 * gq, ST + 2 * gq + 1
    p(f"v_add_f32 v{ss}, s{t3}, v{ss}")
for gq in range(2):
    s_, ss = ST + 2 * gq, ST + 2 * gq + 1
    p(f"v_rsq_f32 v{ss}, v{ss}")
for gq in range(2):
    s_, ss = ST + 2 * gq, ST + 2 * gq + 1
    p(f"v_mul_f32_e64 v{s_}, -v{s_}, v{ss}")
TMP = 40
for i in range(8):
    p(f"s_sub_u32 s{t2}, s{sJ}, s{sROT}")
    p(f"s_add_u32 s{t2}, s{t2}, {i}")
    p(f"s_and_b32 s{t2}, s{t2}, 7")
    p(f"s_lshl_b32 s{t2}, s{t2}, 12")
    p(f"v_add_u32 v25, s{t2}, v24")
    for gq in range(2):
        src = XR + i * 8 + gq * 4
        dst = src if i else 48 + gq * 4
        pr = v(ST + 2 * gq, 2)
        for r in range(4):
            p(f"v_lshlrev_b32 v{TMP + 2 * r}, 16, v{src + r}")
            p(f"v_and_b32 v{TMP + 2 * r + 1}, s{sMSK}, v{src + r}")
        for r in range(4):
            p(f"v_pk_fma_f32 {v(TMP + 2 * r, 2)}, {v(TMP + 2 * r, 2)}, {pr}, {pr} op_sel:[0,1,0] op_sel_hi:[1,1,0]")
        for r in range(4):
            p(f"v_cvt_pk_bf16_f32 v{dst + r}, v{TMP + 2 * r}, v{TMP + 2 * r + 1}")
        p(f"ds_write_b128 v25, {v(dst, 4)} offset:{gq * 128}")
p.wait_vm("kv1")
p.wait_ds()
p("s_barrier")
stamp("ln")
p(f"""
s_getreg_b32 s{t2}, hwreg(HW_REG_XCC_ID, 0, 4)
s_lshl_b32 s{t2}, s{t2}, 1
s_or_b32 s{t2}, s{t2}, 1
v_mov_b32 v3, s{t2}
s_cmp_eq_u32 s{sW}, 0
s_cbranch_scc0 L_nodbg
""")
p("s_mov_b64 exec, 1", cond=True)
p(f"buffer_store_byte v3, v5, {srd(SDBG)}, s{sVID} offen sc1", cond=True)
p("s_mov_b64 exec, -1", cond=True)
p("L_nodbg:")

ACK, ACV, ACQ = 128, 144, 160
WR = 128


def xn_read(i):
    return G(f"ds_read_b128 {a(4 * i, 4)}, v{26 + (i & 3)} offset:{i * 1024}")


def tr_addr(off):
    return "v%d offset:%d" % (32 + (off >> 16), off & 0xffff)


def kv_read(ks):
    base = KVSLOT[ks >> 2] + (ks & 3) * 4096
    st = WR + (ks & 3) * 8
    g = []
    for part in range(2):
        for h in range(2):
            g += G(f"ds_read_b64_tr_b16 {a(st + part * 4 + h * 2, 2)}, {tr_addr(base + part * 2048 + h * 512)}")
    return g


def q_read(ks):
    base = QSLOT[ks >> 3] + (ks & 7) * 2048
    st = WR + (ks & 7) * 4
    g = []
    for h in range(2):
        g += G(f"ds_read_b64_tr_b16 {a(st + h * 2, 2)}, {tr_addr(base + h * 512)}")
    return g


LOOK = 2
for i in range(4):
    p.extend(xn_read(i))
for ks in range(LOOK):
    p.extend(kv_read(ks))
for ks in range(32):
    nk = ks + LOOK
    if nk < 32:
        if nk == 8:
            p.wait_vm("kv3")
            p.wait_ds()
            p("s_barrier")
            p.extend(kv_dma(6))
            p.extend(kv_dma(7))
            p.extend(q_dma(0))
            p.extend(q_dma(1))
        if nk == 16:
            p.wait_vm("kv5")
            p("s_barrier")
            p.extend(q_dma(2))
            p.extend(q_dma(3))
        if nk == 24:
            p.wait_vm("kv7")
            p("s_barrier")
        p.extend(kv_read(nk))
    if ks < 6:
        for i in range(4 + ks * 5, min(32, 4 + ks * 5 + 5)):
            p.extend(xn_read(i))
    st = WR + (ks & 3) * 8
    p(mfma(v(ACK, 16), a(st, 4), a(4 * ks, 4), v(ACK, 16) if ks else "0"))
    p(mfma(v(ACV, 16), a(4 * ks, 4), a(st + 4, 4), v(ACV, 16) if ks else "0"))
stamp("kv")
p.wait_vm("q1")
p("s_barrier")
for ks in range(4):
    p.extend(q_read(ks))
PK = 80
EXC = 98304
p(f"""
s_lshl_b32 s{t2}, s{sRB}, 1
s_add_u32 s{t2}, s{t2}, s{sRT}
s_lshl_b32 s{t2}, s{t2}, 4
s_lshl_b32 s{t3}, s{sJ}, 1
s_add_u32 s{t2}, s{t2}, s{t3}
s_add_u32 s{t2}, s{t2}, s{sLO}
s_lshl_b32 s{t2}, s{t2}, 12
s_add_u32 s{t2}, s{t2}, {WS_KV}
v_and_b32 v35, 15, v1
v_lshlrev_b32 v35, 4, v35
v_lshl_add_u32 v35, v21, 8, v35
v_bfe_u32 v22, v1, 4, 1
v_lshl_add_u32 v40, v22, 11, v35
s_mul_i32 s{t3}, s{sW}, 6144
s_add_u32 s{t3}, s{t3}, {EXC}
v_add_u32 v41, s{t3}, v2
v_mul_u32_u24 v42, 3072, v22
v_add3_u32 v42, v42, v35, s{t3}
""")
for i in range(8):
    p(f"v_cvt_pk_bf16_f32 v{PK + i}, v{ACK + 2 * i}, v{ACK + 2 * i + 1}")
p(f"buffer_store_dwordx4 {v(PK, 4)}, v2, {srd(SWS)}, s{t2} offen sc1", tag="kvst")
p(f"buffer_store_dwordx4 {v(PK + 4, 4)}, v2, {srd(SWS)}, s{t2} offen offset:2048 sc1", tag="kvst")
for i in range(8):
    p(f"v_cvt_pk_bf16_f32 v{PK + 8 + i}, v{ACV + 2 * i}, v{ACV + 2 * i + 1}")
p(f"buffer_store_dwordx4 {v(PK + 8, 4)}, v40, {srd(SWS)}, s{t2} offen offset:1024 sc1", tag="kvst")
p(f"buffer_store_dwordx4 {v(PK + 12, 4)}, v40, {srd(SWS)}, s{t2} offen offset:1536 sc1", tag="kvst")
p(f"ds_write_b128 v41, {v(PK, 4)} offset:1024")
p(f"ds_write_b128 v41, {v(PK + 4, 4)} offset:{3072 + 1024}")
p(f"ds_write_b128 v42, {v(PK + 8, 4)} offset:2048")
p(f"ds_write_b128 v42, {v(PK + 12, 4)} offset:{2048 + 512}")
XRES = 122880
p(f"""
v_lshrrev_b32 v43, 1, v8
v_xor_b32 v44, v43, v9
v_xor_b32 v45, 4, v44
v_lshlrev_b32 v44, 4, v44
v_lshlrev_b32 v45, 4, v45
v_lshl_add_u32 v44, v8, 7, v44
v_lshl_add_u32 v45, v8, 7, v45
s_lshl_b32 s{t3}, s{sW}, 11
s_add_u32 s{t3}, s{t3}, {XRES}
v_add_u32 v44, s{t3}, v44
v_add_u32 v45, s{t3}, v45
ds_write_b128 v44, {v(XR, 4)}
ds_write_b128 v45, {v(XR + 4, 4)} offset:1024
""")

for ks in range(32):
    nk = ks + 4
    if nk == 16:
        p.wait_vm("kvst")
        p("s_barrier")
        flag_store(sFKV)
    if nk < 32:
        p.extend(q_read(nk))
    st = WR + (ks & 7) * 4
    p(mfma(v(ACQ, 16), a(st, 4), a(4 * ks, 4), v(ACQ, 16) if ks else "0"))
p(f"s_mov_b32 s{sC[0]}, {f2u(0.25 * math.log2(math.e))}")
for i in range(8):
    p(f"v_pk_mul_f32 {v(ACQ + 2 * i, 2)}, {v(ACQ + 2 * i, 2)}, s[{sC[0]}:{sC[1]}] op_sel_hi:[1,0]")
for i in range(8):
    p(f"v_cvt_pk_bf16_f32 v{PK + i}, v{ACQ + 2 * i}, v{ACQ + 2 * i + 1}")
p(f"ds_write_b128 v41, {v(PK, 4)}")
p(f"ds_write_b128 v41, {v(PK + 4, 4)} offset:3072")
p(f"""
s_mul_i32 s{t3}, s{sW}, 3072
s_add_u32 s{t3}, s{t3}, {EXC}
v_add_u32 v41, s{t3}, v2
v_add_u32 v42, s{t3}, v35
v_lshrrev_b32 v43, 1, v20
v_and_b32 v43, 7, v43
s_lshl_b32 s{t2}, s{sLO}, 2
v_xor_b32 v43, s{t2}, v43
s_lshl_b32 s{t3}, s{sRT}, 12
s_add_u32 s{t3}, s{t3}, {XRES}
v_lshlrev_b32 v44, 7, v20
v_lshl_add_u32 v44, v21, 3, v44
v_add_u32 v44, s{t3}, v44
""")
for u in range(4):
    p(f"v_xor_b32 v{46 + u}, {u}, v43")
    p(f"v_lshl_add_u32 v{46 + u}, v{46 + u}, 4, v44")
p.wait_ds()
p("s_barrier")
stamp("q")
for rt in range(2):
    p(f"ds_read_b128 {a(OQ + 4 * rt, 4)}, v41 offset:{rt * 12288}")
    p(f"ds_read_b128 {a(OK_ + 4 * rt, 4)}, v41 offset:{rt * 12288 + 1024}")
p("s_mov_b32 exec_lo, 0xffff")
p("s_mov_b32 exec_hi, 0xffff")
for rt in range(2):
    for u in range(2):
        p(f"ds_read_b128 {a(OV + 8 * rt + 4 * u, 4)}, v42 offset:{rt * 12288 + 2048 + u * 512}")
p("s_mov_b64 exec, -1")
XS = 56
for u in range(4):
    p(f"ds_read_b64 {v(XS + 2 * u, 2)}, v{46 + u}")
p(f"""
s_and_b32 s{t2}, s{sVID}, 0xf0
v_add_u32 v40, s{t2}, v1
v_and_b32 v43, 3, v1
v_lshlrev_b32 v43, 3, v43
s_sub_u32 s{t3}, s{sVID}, 32
v_add_u32 v43, s{t3}, v43
v_mov_b32 v44, s{sVID}
v_cmp_gt_i32 vcc, 0, v43
v_cndmask_b32 v43, v43, v44, vcc
v_cmp_gt_u32 vcc, 16, v1
v_cndmask_b32 v40, v43, v40, vcc
v_lshlrev_b32 v43, 7, v43
""")
p.wait_ds()
p("s_barrier")
poll(40, SDBG, "buffer_load_ubyte")
poll(43, SWS, "buffer_load_dword")
stamp("kvpoll")
p(f"""
s_lshl_b32 s{t4}, s{sRB}, 6
s_lshl_b32 s{t3}, s{sJ}, 2
s_add_u32 s{t4}, s{t4}, s{t3}
s_add_u32 s{t4}, s{t4}, s{sW}
s_lshl_b32 s{t4}, s{t4}, 11
s_add_u32 s{t4}, s{t4}, {WS_KV - 8 * 65536}
""")
for i in range(7, -1, -1):
    p(f"s_mov_b32 s{SKV + 2}, s{sVAL[i >> 1]}")
    p(f"s_add_u32 s{t2}, s{t4}, {i * 65536}")
    p(f"buffer_load_dwordx4 {v(HK + 4 * i, 4)}, v2, {srd(SKV)}, s{t2} offen sc1")
    p("s_mov_b32 exec_lo, 0xffff")
    p("s_mov_b32 exec_hi, 0xffff")
    p(f"buffer_load_dwordx4 {a(HV + 8 * i, 4)}, v35, {srd(SKV)}, s{t2} offen offset:1024 sc1")
    p(f"buffer_load_dwordx4 {a(HV + 8 * i + 4, 4)}, v35, {srd(SKV)}, s{t2} offen offset:1536 sc1")
    p("s_mov_b64 exec, -1")
p(f"""
v_lshl_add_u32 v12, v8, 10, v10
v_add_u32 v13, {1 * 7168}, v12
v_add_u32 v14, {2 * 7168}, v12
v_add_u32 v15, {3 * 7168}, v12
""")
for i in range(3):
    p(f"""
v_add_u32 v22, {64 * i}, v1
v_mul_u32_u24 v23, 0x5556, v22
v_lshrrev_b32 v23, 18, v23
v_mul_u32_u24 v25, 12, v23
v_sub_u32 v22, v22, v25
v_mul_u32_u24 v23, 2752, v23
v_lshl_add_u32 v{16 + i}, v22, 4, v23
""")
    if i:
        p(f"v_subrev_u32 v{16 + i}, {1024 * i}, v{16 + i}")
WOL = 98304
W1L = 0


def wo_dma(n):
    g = Prog()
    g(f"s_add_u32 s{t2}, s{sROT}, {n}")
    g(f"s_and_b32 s{t2}, s{t2}, 3")
    g(f"s_lshl_b32 s{t2}, s{t2}, 14")
    g(f"s_add_u32 s{t2}, s{t2}, s{sW4K}")
    g(f"s_add_u32 m0, s{t2}, {WOL}")
    g(f"s_lshl_b32 s{t2}, s{t2}, 3")
    for i in range(4):
        g(f"buffer_load_dwordx4 v{12 + i}, {srd(SWO)}, s{t2} offen offset:{i * 1024} lds", tag="wo")
    return g.ins


def w1_dma(n):
    g = Prog()
    g(f"s_add_u32 s{t2}, s{sROT}, {n}")
    g(f"s_and_b32 s{t2}, s{t2}, 7")
    g(f"s_lshl_b32 s{t2}, s{t2}, 2")
    g(f"s_add_u32 s{t2}, s{t2}, s{sW}")
    g(f"s_mul_i32 m0, s{t2}, 3072")
    g(f"s_mul_i32 s{t2}, s{t2}, 44032")
    for i in range(3):
        g(f"buffer_load_dwordx4 v{16 + i}, {srd(SW1)}, s{t2} offen offset:{i * 1024} lds", tag="w1")
    return g.ins


B2R = 48
p(f"""
v_lshlrev_b32 v22, 3, v21
s_lshl_b32 s{t2}, s{sLO}, 6
""")
for u in range(4):
    p(f"buffer_load_dwordx2 {v(B2R + 2 * u, 2)}, v22, {srd(SB2)}, s{t2} offen offset:{16 * u}")
sTW = t5
p(f"""
s_min_u32 s{sTW}, s{sW}, 2
s_lshl_b32 s{t2}, s{sTW}, 6
v_lshlrev_b32 v22, 1, v20
buffer_load_ushort v19, v22, {srd(SB1)}, s{t2} offen
""")

SB = [80, 96]
PB = [112, 120]
OA = [128, 144]


def kfrag(t):
    return a(OK_ + 4 * t[1], 4) if t[0] == "o" else v(HK + 4 * t[1], 4)


def vfrag(t, u):
    return a((OV if t[0] == "o" else HV) + 8 * t[1] + 4 * u, 4)


steps = [(0, ("o", 0), CC), (1, ("o", 0), None), (1, ("o", 1), CC)]
for i in range(7, 1, -1):
    steps += [(0, ("h", i), None), (1, ("h", i), None)]
steps += [(0, ("h", 1), None), (1, ("h", 1), CA), (0, ("h", 0), CA)]


def s_mfma(n):
    q, t, c = steps[n]
    return mfma(v(SB[n & 1], 16), kfrag(t), a(OQ + 4 * q, 4), v(c, 16) if c else "0")


fill = [wo_dma(n) for n in range(4)] + [w1_dma(n) for n in range(8)]
p(s_mfma(0))
seen = set()
for n in range(18):
    q, t, c = steps[n]
    S, P_ = SB[n & 1], PB[n & 1]
    if n + 1 < 18:
        p(s_mfma(n + 1))
    if n < len(fill):
        p.extend(fill[n])
    for u in range(2):
        for r in range(8):
            p(f"v_exp_f32 v{S + 8 * u + r}, v{S + 8 * u + r}")
        for r in range(4):
            p(f"v_cvt_pk_bf16_f32 v{P_ + 4 * u + r}, v{S + 8 * u + 2 * r}, v{S + 8 * u + 2 * r + 1}")
        p(mfma(v(OA[q], 16), vfrag(t, u), v(P_ + 4 * u, 4), v(OA[q], 16) if q in seen else "0"))
        seen.add(q)
p(f"""
s_mov_b32 s{t2}, {f2u(2.0 ** -64)}
v_mov_b32 v22, {f2u(2.0 ** 64)}
v_med3_f32 v23, v{OA[0] + 8}, s{t2}, v22
v_med3_f32 v25, v{OA[1] + 8}, s{t2}, v22
v_cmp_neq_f32 vcc, v23, v{OA[0] + 8}
v_cmp_neq_f32 s[4:5], v25, v{OA[1] + 8}
s_or_b64 vcc, vcc, s[4:5]
""")
if FORCE_FB:
    p("s_branch L_fallback")
else:
    p("s_cbranch_vccnz L_fallback")
p("L_fbret:")
p(f"""
s_lshl_b32 s{t2}, s{sRB}, 6
s_lshl_b32 s{t3}, s{sJ}, 2
s_add_u32 s{t2}, s{t2}, s{t3}
s_add_u32 s{t2}, s{t2}, s{sW}
s_lshl_b32 s{t2}, s{t2}, 10
s_add_u32 s{t2}, s{t2}, {WS_O}
s_add_u32 s{t3}, s{t2}, 32768
""")
for q in range(2):
    p(f"v_rcp_f32 v{OA[q] + 8}, v{OA[q] + 8}")
for q in range(2):
    for i in range(4):
        p(f"v_pk_mul_f32 {v(OA[q] + 2 * i, 2)}, {v(OA[q] + 2 * i, 2)}, {v(OA[q] + 8, 2)} op_sel_hi:[1,0]")
    for i in range(4):
        p(f"v_cvt_pk_bf16_f32 v{PB[q] + i}, v{OA[q] + 2 * i}, v{OA[q] + 2 * i + 1}")
    p(f"buffer_store_dwordx4 {v(PB[q], 4)}, v2, {srd(SWS)}, s{[t2, t3][q]} offen sc1", tag="ost")
stamp("attn")
HR = 240
for i in range(8):
    p(f"v_lshlrev_b32 v{HR + 2 * i}, 16, v{XS + i}")
    p(f"v_and_b32 v{HR + 2 * i + 1}, s{sMSK}, v{XS + i}")
p(f"""
v_lshl_add_u32 v30, v21, 9, v30
s_lshl_b32 s{t2}, s{sLO}, 15
s_add_u32 s{t2}, s{t2}, {WOL}
v_add_u32 v32, s{t2}, v30
v_xor_b32 v33, 64, v32
v_and_b32 v40, 7, v1
v_lshlrev_b32 v40, 2, v40
s_and_b32 s{t2}, s{sFO}, 0xff80
v_add_u32 v40, s{t2}, v40
""")
p.wait_vm("ost")
p("s_barrier")
flag_store(sFO)
for ks in range(16):
    for b in range(2):
        for h in range(2):
            p(f"ds_read_b64_tr_b16 {a((ks * 2 + b) * 4 + 2 * h, 2)}, v{32 + b} offset:{ks * 2048 + h * 1024}")
p.wait_ds()
p("s_barrier")
poll(40, SWS, "buffer_load_dword")
stamp("opoll")

OF = 64
p(f"""
s_lshl_b32 s{t4}, s{sRB}, 2
s_add_u32 s{t4}, s{t4}, s{sW}
s_lshl_b32 s{t4}, s{t4}, 14
s_add_u32 s{t4}, s{t4}, {WS_O}
""")
for ks in range(16):
    if ks and ks % 4 == 0:
        p(f"s_add_u32 s{t4}, s{t4}, 4096")
    p(f"buffer_load_dwordx4 {v(OF + 4 * ks, 4)}, v2, {srd(SWS)}, s{t4} offen offset:{(ks & 3) * 1024} sc1")
WIN = 98304
EX3 = 147456
sK0, sWIN = 6, 7
p(f"""
s_mul_i32 s{sK0}, s{sW}, 22
s_mul_i32 s{t2}, s{sRT}, s{sW}
s_sub_u32 s{t2}, s{t2}, s{sRT}
s_sub_u32 s{sK0}, s{sK0}, s{t2}
s_mul_i32 s{sWIN}, s{sW}, 12288
s_add_u32 s{sWIN}, s{sWIN}, {WIN}
v_add_u32 v32, s{sWIN}, v30
v_xor_b32 v33, 64, v32
""")


def w2_dma(gi):
    g = Prog()
    g(f"s_add_u32 s{t2}, s{sK0}, {2 * gi}")
    g(f"s_lshl_b32 s{t2}, s{t2}, 14")
    g(f"s_add_u32 m0, s{sWIN}, {(gi % 3) * 4096}")
    for i in range(4):
        g(f"buffer_load_dwordx4 v{12 + i}, {srd(SW2)}, s{t2} offen offset:{i * 1024} lds", tag="w2_%d" % gi)
    return g.ins


def w2_read(gi):
    g = Prog()
    g.wait_vm("w2_%d" % gi)
    for s_ in range(2):
        for b in range(2):
            for h in range(2):
                g(f"ds_read_b64_tr_b16 {a(((2 * gi + s_) * 2 + b) * 4 + 2 * h, 2)}, v{32 + b} offset:{(gi % 3) * 4096 + s_ * 2048 + h * 1024}", tag="w2r")
    return g.ins


for gi in range(3):
    p.extend(w2_dma(gi))
KEEP, SEND, RECV = 128, 144, 160
for ks in range(16):
    p(mfma(v(SEND, 16), a((ks * 2 + 1) * 4, 4), v(OF + 4 * ks, 4), v(SEND, 16) if ks else "0"))
    p(mfma(v(KEEP, 16), a((ks * 2) * 4, 4), v(OF + 4 * ks, 4), v(KEEP, 16) if ks else v(HR, 16)))
p(f"""
s_add_u32 s{t2}, s{sW4K}, {EX3}
v_add_u32 v41, s{t2}, v2
v_xor_b32 v42, 4096, v41
s_lshl_b32 s{t2}, s{sRB}, 1
s_add_u32 s{t2}, s{t2}, s{sRT}
s_lshl_b32 s{t2}, s{t2}, 4
s_lshl_b32 s{t3}, s{sJ}, 1
s_add_u32 s{t2}, s{t2}, s{t3}
s_add_u32 s{t2}, s{t2}, s{sLO}
s_lshl_b32 s{t2}, s{t2}, 11
s_add_u32 s{t2}, s{t2}, {WS_H}
""")
for i in range(4):
    p(f"ds_write_b128 v41, {v(SEND + 4 * i, 4)} offset:{i * 1024}")
p.wait_ds()
p("s_barrier")
for i in range(4):
    p(f"ds_read_b128 {v(RECV + 4 * i, 4)}, v42 offset:{i * 1024}")
for i in range(8):
    p(f"v_pk_add_f32 {v(HR + 2 * i, 2)}, {v(KEEP + 2 * i, 2)}, {v(RECV + 2 * i, 2)}")
for i in range(8):
    p(f"v_cvt_pk_bf16_f32 v{PK + i}, v{HR + 2 * i}, v{HR + 2 * i + 1}")
for u in range(2):
    p(f"buffer_store_dwordx4 {v(PK + 4 * u, 4)}, v2, {srd(SWS)}, s{t2} offen offset:{u * 1024} sc1", tag="hst")
stamp("wo")
for i in range(8):
    p(f"v_lshlrev_b32 v{TMP}, 16, v{B2R + i}")
    p(f"v_and_b32 v{TMP + 1}, s{sMSK}, v{B2R + i}")
    p(f"v_pk_add_f32 {v(HR + 2 * i, 2)}, {v(HR + 2 * i, 2)}, {v(TMP, 2)}")
p(f"""
v_and_b32 v40, 15, v1
v_lshlrev_b32 v40, 2, v40
s_and_b32 s{t2}, s{sFH}, 0xff80
v_add_u32 v40, s{t2}, v40
""")
p.wait_vm("hst")
p("s_barrier")
flag_store(sFH)
for gi in range(3):
    p.extend(w2_read(gi))
p(f"""
s_lshl_b32 s{t2}, s{sTW}, 6
v_add_u32 v34, s{t2}, v31
v_add_u32 v35, 0x10000, v34
v_mov_b32 v36, 0
v_mov_b32 v37, 0
""")


def w1off(vb, off):
    return "v%d offset:%d" % (vb + (off >> 16), off & 0xffff)


CSR = 64
for ks0 in range(0, 32, 4):
    for ks in range(ks0, ks0 + 4):
        for h in range(2):
            p(f"ds_read_b64_tr_b16 {v(CSR + 4 * ks + 2 * h, 2)}, {w1off(34, ks * 3072 + h * 1536)}")
    if ks0:
        for r in range(16):
            p(f"v_dot2c_f32_bf16 v{36 + (r & 1)}, s{sONE}, v{CSR + 4 * (ks0 - 4) + r}")
for r in range(16):
    p(f"v_dot2c_f32_bf16 v{36 + (r & 1)}, s{sONE}, v{CSR + 4 * 28 + r}")
CSL = EX3
p(f"""
v_add_f32 v36, v36, v37
v_mov_b32 v37, v36
v_permlane32_swap_b32 v36, v37
v_add_f32 v36, v36, v37
v_lshlrev_b32 v19, 16, v19
v_cmp_gt_u32 vcc, 32, v1
v_cndmask_b32 v36, v19, v36, vcc
v_lshlrev_b32 v37, 2, v20
v_lshl_add_u32 v37, v21, 9, v37
s_lshl_b32 s{t2}, s{sTW}, 7
s_add_u32 s{t2}, s{t2}, {CSL}
v_add_u32 v37, s{t2}, v37
ds_write_b32 v37, v36
""")
p.wait_ds()
poll(40, SWS, "buffer_load_dword")
stamp("hpoll")

HF = 64
p(f"""
s_lshr_b32 s{t4}, s{sRB}, 1
s_lshl_b32 s{t4}, s{t4}, 2
s_add_u32 s{t4}, s{t4}, s{sW}
s_mul_i32 s{t0}, s{t4}, 86
s_lshl_b32 s{t4}, s{t4}, 15
s_add_u32 s{t4}, s{t4}, {WS_H}
""")
for ks in range(32):
    if ks and ks % 4 == 0:
        p(f"s_add_u32 s{t4}, s{t4}, 4096")
    p(f"buffer_load_dwordx4 {v(HF + 4 * ks, 4)}, v2, {srd(SWS)}, s{t4} offen offset:{(ks & 3) * 1024} sc1")
for gi in range(3, 6):
    p.extend(w2_dma(gi))
p("""
v_mov_b32 v34, v31
v_add_u32 v35, 0x10000, v31
v_mov_b32 v36, 0
v_mov_b32 v37, 0
v_mov_b32 v38, 0
v_mov_b32 v39, 0
""")
W1R = 176
AC4 = 192


def w1_read(ks):
    g = []
    for t in range(3):
        for h in range(2):
            g += G(f"ds_read_b64_tr_b16 {a(W1R + (ks & 3) * 12 + t * 4 + 2 * h, 2)}, {w1off(34, ks * 3072 + t * 64 + h * 1536)}")
    return g


p.extend(w1_read(0))
p.extend(w1_read(1))
for ks in range(32):
    rd = w1_read(ks + 2) if ks + 2 < 32 else []
    for t in range(3):
        p(mfma(v(AC4 + 16 * t, 16), a(W1R + (ks & 3) * 12 + t * 4, 4), v(HF + 4 * ks, 4), v(AC4 + 16 * t, 16) if ks else "0"))
        p.extend(rd[2 * t:2 * t + 2])
        for r in ([0], [1, 2], [3])[t]:
            x = HF + 4 * ks + r
            p(f"v_dot2c_f32_bf16 v{36 + (r & 1)}, s{sONE}, v{x}")
            p(f"v_dot2c_f32_bf16 v{38 + (r & 1)}, v{x}, v{x}")
stamp("w1")
for gi in range(3, 6):
    p.extend(w2_read(gi))
p.wait_ds()
for gi in range(6, 9):
    p.extend(w2_dma(gi))
p("s_barrier")
p(f"""
s_mov_b32 s{t2}, {f2u(1.0 / 512)}
s_mov_b32 s{t3}, {f2u(1e-5)}
v_add_f32 v36, v36, v37
v_add_f32 v38, v38, v39
v_mov_b32 v37, v36
v_mov_b32 v39, v38
v_permlane32_swap_b32 v36, v37
v_permlane32_swap_b32 v38, v39
v_add_f32 v36, v36, v37
v_add_f32 v38, v38, v39
v_mul_f32 v36, s{t2}, v36
v_mul_f32 v38, s{t2}, v38
v_fma_f32 v38, -v36, v36, v38
v_max_f32 v38, 0, v38
v_add_f32 v39, s{t3}, v38
v_rsq_f32 v39, v39
v_mul_f32 v38, v38, v39
v_fma_f32 v38, v38, v39, s{t3}
v_rsq_f32 v38, v38
v_mul_f32 v37, v38, v39
v_mul_f32_e64 v36, -v36, v37
v_lshlrev_b32 v41, 4, v21
v_add_u32 v41, {CSL}, v41
""")
c1 = -2.0 * math.sqrt(2.0 / math.pi) * math.log2(math.e)
p(f"""
s_mov_b32 s{sC[0]}, {f2u(c1 * 0.044715)}
v_mov_b32 v42, {f2u(c1)}
s_lshl_b32 s{t2}, s{sT0}, 1
s_add_u32 s{t0}, s{t0}, s{t2}
s_lshl_b32 s{t0}, s{t0}, 10
s_add_u32 s{t0}, s{t0}, {WS_HH}
s_add_u32 s{t1}, s{t0}, 4096
""")
CS_, B1_, E_ = 64, 112, 160
for t in range(3):
    for u in range(4):
        p(f"ds_read_b128 {v(CS_ + 16 * t + 4 * u, 4)}, v41 offset:{t * 128 + u * 32}")
        p(f"ds_read_b128 {v(B1_ + 16 * t + 4 * u, 4)}, v41 offset:{512 + t * 128 + u * 32}")
for t in range(3):
    Z = AC4 + 16 * t
    for i in range(8):
        b_ = v(B1_ + 16 * t + 2 * i, 2)
        p(f"v_pk_fma_f32 {b_}, {v(CS_ + 16 * t + 2 * i, 2)}, v[36:37], {b_} op_sel_hi:[1,0,1]")
    for i in range(8):
        z = v(Z + 2 * i, 2)
        p(f"v_pk_fma_f32 {z}, {z}, v[36:37], {v(B1_ + 16 * t + 2 * i, 2)} op_sel:[0,1,0] op_sel_hi:[1,1,1]")
    for i in range(8):
        p(f"v_pk_mul_f32 {v(E_ + 2 * i, 2)}, {v(Z + 2 * i, 2)}, {v(Z + 2 * i, 2)}")
    for i in range(8):
        e = v(E_ + 2 * i, 2)
        p(f"v_pk_fma_f32 {e}, {e}, s[{sC[0]}:{sC[1]}], v[42:43] op_sel_hi:[1,0,0]")
    for i in range(8):
        e = v(E_ + 2 * i, 2)
        p(f"v_pk_mul_f32 {e}, {e}, {v(Z + 2 * i, 2)}")
    for i in range(16):
        p(f"v_exp_f32 v{E_ + i}, v{E_ + i}")
    for i in range(8):
        e = v(E_ + 2 * i, 2)
        p(f"v_pk_add_f32 {e}, {e}, 1.0 op_sel_hi:[1,0]")
    for i in range(16):
        p(f"v_rcp_f32 v{E_ + i}, v{E_ + i}")
    for i in range(8):
        e = v(E_ + 2 * i, 2)
        p(f"v_pk_mul_f32 {e}, {e}, {v(Z + 2 * i, 2)}")
    PKD = CS_ + 16 * t
    for i in range(8):
        p(f"v_cvt_pk_bf16_f32 v{PKD + i}, v{E_ + 2 * i}, v{E_ + 2 * i + 1}")
    for u in range(2):
        f = 2 * t + u
        p(f"buffer_store_dwordx4 {v(PKD + 4 * u, 4)}, v2, {srd(SWS)}, s{[t0, t1][f >> 2]} offen offset:{(f & 3) * 1024} sc1", tag="hhst")
    if t == 1:
        for gi in range(6, 9):
            p.extend(w2_read(gi))
        p.wait_ds()
        for gi in range(9, 11):
            p.extend(w2_dma(gi))
stamp("gelu")
p(f"v_add_u32 v40, {WS_HHF - WS_HF}, v40")
p.wait_vm("hhst")
p("s_barrier")
flag_store(sFHH)
for gi in range(9, 11):
    p.extend(w2_read(gi))
p.wait_ds()
poll(40, SWS, "buffer_load_dword")
stamp("hhpoll")

slots = list(range(64, 192, 4)) + list(range(208, 240, 4)) + list(range(48, 64, 4))
order = list(range(1, 22)) + [0]
p(f"""
s_lshl_b32 s{t0}, s{sRB}, 1
s_add_u32 s{t0}, s{t0}, s{sRT}
s_xor_b32 s{t1}, s{t0}, 1
s_mul_i32 s{t0}, s{t0}, 86
s_mul_i32 s{t1}, s{t1}, 86
s_add_u32 s{t0}, s{t0}, s{sK0}
s_add_u32 s{t1}, s{t1}, s{sK0}
s_lshl_b32 s{t0}, s{t0}, 10
s_lshl_b32 s{t1}, s{t1}, 10
s_add_u32 s{t0}, s{t0}, {WS_HH}
s_add_u32 s{t1}, s{t1}, {WS_HH}
""")
AF = {}
cur = None
for n, s_ in enumerate(order):
    if cur != s_ >> 2:
        cur = s_ >> 2
        p(f"s_add_u32 s{t2}, s{t0}, {cur * 4096}")
        p(f"s_add_u32 s{t3}, s{t1}, {cur * 4096}")
    for b in range(2):
        AF[(s_, b)] = slots[2 * n + b]
        p(f"buffer_load_dwordx4 {v(slots[2 * n + b], 4)}, v2, {srd(SWS)}, s{[t2, t3][b]} offen offset:{(s_ & 3) * 1024} sc1")
AC5 = [v(192, 16), a(176, 16), a(192, 16), a(208, 16)]
for n, s_ in enumerate(order):
    cond = s_ == 0
    if cond:
        p("s_waitcnt vmcnt(0)")
        p(f"s_cmp_eq_u32 s{sRT}, 0")
        p("s_cbranch_scc0 L_skipk")
    for i in range(4):
        C = AC5[i] if n else (v(HR, 16) if i == 0 else "0")
        p(mfma(AC5[i], a((s_ * 2 + (i & 1)) * 4, 4), v(AF[(s_, i >> 1)], 4), C), cond=cond)
    if cond:
        p("L_skipk:")
stamp("w2")
p(f"""
s_mul_i32 s{t2}, s{sW}, 12288
v_add_u32 v41, s{t2}, v2
""")
for i in range(1, 4):
    p(f"s_xor_b32 s{t2}, s{sW}, {i}")
    p(f"s_mul_i32 s{t2}, s{t2}, 12288")
    p(f"v_add_u32 v42, s{t2}, v2")
    for q in range(4):
        p(f"ds_write_b128 v42, {a(176 + 16 * (i - 1) + 4 * q, 4)} offset:{(i - 1) * 4096 + q * 1024}")
p(f"""
v_lshlrev_b32 v43, 10, v20
v_lshl_add_u32 v43, v21, 4, v43
s_lshl_b32 s{t2}, s{sRT}, 15
s_lshl_b32 s{t3}, s{sLO}, 6
s_add_u32 s{t2}, s{t2}, s{t3}
""")
p.wait_ds()
p("s_barrier")
for q in range(4):
    for i in range(3):
        p(f"ds_read_b128 {v(64 + 16 * i + 4 * q, 4)}, v41 offset:{i * 4096 + q * 1024}")
for q in range(4):
    for i in range(3):
        for e in range(2):
            d = v(192 + 4 * q + 2 * e, 2)
            p(f"v_pk_add_f32 {d}, {d}, {v(64 + 16 * i + 4 * q + 2 * e, 2)}")
for i in range(8):
    p(f"v_cvt_pk_bf16_f32 v{112 + i}, v{192 + 2 * i}, v{192 + 2 * i + 1}")
for u in range(2):
    p(f"v_permlane32_swap_b32 v{112 + 4 * u}, v{112 + 4 * u + 2}")
    p(f"v_permlane32_swap_b32 v{112 + 4 * u + 1}, v{112 + 4 * u + 3}")
    p(f"buffer_store_dwordx4 {v(112 + 4 * u, 4)}, v43, {srd(SOUT)}, s{t2} offen offset:{32 * u}")
if STAMPS:
    p("s_waitcnt vmcnt(0)")
    stamp("end")
    p("s_memrealtime s[4:5]")
    p("s_waitcnt lgkmcnt(0)")
    p(f"s_mov_b32 s{sSTMP + 1}, s4")
    for i in range(18):
        p(f"v_writelane_b32 v3, s{sSTMP + i}, {i}")
    p(f"""
s_lshl_b32 s{t2}, s2, 2
s_add_u32 s{t2}, s{t2}, s{sW}
s_lshl_b32 s{t2}, s{t2}, 7
s_add_u32 s{t2}, s{t2}, {WS_ST}
v_lshlrev_b32 v22, 2, v1
s_mov_b64 exec, 0x3ffff
buffer_store_dword v3, v22, {srd(SWS)}, s{t2} offen
""")
p("s_endpgm")

p("L_fallback:")
p("s_nop 15")
MX = 22
for q in range(2):
    mine = [(t, c) for (qq, t, c) in steps if qq == q]
    p(f"v_mov_b32 v{MX}, 0xff7fffff")
    for t, c in mine:
        p(mfma(v(SB[0], 16), kfrag(t), a(OQ + 4 * q, 4), v(c, 16) if c else "0"))
        p(f"v_max3_f32 v23, v{SB[0]}, v{SB[0] + 1}, v{SB[0] + 2}")
        for r in range(3, 15, 2):
            p(f"v_max3_f32 v23, v23, v{SB[0] + r}, v{SB[0] + r + 1}")
        p(f"v_max_f32 v23, v23, v{SB[0] + 15}")
        if t[0] == "h":
            p(f"s_cmp_eq_u32 s{sVAL[t[1] >> 1]}, 0")
            p(f"s_cselect_b32 s{t2}, 0xf149f2ca, 0")
            p(f"v_add_f32 v23, s{t2}, v23")
        p(f"v_max_f32 v{MX}, v{MX}, v23")
    p(f"""
v_mov_b32 v23, v{MX}
v_permlane32_swap_b32 v{MX}, v23
v_max_f32 v{MX}, v{MX}, v23
""")
    first = True
    for t, c in mine:
        S, P_ = SB[0], PB[0]
        p(mfma(v(S, 16), kfrag(t), a(OQ + 4 * q, 4), v(c, 16) if c else "0"))
        for r in range(16):
            p(f"v_sub_f32 v{S + r}, v{S + r}, v{MX}")
        for r in range(16):
            p(f"v_min_f32 v{S + r}, 0, v{S + r}")
        for r in range(16):
            p(f"v_exp_f32 v{S + r}, v{S + r}")
        for r in range(8):
            p(f"v_cvt_pk_bf16_f32 v{P_ + r}, v{S + 2 * r}, v{S + 2 * r + 1}")
        for u in range(2):
            p(mfma(v(OA[q], 16), vfrag(t, u), v(P_ + 4 * u, 4), "0" if first else v(OA[q], 16)))
            first = False
p("s_nop 15")
p("s_branch L_fbret")
p("L_end:")

body, ins, nops = finalize(p)
print("instructions:", sum(1 for i in ins if i.cls not in ("label", "none")), "nop states:", nops, file=sys.stderr)

ref = open("sequential_preLN__sliding_block__mixer_channel_mlp__prompt.s.ref").read()
head = []
for line in ref.split("\n"):
    if not line.startswith(";"):
        break
    if "@launch" in line:
        line = "; @launch grid=(256,1,1) block=(256,1,1) lds=163840"
    head.append(line)
out = "\n".join(head) + f"""
.amdgcn_target "amdgcn-amd-amdhsa--gfx950"
.text
.globl {NAME}
.p2align 8
.type {NAME},@function
{NAME}:
{body}    s_endpgm
.section .rodata,"a"
.p2align 6
.amdhsa_kernel {NAME}
  .amdhsa_next_free_vgpr 512
  .amdhsa_next_free_sgpr 102
  .amdhsa_accum_offset 256
  .amdhsa_group_segment_fixed_size 0
  .amdhsa_kernarg_size 88
  .amdhsa_user_sgpr_count 2
  .amdhsa_user_sgpr_kernarg_segment_ptr 1
  .amdhsa_system_sgpr_workgroup_id_x 1
.end_amdhsa_kernel
"""
open(sys.argv[1] if len(sys.argv) > 1 else "out.s", "w").write(out)
```

```python
import sys, os, struct, math
sys.path.insert(0, os.path.dirname(os.path.abspath(__file__)))
from asmgen import *

NAME = "sequential_preLN__sliding_block__mixer_channel_mlp__prompt_kernel"
STAMPS = int(os.environ.get("STAMPS", "0"))
FORCE_FB = int(os.environ.get("FORCE_FB", "0"))


def f2u(x):
    return "0x%08x" % struct.unpack("<I", struct.pack("<f", x))[0]


WS_KVF = 0x0000
WS_OF = 0x8000
WS_HF = 0x9000
WS_HHF = 0xA000
WS_KV = 0x100000
WS_O = 0x500000
WS_H = 0x700000
WS_HH = 0x900000
WS_ST = 0x1000000
WS_SIZE = 0x1100000

SX, SWQ, SWO, SW1, SW2, SOUT, SWS, SDBG, SB1, SB2, SKV = 8, 12, 16, 20, 24, 28, 32, 36, 40, 44, 48
sW, sJ, sRB, sVID, sROT, sT0 = 52, 53, 54, 55, 56, 57
sRT, sLO = 58, 59
sONE, sMSK = 60, 61
sT = list(range(62, 72))
sSPIN = 72
sVAL = [73, 74, 75, 76]
sC = list(range(78, 84))
sSTMP = 84


def srd(n):
    return "s[%d:%d]" % (n, n + 3)


def v(n, c=1):
    return "v%d" % n if c == 1 else "v[%d:%d]" % (n, n + c - 1)


def a(n, c=1):
    return "a%d" % n if c == 1 else "a[%d:%d]" % (n, n + c - 1)


def mfma(d, A, B, C):
    return "v_mfma_f32_32x32x16_bf16 %s, %s, %s, %s" % (d, A, B, C)


p = Prog()
nst = [0]


SPINAT = os.environ.get("SPINAT", "")
SPINUS = int(os.environ.get("SPINUS", "60"))


def stamp(name):
    if name == SPINAT:
        p("s_waitcnt lgkmcnt(0)")
        p("L_spin:")
        p("s_memrealtime s[4:5]")
        p("s_waitcnt lgkmcnt(0)")
        p("s_sub_u32 s4, s4, s%d" % sSTMP)
        p("s_cmp_lt_u32 s4, %d" % (SPINUS * 100))
        p("s_cbranch_scc1 L_spin")
    if not STAMPS:
        return
    i = nst[0]
    nst[0] += 1
    assert i < 16
    p("s_waitcnt lgkmcnt(0)")
    p("s_memtime s[4:5]")
    p("s_waitcnt lgkmcnt(0)")
    p("s_mov_b32 s%d, s4 ; stamp %s" % (sSTMP + 2 + i, name))
    print("stamp", i, name, file=sys.stderr)


lab = [0]


def poll(vaddr, srdn, ld, aux="sc1"):
    lab[0] += 1
    L = "L_poll%d" % lab[0]
    p("s_mov_b32 s%d, 0" % sSPIN)
    p(L + ":")
    p("%s v3, %s, %s, 0 offen %s" % (ld, v(vaddr), srd(srdn), aux))
    p("s_add_u32 s%d, s%d, 1" % (sSPIN, sSPIN))
    p("s_bitcmp1_b32 s%d, 20" % sSPIN)
    p("s_cbranch_scc1 %s_x" % L)
    p("s_waitcnt vmcnt(0)")
    p("v_cmp_eq_u32 vcc, 0, v3")
    p("s_cbranch_vccnz %s" % L)
    p(L + "_x:")
    p("s_waitcnt vmcnt(0)")


def flag_store(soff, aux="sc1"):
    lab[0] += 1
    L = "L_fl%d" % lab[0]
    p("s_cmp_eq_u32 s%d, 0" % sW)
    p("s_cbranch_scc0 %s" % L)
    p("s_mov_b64 exec, 1", cond=True)
    p("buffer_store_dword v4, v5, %s, s%d offen %s" % (srd(SWS), soff, aux), cond=True)
    p("s_mov_b64 exec, -1", cond=True)
    p(L + ":")


p("s_cmp_ge_u32 s2, 256")
p("s_cbranch_scc1 L_end")
if STAMPS or SPINAT:
    p("s_memrealtime s[%d:%d]" % (sSTMP, sSTMP + 1))
stamp("start")
p("""
s_load_dwordx2 s[8:9], s[0:1], 0
s_load_dwordx2 s[12:13], s[0:1], 8
s_load_dwordx2 s[16:17], s[0:1], 16
s_load_dwordx2 s[20:21], s[0:1], 32
s_load_dwordx2 s[40:41], s[0:1], 40
s_load_dwordx2 s[24:25], s[0:1], 48
s_load_dwordx2 s[44:45], s[0:1], 56
s_load_dwordx2 s[28:29], s[0:1], 64
s_load_dwordx2 s[36:37], s[0:1], 72
s_load_dwordx2 s[32:33], s[0:1], 80
v_lshrrev_b32 v1, 6, v0
""")
p("v_readfirstlane_b32 s%d, v1" % sW)
p("v_and_b32 v1, 63, v0")
p("v_lshlrev_b32 v2, 4, v1")
p("v_mov_b32 v4, 1")
p("v_mov_b32 v5, 0")
t0, t1, t2, t3, t4, t5 = sT[:6]
p(f"""
s_and_b32 s{sROT}, s2, 7
s_lshr_b32 s{t0}, s2, 3
s_and_b32 s{sJ}, s{t0}, 7
s_lshr_b32 s{t0}, s{t0}, 3
s_lshl_b32 s{sRB}, s{sROT}, 2
s_add_u32 s{sRB}, s{sRB}, s{t0}
s_lshl_b32 s{sVID}, s{sRB}, 3
s_add_u32 s{sVID}, s{sVID}, s{sJ}
s_and_b32 s{t0}, s{sVID}, 15
s_mul_i32 s{t0}, s{t0}, 3
s_min_u32 s{sT0}, s{t0}, 40
s_lshr_b32 s{sRT}, s{sW}, 1
s_and_b32 s{sLO}, s{sW}, 1
s_mov_b32 s{sONE}, 0x3f803f80
s_mov_b32 s{sMSK}, 0xffff0000
""")
for n in (SX, SWQ, SWO, SW1, SW2, SOUT, SWS, SDBG, SB1, SB2, SKV):
    p("s_mov_b32 s%d, 0x20000" % (n + 3))
vXA = 6
p(f"""
v_lshrrev_b32 v8, 3, v1
v_and_b32 v9, 7, v1
s_lshl_b32 s{t0}, s{sW}, 14
v_lshlrev_b32 v{vXA}, 10, v8
v_lshl_add_u32 v{vXA}, v9, 4, v{vXA}
v_add_u32 v{vXA}, s{t0}, v{vXA}
""")
p("""
v_lshrrev_b32 v10, 2, v1
v_and_b32 v10, 4, v10
v_xor_b32 v10, v10, v9
v_lshlrev_b32 v10, 4, v10
""")
p(f"""
v_mul_u32_u24 v11, 3072, v8
v_add_u32 v11, v11, v10
s_mul_i32 s{t0}, s{sW}, 49152
v_add_u32 v14, s{t0}, v11
v_add_u32 v12, 1024, v14
v_add_u32 v13, 24576, v14
v_add_u32 v15, {24576 - 1024}, v14
s_mul_i32 s{t0}, s{sLO}, 98304
v_add_u32 v16, s{t0}, v11
v_add_u32 v17, {1 * (24576 - 1024)}, v16
v_add_u32 v18, {2 * (24576 - 1024)}, v16
v_add_u32 v19, {3 * (24576 - 1024)}, v16
""")
p("s_waitcnt lgkmcnt(0)")


def mk_srd(n, soff, size_expr_total):
    if soff is None:
        p("s_mov_b32 s%d, %d" % (n + 2, size_expr_total))
    else:
        p("s_add_u32 s%d, s%d, s%d" % (n, n, soff))
        p("s_addc_u32 s%d, s%d, 0" % (n + 1, n + 1))
        p("s_sub_u32 s%d, %d, s%d" % (n + 2, size_expr_total, soff))


p(f"s_lshl_b32 s{t0}, s{sRB}, 16")
mk_srd(SX, t0, 2048 * 1024)
p(f"s_lshl_b32 s{t1}, s{sJ}, 7")
mk_srd(SWQ, t1, 512 * 3072)
mk_srd(SWS, None, WS_SIZE)
sFKV, sFO, sFH, sFHH = sT[6], sT[7], sT[8], sT[9]
p(f"""
s_lshl_b32 s{sFKV}, s{sVID}, 7
s_lshl_b32 s{sFO}, s{sRB}, 7
s_lshl_b32 s{t2}, s{sJ}, 2
s_add_u32 s{sFO}, s{sFO}, s{t2}
s_add_u32 s{sFO}, s{sFO}, {WS_OF}
s_lshr_b32 s{sFH}, s{sVID}, 4
s_lshl_b32 s{sFH}, s{sFH}, 7
s_and_b32 s{t2}, s{sVID}, 15
s_lshl_b32 s{t2}, s{t2}, 2
s_add_u32 s{sFH}, s{sFH}, s{t2}
s_add_u32 s{sFHH}, s{sFH}, {WS_HHF}
s_add_u32 s{sFH}, s{sFH}, {WS_HF}
s_cmp_eq_u32 s{sLO}, 0
s_cselect_b32 s{t2}, s{sFKV}, s{sFO}
s_cselect_b32 s{t3}, s{sFH}, s{sFHH}
s_cmp_eq_u32 s{sRT}, 0
s_cselect_b32 s{t2}, s{t2}, s{t3}
s_mov_b64 exec, 1
buffer_store_dword v5, v5, {srd(SWS)}, s{t2} offen sc1
s_mov_b64 exec, -1
""")

XR = 64


def x_load(i):
    p(f"s_add_u32 s{t2}, s{sJ}, {i}")
    p(f"s_and_b32 s{t2}, s{t2}, 7")
    p(f"s_lshl_b32 s{t2}, s{t2}, 7")
    p(f"s_add_u32 s{t3}, s{t2}, 8192")
    p(f"buffer_load_dwordx4 {v(XR + i * 8, 4)}, v{vXA}, {srd(SX)}, s{t2} offen")
    p(f"buffer_load_dwordx4 {v(XR + i * 8 + 4, 4)}, v{vXA}, {srd(SX)}, s{t3} offen")


KVSLOT = [65536 + n * 16384 for n in range(6)] + [0, 16384]
QSLOT = [32768, 49152, 65536, 81920]
sW4K = 77
p(f"s_lshl_b32 s{sW4K}, s{sW}, 12")


def kv_dma(n):
    g = Prog()
    g(f"s_add_u32 s{t2}, s{sROT}, {n}")
    g(f"s_and_b32 s{t2}, s{t2}, 7")
    g(f"s_mul_i32 s{t2}, s{t2}, 196608")
    g(f"s_add_u32 m0, s{sW4K}, {KVSLOT[n]}")
    for i in range(4):
        g(f"buffer_load_dwordx4 v{12 + i}, {srd(SWQ)}, s{t2} offen offset:{i * 1024} lds", tag="kv%d" % n)
    return g.ins


def q_dma(n):
    g = Prog()
    g(f"s_add_u32 s{t2}, s{sROT}, {2 * n}")
    g(f"s_add_u32 s{t2}, s{t2}, s{sRT}")
    g(f"s_and_b32 s{t2}, s{t2}, 7")
    g(f"s_mul_i32 s{t2}, s{t2}, 196608")
    g(f"s_add_u32 m0, s{sW4K}, {QSLOT[n]}")
    for i in range(4):
        g(f"buffer_load_dwordx4 v{16 + i}, {srd(SWQ)}, s{t2} offen offset:{i * 1024} lds", tag="q%d" % n)
    return g.ins


x_load(0)
p.extend(kv_dma(0))
for i in range(1, 8):
    x_load(i)
p(f"""
s_getpc_b64 s[{SKV}:{SKV + 1}]
s_lshr_b32 s{t2}, s2, 3
s_lshl_b32 s{t2}, s{t2}, 2
s_add_u32 s{t2}, s{t2}, s{sW}
s_lshl_b32 s{t2}, s{t2}, 9
v_and_b32 v3, 3, v1
v_lshlrev_b32 v3, 7, v3
v_add_u32 v3, s{t2}, v3
""")
p(f"s_mov_b32 s{SKV + 2}, L_fallback-L_pc0")
p("L_pc0:")
p(f"buffer_load_dword v7, v3, {srd(SKV)}, 0 offen")
for n in range(1, 6):
    p.extend(kv_dma(n))

mk_srd(SWO, t1, 512 * 1024)
mk_srd(SW2, t1, 1376 * 1024)
mk_srd(SB2, t1, 1024)
p(f"s_add_u32 s{t0}, s{t0}, s{t1}")
mk_srd(SOUT, t0, 2048 * 1024)
p(f"s_lshl_b32 s{t0}, s{sT0}, 6")
mk_srd(SW1, t0, 512 * 2752)
mk_srd(SB1, t0, 2752)
mk_srd(SDBG, None, 256)
p(f"s_mov_b32 s{SKV}, s{SWS}")
p(f"s_mov_b32 s{SKV + 1}, s{SWS + 1}")
HV, OV, OK_, OQ, HK = 160, 224, 240, 248, 176
for b in range(4):
    p(f"s_cmp_ge_u32 s{sRB}, {4 - b}")
    p(f"s_cselect_b32 s{sVAL[b]}, {WS_SIZE}, 0")
    p(f"s_cselect_b32 s{t2}, s{sONE}, 0")
    for i in range(16):
        p(f"v_accvgpr_write_b32 a{HV + b * 16 + i}, s{t2}")
for i in range(16):
    p(f"v_accvgpr_write_b32 a{OV + i}, s{sONE}")
CC, CA = 208, 224
p(f"""
v_and_b32 v20, 31, v1
v_lshrrev_b32 v21, 5, v1
v_lshlrev_b32 v22, 2, v21
v_sub_u32 v22, v20, v22
v_mov_b32 v23, 0xf149f2ca
""")
for r in range(16):
    p(f"v_cmp_le_i32 vcc, {(r & 3) + 8 * (r >> 2)}, v22")
    p(f"v_cndmask_b32_e64 v{CC + r}, v23, 0, vcc")
    p(f"v_cndmask_b32 v{CA + r}, 0, v23, vcc")
p(f"""
v_xor_b32 v24, v8, v9
v_lshlrev_b32 v24, 4, v24
v_lshl_add_u32 v24, v9, 9, v24
s_lshl_b32 s{t2}, s{sRT}, 15
s_lshl_b32 s{t3}, s{sLO}, 8
s_add_u32 s{t3}, s{t3}, s{t2}
v_add_u32 v24, s{t3}, v24
""")
for e in range(4):
    p(f"""
v_or_b32 v{26 + e}, {2 * e}, v21
v_xor_b32 v{26 + e}, v{26 + e}, v20
v_lshlrev_b32 v{26 + e}, 4, v{26 + e}
v_lshl_add_u32 v{26 + e}, v21, 9, v{26 + e}
v_add_u32 v{26 + e}, s{t2}, v{26 + e}
""")
p(f"""
v_bfe_u32 v22, v1, 2, 2
v_lshrrev_b32 v23, 1, v22
v_xor_b32 v23, s{sLO}, v23
v_lshlrev_b32 v23, 6, v23
v_lshl_add_u32 v30, v22, 7, v23
v_bfe_u32 v23, v1, 4, 1
v_lshl_add_u32 v30, v23, 5, v30
v_and_b32 v25, 3, v1
v_lshl_add_u32 v30, v25, 3, v30
v_mul_u32_u24 v31, 192, v22
v_lshl_add_u32 v31, v23, 5, v31
v_lshl_add_u32 v31, v25, 3, v31
v_mul_u32_u24 v22, 768, v21
v_add_u32 v31, v31, v22
""")
p("""
v_lshl_add_u32 v32, v21, 10, v30
v_add_u32 v33, 0x10000, v32
v_add_u32 v34, 0x20000, v32
""")
stamp("setup")

ST = 36
for i in range(4):
    p(f"v_mov_b32 v{ST + i}, 0")
for i in range(8):
    for r in range(4):
        for gq in range(2):
            x = XR + i * 8 + gq * 4 + r
            p(f"v_dot2c_f32_bf16 v{ST + 2 * gq}, s{sONE}, v{x}")
            p(f"v_dot2c_f32_bf16 v{ST + 2 * gq + 1}, v{x}, v{x}")
for mod in ("quad_perm:[1,0,3,2]", "quad_perm:[2,3,0,1]", "row_half_mirror"):
    for i in range(4):
        p(f"v_add_f32_dpp v{ST + i}, v{ST + i}, v{ST + i} {mod} row_mask:0xf bank_mask:0xf")
p(f"s_mov_b32 s{t2}, {f2u(1.0 / 512)}")
p(f"s_mov_b32 s{t3}, {f2u(1e-5)}")
for gq in range(2):
    s_, ss = ST + 2 * gq, ST + 2 * gq + 1
    p(f"v_mul_f32 v{s_}, s{t2}, v{s_}")
    p(f"v_mul_f32 v{ss}, s{t2}, v{ss}")
for gq in range(2):
    s_, ss = ST + 2 * gq, ST + 2 * gq + 1
    p(f"v_fma_f32 v{ss}, -v{s_}, v{s_}, v{ss}")
for gq in range(2):
    s_, ss = ST + 2 * gq, ST + 2 * gq + 1
    p(f"v_max_f32 v{ss}, 0, v{ss}")
for gq in range(2):
    s_, ss = ST + 2 * gq, ST + 2 * gq + 1
    p(f"v_add_f32 v{ss}, s{t3}, v{ss}")
for gq in range(2):
    s_, ss = ST + 2 * gq, ST + 2 * gq + 1
    p(f"v_rsq_f32 v{ss}, v{ss}")
for gq in range(2):
    s_, ss = ST + 2 * gq, ST + 2 * gq + 1
    p(f"v_mul_f32_e64 v{s_}, -v{s_}, v{ss}")
TMP = 40
for i in range(8):
    p(f"s_sub_u32 s{t2}, s{sJ}, s{sROT}")
    p(f"s_add_u32 s{t2}, s{t2}, {i}")
    p(f"s_and_b32 s{t2}, s{t2}, 7")
    p(f"s_lshl_b32 s{t2}, s{t2}, 12")
    p(f"v_add_u32 v25, s{t2}, v24")
    for gq in range(2):
        src = XR + i * 8 + gq * 4
        dst = src if i else 48 + gq * 4
        pr = v(ST + 2 * gq, 2)
        for r in range(4):
            p(f"v_lshlrev_b32 v{TMP + 2 * r}, 16, v{src + r}")
            p(f"v_and_b32 v{TMP + 2 * r + 1}, s{sMSK}, v{src + r}")
        for r in range(4):
            p(f"v_pk_fma_f32 {v(TMP + 2 * r, 2)}, {v(TMP + 2 * r, 2)}, {pr}, {pr} op_sel:[0,1,0] op_sel_hi:[1,1,0]")
        for r in range(4):
            p(f"v_cvt_pk_bf16_f32 v{dst + r}, v{TMP + 2 * r}, v{TMP + 2 * r + 1}")
        p(f"ds_write_b128 v25, {v(dst, 4)} offset:{gq * 128}")
p.wait_vm("kv1")
p.wait_ds()
p("s_barrier")
stamp("ln")
p(f"""
s_getreg_b32 s{t2}, hwreg(HW_REG_XCC_ID, 0, 4)
s_lshl_b32 s{t2}, s{t2}, 1
s_or_b32 s{t2}, s{t2}, 1
v_mov_b32 v3, s{t2}
s_cmp_eq_u32 s{sW}, 0
s_cbranch_scc0 L_nodbg
""")
p("s_mov_b64 exec, 1", cond=True)
p(f"buffer_store_byte v3, v5, {srd(SDBG)}, s{sVID} offen sc1", cond=True)
p("s_mov_b64 exec, -1", cond=True)
p("L_nodbg:")

ACK, ACV, ACQ = 128, 144, 160
WR = 128


def xn_read(i):
    return G(f"ds_read_b128 {a(4 * i, 4)}, v{26 + (i & 3)} offset:{i * 1024}")


def tr_addr(off):
    return "v%d offset:%d" % (32 + (off >> 16), off & 0xffff)


def kv_read(ks):
    base = KVSLOT[ks >> 2] + (ks & 3) * 4096
    st = WR + (ks & 3) * 8
    g = []
    for part in range(2):
        for h in range(2):
            g += G(f"ds_read_b64_tr_b16 {a(st + part * 4 + h * 2, 2)}, {tr_addr(base + part * 2048 + h * 512)}")
    return g


def q_read(ks):
    base = QSLOT[ks >> 3] + (ks & 7) * 2048
    st = WR + (ks & 7) * 4
    g = []
    for h in range(2):
        g += G(f"ds_read_b64_tr_b16 {a(st + h * 2, 2)}, {tr_addr(base + h * 512)}")
    return g


LOOK = 2
for i in range(4):
    p.extend(xn_read(i))
for ks in range(LOOK):
    p.extend(kv_read(ks))
for ks in range(32):
    nk = ks + LOOK
    if nk < 32:
        if nk == 8:
            p.wait_vm("kv3")
            p.wait_ds()
            p("s_barrier")
            p.extend(kv_dma(6))
            p.extend(kv_dma(7))
            p.extend(q_dma(0))
            p.extend(q_dma(1))
        if nk == 16:
            p.wait_vm("kv5")
            p("s_barrier")
            p.extend(q_dma(2))
            p.extend(q_dma(3))
        if nk == 24:
            p.wait_vm("kv7")
            p("s_barrier")
        p.extend(kv_read(nk))
    if ks < 6:
        for i in range(4 + ks * 5, min(32, 4 + ks * 5 + 5)):
            p.extend(xn_read(i))
    st = WR + (ks & 3) * 8
    p(mfma(v(ACK, 16), a(st, 4), a(4 * ks, 4), v(ACK, 16) if ks else "0"))
    p(mfma(v(ACV, 16), a(4 * ks, 4), a(st + 4, 4), v(ACV, 16) if ks else "0"))
stamp("kv")
p.wait_vm("q1")
p("s_barrier")
for ks in range(4):
    p.extend(q_read(ks))
PK = 80
EXC = 98304
p(f"""
s_lshl_b32 s{t2}, s{sRB}, 1
s_add_u32 s{t2}, s{t2}, s{sRT}
s_lshl_b32 s{t2}, s{t2}, 4
s_lshl_b32 s{t3}, s{sJ}, 1
s_add_u32 s{t2}, s{t2}, s{t3}
s_add_u32 s{t2}, s{t2}, s{sLO}
s_lshl_b32 s{t2}, s{t2}, 12
s_add_u32 s{t2}, s{t2}, {WS_KV}
v_and_b32 v35, 15, v1
v_lshlrev_b32 v35, 4, v35
v_lshl_add_u32 v35, v21, 8, v35
v_bfe_u32 v22, v1, 4, 1
v_lshl_add_u32 v40, v22, 11, v35
s_mul_i32 s{t3}, s{sW}, 6144
s_add_u32 s{t3}, s{t3}, {EXC}
v_add_u32 v41, s{t3}, v2
v_mul_u32_u24 v42, 3072, v22
v_add3_u32 v42, v42, v35, s{t3}
""")
for i in range(8):
    p(f"v_cvt_pk_bf16_f32 v{PK + i}, v{ACK + 2 * i}, v{ACK + 2 * i + 1}")
p(f"buffer_store_dwordx4 {v(PK, 4)}, v2, {srd(SWS)}, s{t2} offen sc1", tag="kvst")
p(f"buffer_store_dwordx4 {v(PK + 4, 4)}, v2, {srd(SWS)}, s{t2} offen offset:2048 sc1", tag="kvst")
for i in range(8):
    p(f"v_cvt_pk_bf16_f32 v{PK + 8 + i}, v{ACV + 2 * i}, v{ACV + 2 * i + 1}")
p(f"buffer_store_dwordx4 {v(PK + 8, 4)}, v40, {srd(SWS)}, s{t2} offen offset:1024 sc1", tag="kvst")
p(f"buffer_store_dwordx4 {v(PK + 12, 4)}, v40, {srd(SWS)}, s{t2} offen offset:1536 sc1", tag="kvst")
p(f"ds_write_b128 v41, {v(PK, 4)} offset:1024")
p(f"ds_write_b128 v41, {v(PK + 4, 4)} offset:{3072 + 1024}")
p(f"ds_write_b128 v42, {v(PK + 8, 4)} offset:2048")
p(f"ds_write_b128 v42, {v(PK + 12, 4)} offset:{2048 + 512}")
XRES = 122880
p(f"""
v_lshrrev_b32 v43, 1, v8
v_xor_b32 v44, v43, v9
v_xor_b32 v45, 4, v44
v_lshlrev_b32 v44, 4, v44
v_lshlrev_b32 v45, 4, v45
v_lshl_add_u32 v44, v8, 7, v44
v_lshl_add_u32 v45, v8, 7, v45
s_lshl_b32 s{t3}, s{sW}, 11
s_add_u32 s{t3}, s{t3}, {XRES}
v_add_u32 v44, s{t3}, v44
v_add_u32 v45, s{t3}, v45
ds_write_b128 v44, {v(XR, 4)}
ds_write_b128 v45, {v(XR + 4, 4)} offset:1024
""")

for ks in range(32):
    nk = ks + 4
    if nk == 16:
        p.wait_vm("kvst")
        p("s_barrier")
        flag_store(sFKV)
    if nk < 32:
        p.extend(q_read(nk))
    st = WR + (ks & 7) * 4
    p(mfma(v(ACQ, 16), a(st, 4), a(4 * ks, 4), v(ACQ, 16) if ks else "0"))
p(f"s_mov_b32 s{sC[0]}, {f2u(0.25 * math.log2(math.e))}")
for i in range(8):
    p(f"v_pk_mul_f32 {v(ACQ + 2 * i, 2)}, {v(ACQ + 2 * i, 2)}, s[{sC[0]}:{sC[1]}] op_sel_hi:[1,0]")
for i in range(8):
    p(f"v_cvt_pk_bf16_f32 v{PK + i}, v{ACQ + 2 * i}, v{ACQ + 2 * i + 1}")
p(f"ds_write_b128 v41, {v(PK, 4)}")
p(f"ds_write_b128 v41, {v(PK + 4, 4)} offset:3072")
p(f"""
s_mul_i32 s{t3}, s{sW}, 3072
s_add_u32 s{t3}, s{t3}, {EXC}
v_add_u32 v41, s{t3}, v2
v_add_u32 v42, s{t3}, v35
v_lshrrev_b32 v43, 1, v20
v_and_b32 v43, 7, v43
s_lshl_b32 s{t2}, s{sLO}, 2
v_xor_b32 v43, s{t2}, v43
s_lshl_b32 s{t3}, s{sRT}, 12
s_add_u32 s{t3}, s{t3}, {XRES}
v_lshlrev_b32 v44, 7, v20
v_lshl_add_u32 v44, v21, 3, v44
v_add_u32 v44, s{t3}, v44
""")
for u in range(4):
    p(f"v_xor_b32 v{46 + u}, {u}, v43")
    p(f"v_lshl_add_u32 v{46 + u}, v{46 + u}, 4, v44")
p.wait_ds()
p("s_barrier")
stamp("q")
for rt in range(2):
    p(f"ds_read_b128 {a(OQ + 4 * rt, 4)}, v41 offset:{rt * 12288}")
    p(f"ds_read_b128 {a(OK_ + 4 * rt, 4)}, v41 offset:{rt * 12288 + 1024}")
p("s_mov_b32 exec_lo, 0xffff")
p("s_mov_b32 exec_hi, 0xffff")
for rt in range(2):
    for u in range(2):
        p(f"ds_read_b128 {a(OV + 8 * rt + 4 * u, 4)}, v42 offset:{rt * 12288 + 2048 + u * 512}")
p("s_mov_b64 exec, -1")
XS = 56
for u in range(4):
    p(f"ds_read_b64 {v(XS + 2 * u, 2)}, v{46 + u}")
p(f"""
s_and_b32 s{t2}, s{sVID}, 0xf0
v_add_u32 v40, s{t2}, v1
v_and_b32 v43, 3, v1
v_lshlrev_b32 v43, 3, v43
s_sub_u32 s{t3}, s{sVID}, 32
v_add_u32 v43, s{t3}, v43
v_mov_b32 v44, s{sVID}
v_cmp_gt_i32 vcc, 0, v43
v_cndmask_b32 v43, v43, v44, vcc
v_cmp_gt_u32 vcc, 16, v1
v_cndmask_b32 v40, v43, v40, vcc
v_lshlrev_b32 v43, 7, v43
""")
p.wait_ds()
p("s_barrier")
poll(40, SDBG, "buffer_load_ubyte")
poll(43, SWS, "buffer_load_dword")
stamp("kvpoll")
p(f"""
s_lshl_b32 s{t4}, s{sRB}, 6
s_lshl_b32 s{t3}, s{sJ}, 2
s_add_u32 s{t4}, s{t4}, s{t3}
s_add_u32 s{t4}, s{t4}, s{sW}
s_lshl_b32 s{t4}, s{t4}, 11
s_add_u32 s{t4}, s{t4}, {WS_KV - 8 * 65536}
""")
for i in range(7, -1, -1):
    p(f"s_mov_b32 s{SKV + 2}, s{sVAL[i >> 1]}")
    p(f"s_add_u32 s{t2}, s{t4}, {i * 65536}")
    p(f"buffer_load_dwordx4 {v(HK + 4 * i, 4)}, v2, {srd(SKV)}, s{t2} offen sc1")
    p("s_mov_b32 exec_lo, 0xffff")
    p("s_mov_b32 exec_hi, 0xffff")
    p(f"buffer_load_dwordx4 {a(HV + 8 * i, 4)}, v35, {srd(SKV)}, s{t2} offen offset:1024 sc1")
    p(f"buffer_load_dwordx4 {a(HV + 8 * i + 4, 4)}, v35, {srd(SKV)}, s{t2} offen offset:1536 sc1")
    p("s_mov_b64 exec, -1")
p(f"""
v_lshl_add_u32 v12, v8, 10, v10
v_add_u32 v13, {1 * 7168}, v12
v_add_u32 v14, {2 * 7168}, v12
v_add_u32 v15, {3 * 7168}, v12
""")
for i in range(3):
    p(f"""
v_add_u32 v22, {64 * i}, v1
v_mul_u32_u24 v23, 0x5556, v22
v_lshrrev_b32 v23, 18, v23
v_mul_u32_u24 v25, 12, v23
v_sub_u32 v22, v22, v25
v_mul_u32_u24 v23, 2752, v23
v_lshl_add_u32 v{16 + i}, v22, 4, v23
""")
    if i:
        p(f"v_subrev_u32 v{16 + i}, {1024 * i}, v{16 + i}")
WOL = 98304
W1L = 0


def wo_dma(n):
    g = Prog()
    g(f"s_add_u32 s{t2}, s{sROT}, {n}")
    g(f"s_and_b32 s{t2}, s{t2}, 3")
    g(f"s_lshl_b32 s{t2}, s{t2}, 14")
    g(f"s_add_u32 s{t2}, s{t2}, s{sW4K}")
    g(f"s_add_u32 m0, s{t2}, {WOL}")
    g(f"s_lshl_b32 s{t2}, s{t2}, 3")
    for i in range(4):
        g(f"buffer_load_dwordx4 v{12 + i}, {srd(SWO)}, s{t2} offen offset:{i * 1024} lds", tag="wo")
    return g.ins


def w1_dma(n):
    g = Prog()
    g(f"s_add_u32 s{t2}, s{sROT}, {n}")
    g(f"s_and_b32 s{t2}, s{t2}, 7")
    g(f"s_lshl_b32 s{t2}, s{t2}, 2")
    g(f"s_add_u32 s{t2}, s{t2}, s{sW}")
    g(f"s_mul_i32 m0, s{t2}, 3072")
    g(f"s_mul_i32 s{t2}, s{t2}, 44032")
    for i in range(3):
        g(f"buffer_load_dwordx4 v{16 + i}, {srd(SW1)}, s{t2} offen offset:{i * 1024} lds", tag="w1")
    return g.ins


B2R = 48
p(f"""
v_lshlrev_b32 v22, 3, v21
s_lshl_b32 s{t2}, s{sLO}, 6
""")
for u in range(4):
    p(f"buffer_load_dwordx2 {v(B2R + 2 * u, 2)}, v22, {srd(SB2)}, s{t2} offen offset:{16 * u}")
sTW = t5
p(f"""
s_min_u32 s{sTW}, s{sW}, 2
s_lshl_b32 s{t2}, s{sTW}, 6
v_lshlrev_b32 v22, 1, v20
buffer_load_ushort v19, v22, {srd(SB1)}, s{t2} offen
""")

SB = [80, 96]
PB = [112, 120]
OA = [128, 144]


def kfrag(t):
    return a(OK_ + 4 * t[1], 4) if t[0] == "o" else v(HK + 4 * t[1], 4)


def vfrag(t, u):
    return a((OV if t[0] == "o" else HV) + 8 * t[1] + 4 * u, 4)


steps = [(0, ("o", 0), CC), (1, ("o", 0), None), (1, ("o", 1), CC)]
for i in range(7, 1, -1):
    steps += [(0, ("h", i), None), (1, ("h", i), None)]
steps += [(0, ("h", 1), None), (1, ("h", 1), CA), (0, ("h", 0), CA)]


def s_mfma(n):
    q, t, c = steps[n]
    return mfma(v(SB[n & 1], 16), kfrag(t), a(OQ + 4 * q, 4), v(c, 16) if c else "0")


fill = [wo_dma(n) for n in range(4)] + [w1_dma(n) for n in range(8)]
p(s_mfma(0))
seen = set()
for n in range(18):
    q, t, c = steps[n]
    S, P_ = SB[n & 1], PB[n & 1]
    if n + 1 < 18:
        p(s_mfma(n + 1))
    if n < len(fill):
        p.extend(fill[n])
    for u in range(2):
        for r in range(8):
            p(f"v_exp_f32 v{S + 8 * u + r}, v{S + 8 * u + r}")
        for r in range(4):
            p(f"v_cvt_pk_bf16_f32 v{P_ + 4 * u + r}, v{S + 8 * u + 2 * r}, v{S + 8 * u + 2 * r + 1}")
        p(mfma(v(OA[q], 16), vfrag(t, u), v(P_ + 4 * u, 4), v(OA[q], 16) if q in seen else "0"))
        seen.add(q)
p(f"""
s_mov_b32 s{t2}, {f2u(2.0 ** -64)}
v_mov_b32 v22, {f2u(2.0 ** 64)}
v_med3_f32 v23, v{OA[0] + 8}, s{t2}, v22
v_med3_f32 v25, v{OA[1] + 8}, s{t2}, v22
v_cmp_neq_f32 vcc, v23, v{OA[0] + 8}
v_cmp_neq_f32 s[4:5], v25, v{OA[1] + 8}
s_or_b64 vcc, vcc, s[4:5]
""")
if FORCE_FB:
    p("s_branch L_fallback")
else:
    p("s_cbranch_vccnz L_fallback")
p("L_fbret:")
p(f"""
s_lshl_b32 s{t2}, s{sRB}, 6
s_lshl_b32 s{t3}, s{sJ}, 2
s_add_u32 s{t2}, s{t2}, s{t3}
s_add_u32 s{t2}, s{t2}, s{sW}
s_lshl_b32 s{t2}, s{t2}, 10
s_add_u32 s{t2}, s{t2}, {WS_O}
s_add_u32 s{t3}, s{t2}, 32768
""")
for q in range(2):
    p(f"v_rcp_f32 v{OA[q] + 8}, v{OA[q] + 8}")
for q in range(2):
    for i in range(4):
        p(f"v_pk_mul_f32 {v(OA[q] + 2 * i, 2)}, {v(OA[q] + 2 * i, 2)}, {v(OA[q] + 8, 2)} op_sel_hi:[1,0]")
    for i in range(4):
        p(f"v_cvt_pk_bf16_f32 v{PB[q] + i}, v{OA[q] + 2 * i}, v{OA[q] + 2 * i + 1}")
    p(f"buffer_store_dwordx4 {v(PB[q], 4)}, v2, {srd(SWS)}, s{[t2, t3][q]} offen sc1", tag="ost")
stamp("attn")
HR = 240
for i in range(8):
    p(f"v_lshlrev_b32 v{HR + 2 * i}, 16, v{XS + i}")
    p(f"v_and_b32 v{HR + 2 * i + 1}, s{sMSK}, v{XS + i}")
p(f"""
v_lshl_add_u32 v30, v21, 9, v30
s_lshl_b32 s{t2}, s{sLO}, 15
s_add_u32 s{t2}, s{t2}, {WOL}
v_add_u32 v32, s{t2}, v30
v_xor_b32 v33, 64, v32
v_and_b32 v40, 7, v1
v_lshlrev_b32 v40, 2, v40
s_and_b32 s{t2}, s{sFO}, 0xff80
v_add_u32 v40, s{t2}, v40
""")
p.wait_vm("ost")
p("s_barrier")
flag_store(sFO)
for ks in range(16):
    for b in range(2):
        for h in range(2):
            p(f"ds_read_b64_tr_b16 {a((ks * 2 + b) * 4 + 2 * h, 2)}, v{32 + b} offset:{ks * 2048 + h * 1024}")
p.wait_ds()
p("s_barrier")
poll(40, SWS, "buffer_load_dword")
stamp("opoll")

OF = 64
p(f"""
s_lshl_b32 s{t4}, s{sRB}, 2
s_add_u32 s{t4}, s{t4}, s{sW}
s_lshl_b32 s{t4}, s{t4}, 14
s_add_u32 s{t4}, s{t4}, {WS_O}
""")
for ks in range(16):
    if ks and ks % 4 == 0:
        p(f"s_add_u32 s{t4}, s{t4}, 4096")
    p(f"buffer_load_dwordx4 {v(OF + 4 * ks, 4)}, v2, {srd(SWS)}, s{t4} offen offset:{(ks & 3) * 1024} sc1")
WIN = 98304
EX3 = 147456
sK0, sWIN = 6, 7
p(f"""
s_mul_i32 s{sK0}, s{sW}, 22
s_mul_i32 s{t2}, s{sRT}, s{sW}
s_sub_u32 s{t2}, s{t2}, s{sRT}
s_sub_u32 s{sK0}, s{sK0}, s{t2}
s_mul_i32 s{sWIN}, s{sW}, 12288
s_add_u32 s{sWIN}, s{sWIN}, {WIN}
v_add_u32 v32, s{sWIN}, v30
v_xor_b32 v33, 64, v32
""")


def w2_dma(gi):
    g = Prog()
    g(f"s_add_u32 s{t2}, s{sK0}, {2 * gi}")
    g(f"s_lshl_b32 s{t2}, s{t2}, 14")
    g(f"s_add_u32 m0, s{sWIN}, {(gi % 3) * 4096}")
    for i in range(4):
        g(f"buffer_load_dwordx4 v{12 + i}, {srd(SW2)}, s{t2} offen offset:{i * 1024} lds", tag="w2_%d" % gi)
    return g.ins


def w2_read(gi):
    g = Prog()
    g.wait_vm("w2_%d" % gi)
    for s_ in range(2):
        for b in range(2):
            for h in range(2):
                g(f"ds_read_b64_tr_b16 {a(((2 * gi + s_) * 2 + b) * 4 + 2 * h, 2)}, v{32 + b} offset:{(gi % 3) * 4096 + s_ * 2048 + h * 1024}", tag="w2r")
    return g.ins


for gi in range(3):
    p.extend(w2_dma(gi))
KEEP, SEND, RECV = 128, 144, 160
for ks in range(16):
    p(mfma(v(SEND, 16), a((ks * 2 + 1) * 4, 4), v(OF + 4 * ks, 4), v(SEND, 16) if ks else "0"))
    p(mfma(v(KEEP, 16), a((ks * 2) * 4, 4), v(OF + 4 * ks, 4), v(KEEP, 16) if ks else v(HR, 16)))
p(f"""
s_add_u32 s{t2}, s{sW4K}, {EX3}
v_add_u32 v41, s{t2}, v2
v_xor_b32 v42, 4096, v41
s_lshl_b32 s{t2}, s{sRB}, 1
s_add_u32 s{t2}, s{t2}, s{sRT}
s_lshl_b32 s{t2}, s{t2}, 4
s_lshl_b32 s{t3}, s{sJ}, 1
s_add_u32 s{t2}, s{t2}, s{t3}
s_add_u32 s{t2}, s{t2}, s{sLO}
s_lshl_b32 s{t2}, s{t2}, 11
s_add_u32 s{t2}, s{t2}, {WS_H}
""")
for i in range(4):
    p(f"ds_write_b128 v41, {v(SEND + 4 * i, 4)} offset:{i * 1024}")
p.wait_ds()
p("s_barrier")
for i in range(4):
    p(f"ds_read_b128 {v(RECV + 4 * i, 4)}, v42 offset:{i * 1024}")
for i in range(8):
    p(f"v_pk_add_f32 {v(HR + 2 * i, 2)}, {v(KEEP + 2 * i, 2)}, {v(RECV + 2 * i, 2)}")
for i in range(8):
    p(f"v_cvt_pk_bf16_f32 v{PK + i}, v{HR + 2 * i}, v{HR + 2 * i + 1}")
for u in range(2):
    p(f"buffer_store_dwordx4 {v(PK + 4 * u, 4)}, v2, {srd(SWS)}, s{t2} offen offset:{u * 1024} sc1", tag="hst")
stamp("wo")
for i in range(8):
    p(f"v_lshlrev_b32 v{TMP}, 16, v{B2R + i}")
    p(f"v_and_b32 v{TMP + 1}, s{sMSK}, v{B2R + i}")
    p(f"v_pk_add_f32 {v(HR + 2 * i, 2)}, {v(HR + 2 * i, 2)}, {v(TMP, 2)}")
p(f"""
v_and_b32 v40, 15, v1
v_lshlrev_b32 v40, 2, v40
s_and_b32 s{t2}, s{sFH}, 0xff80
v_add_u32 v40, s{t2}, v40
""")
p.wait_vm("hst")
p("s_barrier")
flag_store(sFH)
for gi in range(3):
    p.extend(w2_read(gi))
p(f"""
s_lshl_b32 s{t2}, s{sTW}, 6
v_add_u32 v34, s{t2}, v31
v_add_u32 v35, 0x10000, v34
v_mov_b32 v36, 0
v_mov_b32 v37, 0
""")


def w1off(vb, off):
    return "v%d offset:%d" % (vb + (off >> 16), off & 0xffff)


CSR = 64
for ks0 in range(0, 32, 4):
    for ks in range(ks0, ks0 + 4):
        for h in range(2):
            p(f"ds_read_b64_tr_b16 {v(CSR + 4 * ks + 2 * h, 2)}, {w1off(34, ks * 3072 + h * 1536)}")
    if ks0:
        for r in range(16):
            p(f"v_dot2c_f32_bf16 v{36 + (r & 1)}, s{sONE}, v{CSR + 4 * (ks0 - 4) + r}")
for r in range(16):
    p(f"v_dot2c_f32_bf16 v{36 + (r & 1)}, s{sONE}, v{CSR + 4 * 28 + r}")
CSL = EX3
p(f"""
v_add_f32 v36, v36, v37
v_mov_b32 v37, v36
v_permlane32_swap_b32 v36, v37
v_add_f32 v36, v36, v37
v_lshlrev_b32 v19, 16, v19
v_cmp_gt_u32 vcc, 32, v1
v_cndmask_b32 v36, v19, v36, vcc
v_lshlrev_b32 v37, 2, v20
v_lshl_add_u32 v37, v21, 9, v37
s_lshl_b32 s{t2}, s{sTW}, 7
s_add_u32 s{t2}, s{t2}, {CSL}
v_add_u32 v37, s{t2}, v37
ds_write_b32 v37, v36
""")
p.wait_ds()
poll(40, SWS, "buffer_load_dword")
stamp("hpoll")

HF = 64
p(f"""
s_lshr_b32 s{t4}, s{sRB}, 1
s_lshl_b32 s{t4}, s{t4}, 2
s_add_u32 s{t4}, s{t4}, s{sW}
s_mul_i32 s{t0}, s{t4}, 86
s_lshl_b32 s{t4}, s{t4}, 15
s_add_u32 s{t4}, s{t4}, {WS_H}
""")
for ks in range(32):
    if ks and ks % 4 == 0:
        p(f"s_add_u32 s{t4}, s{t4}, 4096")
    p(f"buffer_load_dwordx4 {v(HF + 4 * ks, 4)}, v2, {srd(SWS)}, s{t4} offen offset:{(ks & 3) * 1024} sc1")
for gi in range(3, 6):
    p.extend(w2_dma(gi))
p("""
v_mov_b32 v34, v31
v_add_u32 v35, 0x10000, v31
v_mov_b32 v36, 0
v_mov_b32 v37, 0
v_mov_b32 v38, 0
v_mov_b32 v39, 0
""")
W1R = 176
AC4 = 192


def w1_read(ks):
    g = []
    for t in range(3):
        for h in range(2):
            g += G(f"ds_read_b64_tr_b16 {a(W1R + (ks & 3) * 12 + t * 4 + 2 * h, 2)}, {w1off(34, ks * 3072 + t * 64 + h * 1536)}")
    return g


p.extend(w1_read(0))
p.extend(w1_read(1))
for ks in range(32):
    rd = w1_read(ks + 2) if ks + 2 < 32 else []
    for t in range(3):
        p(mfma(v(AC4 + 16 * t, 16), a(W1R + (ks & 3) * 12 + t * 4, 4), v(HF + 4 * ks, 4), v(AC4 + 16 * t, 16) if ks else "0"))
        p.extend(rd[2 * t:2 * t + 2])
        for r in ([0], [1, 2], [3])[t]:
            x = HF + 4 * ks + r
            p(f"v_dot2c_f32_bf16 v{36 + (r & 1)}, s{sONE}, v{x}")
            p(f"v_dot2c_f32_bf16 v{38 + (r & 1)}, v{x}, v{x}")
stamp("w1")
for gi in range(3, 6):
    p.extend(w2_read(gi))
p.wait_ds()
for gi in range(6, 9):
    p.extend(w2_dma(gi))
p("s_barrier")
p(f"""
s_mov_b32 s{t2}, {f2u(1.0 / 512)}
s_mov_b32 s{t3}, {f2u(1e-5)}
v_add_f32 v36, v36, v37
v_add_f32 v38, v38, v39
v_mov_b32 v37, v36
v_mov_b32 v39, v38
v_permlane32_swap_b32 v36, v37
v_permlane32_swap_b32 v38, v39
v_add_f32 v36, v36, v37
v_add_f32 v38, v38, v39
v_mul_f32 v36, s{t2}, v36
v_mul_f32 v38, s{t2}, v38
v_fma_f32 v38, -v36, v36, v38
v_max_f32 v38, 0, v38
v_add_f32 v39, s{t3}, v38
v_rsq_f32 v39, v39
v_mul_f32 v38, v38, v39
v_fma_f32 v38, v38, v39, s{t3}
v_rsq_f32 v38, v38
v_mul_f32 v37, v38, v39
v_mul_f32_e64 v36, -v36, v37
v_lshlrev_b32 v41, 4, v21
v_add_u32 v41, {CSL}, v41
""")
c1 = -2.0 * math.sqrt(2.0 / math.pi) * math.log2(math.e)
p(f"""
s_mov_b32 s{sC[0]}, {f2u(c1 * 0.044715)}
v_mov_b32 v42, {f2u(c1)}
s_lshl_b32 s{t2}, s{sT0}, 1
s_add_u32 s{t0}, s{t0}, s{t2}
s_lshl_b32 s{t0}, s{t0}, 10
s_add_u32 s{t0}, s{t0}, {WS_HH}
s_add_u32 s{t1}, s{t0}, 4096
""")
CS_, B1_, E_ = 64, 112, 160
for t in range(3):
    for u in range(4):
        p(f"ds_read_b128 {v(CS_ + 16 * t + 4 * u, 4)}, v41 offset:{t * 128 + u * 32}")
        p(f"ds_read_b128 {v(B1_ + 16 * t + 4 * u, 4)}, v41 offset:{512 + t * 128 + u * 32}")
for t in range(3):
    Z = AC4 + 16 * t
    for i in range(8):
        b_ = v(B1_ + 16 * t + 2 * i, 2)
        p(f"v_pk_fma_f32 {b_}, {v(CS_ + 16 * t + 2 * i, 2)}, v[36:37], {b_} op_sel_hi:[1,0,1]")
    for i in range(8):
        z = v(Z + 2 * i, 2)
        p(f"v_pk_fma_f32 {z}, {z}, v[36:37], {v(B1_ + 16 * t + 2 * i, 2)} op_sel:[0,1,0] op_sel_hi:[1,1,1]")
    for i in range(8):
        p(f"v_pk_mul_f32 {v(E_ + 2 * i, 2)}, {v(Z + 2 * i, 2)}, {v(Z + 2 * i, 2)}")
    for i in range(8):
        e = v(E_ + 2 * i, 2)
        p(f"v_pk_fma_f32 {e}, {e}, s[{sC[0]}:{sC[1]}], v[42:43] op_sel_hi:[1,0,0]")
    for i in range(8):
        e = v(E_ + 2 * i, 2)
        p(f"v_pk_mul_f32 {e}, {e}, {v(Z + 2 * i, 2)}")
    for i in range(16):
        p(f"v_exp_f32 v{E_ + i}, v{E_ + i}")
    for i in range(8):
        e = v(E_ + 2 * i, 2)
        p(f"v_pk_add_f32 {e}, {e}, 1.0 op_sel_hi:[1,0]")
    for i in range(16):
        p(f"v_rcp_f32 v{E_ + i}, v{E_ + i}")
    for i in range(8):
        e = v(E_ + 2 * i, 2)
        p(f"v_pk_mul_f32 {e}, {e}, {v(Z + 2 * i, 2)}")
    PKD = CS_ + 16 * t
    for i in range(8):
        p(f"v_cvt_pk_bf16_f32 v{PKD + i}, v{E_ + 2 * i}, v{E_ + 2 * i + 1}")
    for u in range(2):
        f = 2 * t + u
        p(f"buffer_store_dwordx4 {v(PKD + 4 * u, 4)}, v2, {srd(SWS)}, s{[t0, t1][f >> 2]} offen offset:{(f & 3) * 1024} sc1", tag="hhst")
    if t == 1:
        for gi in range(6, 9):
            p.extend(w2_read(gi))
        p.wait_ds()
        for gi in range(9, 11):
            p.extend(w2_dma(gi))
stamp("gelu")
p(f"v_add_u32 v40, {WS_HHF - WS_HF}, v40")
p.wait_vm("hhst")
p("s_barrier")
flag_store(sFHH)
for gi in range(9, 11):
    p.extend(w2_read(gi))
p.wait_ds()
poll(40, SWS, "buffer_load_dword")
stamp("hhpoll")

slots = list(range(64, 192, 4)) + list(range(208, 240, 4)) + list(range(48, 64, 4))
order = list(range(1, 22)) + [0]
p(f"""
s_lshl_b32 s{t0}, s{sRB}, 1
s_add_u32 s{t0}, s{t0}, s{sRT}
s_xor_b32 s{t1}, s{t0}, 1
s_mul_i32 s{t0}, s{t0}, 86
s_mul_i32 s{t1}, s{t1}, 86
s_add_u32 s{t0}, s{t0}, s{sK0}
s_add_u32 s{t1}, s{t1}, s{sK0}
s_lshl_b32 s{t0}, s{t0}, 10
s_lshl_b32 s{t1}, s{t1}, 10
s_add_u32 s{t0}, s{t0}, {WS_HH}
s_add_u32 s{t1}, s{t1}, {WS_HH}
""")
AF = {}
cur = None
for n, s_ in enumerate(order):
    if cur != s_ >> 2:
        cur = s_ >> 2
        p(f"s_add_u32 s{t2}, s{t0}, {cur * 4096}")
        p(f"s_add_u32 s{t3}, s{t1}, {cur * 4096}")
    for b in range(2):
        AF[(s_, b)] = slots[2 * n + b]
        p(f"buffer_load_dwordx4 {v(slots[2 * n + b], 4)}, v2, {srd(SWS)}, s{[t2, t3][b]} offen offset:{(s_ & 3) * 1024} sc1")
AC5 = [v(192, 16), a(176, 16), a(192, 16), a(208, 16)]
for n, s_ in enumerate(order):
    cond = s_ == 0
    if cond:
        p("s_waitcnt vmcnt(0)")
        p(f"s_cmp_eq_u32 s{sRT}, 0")
        p("s_cbranch_scc0 L_skipk")
    for i in range(4):
        C = AC5[i] if n else (v(HR, 16) if i == 0 else "0")
        p(mfma(AC5[i], a((s_ * 2 + (i & 1)) * 4, 4), v(AF[(s_, i >> 1)], 4), C), cond=cond)
    if cond:
        p("L_skipk:")
stamp("w2")
p(f"""
s_mul_i32 s{t2}, s{sW}, 12288
v_add_u32 v41, s{t2}, v2
""")
for i in range(1, 4):
    p(f"s_xor_b32 s{t2}, s{sW}, {i}")
    p(f"s_mul_i32 s{t2}, s{t2}, 12288")
    p(f"v_add_u32 v42, s{t2}, v2")
    for q in range(4):
        p(f"ds_write_b128 v42, {a(176 + 16 * (i - 1) + 4 * q, 4)} offset:{(i - 1) * 4096 + q * 1024}")
p(f"""
v_lshlrev_b32 v43, 10, v20
v_lshl_add_u32 v43, v21, 4, v43
s_lshl_b32 s{t2}, s{sRT}, 15
s_lshl_b32 s{t3}, s{sLO}, 6
s_add_u32 s{t2}, s{t2}, s{t3}
""")
p.wait_ds()
p("s_barrier")
for q in range(4):
    for i in range(3):
        p(f"ds_read_b128 {v(64 + 16 * i + 4 * q, 4)}, v41 offset:{i * 4096 + q * 1024}")
for q in range(4):
    for i in range(3):
        for e in range(2):
            d = v(192 + 4 * q + 2 * e, 2)
            p(f"v_pk_add_f32 {d}, {d}, {v(64 + 16 * i + 4 * q + 2 * e, 2)}")
for i in range(8):
    p(f"v_cvt_pk_bf16_f32 v{112 + i}, v{192 + 2 * i}, v{192 + 2 * i + 1}")
for u in range(2):
    p(f"v_permlane32_swap_b32 v{112 + 4 * u}, v{112 + 4 * u + 2}")
    p(f"v_permlane32_swap_b32 v{112 + 4 * u + 1}, v{112 + 4 * u + 3}")
    p(f"buffer_store_dwordx4 {v(112 + 4 * u, 4)}, v43, {srd(SOUT)}, s{t2} offen offset:{32 * u}")
if SPINAT == "end":
    stamp("end")
if STAMPS:
    p("s_waitcnt vmcnt(0)")
    stamp("end")
    p("s_memrealtime s[4:5]")
    p("s_waitcnt lgkmcnt(0)")
    p(f"s_mov_b32 s{sSTMP + 1}, s4")
    for i in range(18):
        p(f"v_writelane_b32 v3, s{sSTMP + i}, {i}")
    p(f"""
s_lshl_b32 s{t2}, s2, 2
s_add_u32 s{t2}, s{t2}, s{sW}
s_lshl_b32 s{t2}, s{t2}, 7
s_add_u32 s{t2}, s{t2}, {WS_ST}
v_lshlrev_b32 v22, 2, v1
s_mov_b64 exec, 0x3ffff
buffer_store_dword v3, v22, {srd(SWS)}, s{t2} offen
""")
p("s_endpgm")

p("L_fallback:")
p("s_nop 15")
MX = 22
for q in range(2):
    mine = [(t, c) for (qq, t, c) in steps if qq == q]
    p(f"v_mov_b32 v{MX}, 0xff7fffff")
    for t, c in mine:
        p(mfma(v(SB[0], 16), kfrag(t), a(OQ + 4 * q, 4), v(c, 16) if c else "0"))
        p(f"v_max3_f32 v23, v{SB[0]}, v{SB[0] + 1}, v{SB[0] + 2}")
        for r in range(3, 15, 2):
            p(f"v_max3_f32 v23, v23, v{SB[0] + r}, v{SB[0] + r + 1}")
        p(f"v_max_f32 v23, v23, v{SB[0] + 15}")
        if t[0] == "h":
            p(f"s_cmp_eq_u32 s{sVAL[t[1] >> 1]}, 0")
            p(f"s_cselect_b32 s{t2}, 0xf149f2ca, 0")
            p(f"v_add_f32 v23, s{t2}, v23")
        p(f"v_max_f32 v{MX}, v{MX}, v23")
    p(f"""
v_mov_b32 v23, v{MX}
v_permlane32_swap_b32 v{MX}, v23
v_max_f32 v{MX}, v{MX}, v23
""")
    first = True
    for t, c in mine:
        S, P_ = SB[0], PB[0]
        p(mfma(v(S, 16), kfrag(t), a(OQ + 4 * q, 4), v(c, 16) if c else "0"))
        for r in range(16):
            p(f"v_sub_f32 v{S + r}, v{S + r}, v{MX}")
        for r in range(16):
            p(f"v_min_f32 v{S + r}, 0, v{S + r}")
        for r in range(16):
            p(f"v_exp_f32 v{S + r}, v{S + r}")
        for r in range(8):
            p(f"v_cvt_pk_bf16_f32 v{P_ + r}, v{S + 2 * r}, v{S + 2 * r + 1}")
        for u in range(2):
            p(mfma(v(OA[q], 16), vfrag(t, u), v(P_ + 4 * u, 4), "0" if first else v(OA[q], 16)))
            first = False
p("s_nop 15")
p("s_branch L_fbret")
p("L_end:")

body, ins, nops = finalize(p)
print("instructions:", sum(1 for i in ins if i.cls not in ("label", "none")), "nop states:", nops, file=sys.stderr)

ref = open("sequential_preLN__sliding_block__mixer_channel_mlp__prompt.s.ref").read()
head = []
for line in ref.split("\n"):
    if not line.startswith(";"):
        break
    if "@launch" in line:
        line = "; @launch grid=(256,1,1) block=(256,1,1) lds=163840"
    head.append(line)
out = "\n".join(head) + f"""
.amdgcn_target "amdgcn-amd-amdhsa--gfx950"
.text
.globl {NAME}
.p2align 8
.type {NAME},@function
{NAME}:
{body}    s_endpgm
.section .rodata,"a"
.p2align 6
.amdhsa_kernel {NAME}
  .amdhsa_next_free_vgpr 512
  .amdhsa_next_free_sgpr 102
  .amdhsa_accum_offset 256
  .amdhsa_group_segment_fixed_size 0
  .amdhsa_kernarg_size 88
  .amdhsa_user_sgpr_count 2
  .amdhsa_user_sgpr_kernarg_segment_ptr 1
  .amdhsa_system_sgpr_workgroup_id_x 1
.end_amdhsa_kernel
"""
open(sys.argv[1] if len(sys.argv) > 1 else "out.s", "w").write(out)
```

```python
import sys, os, struct, math
sys.path.insert(0, os.path.dirname(os.path.abspath(__file__)))
from asmgen import *

NAME = "sequential_preLN__sliding_block__mixer_channel_mlp__prompt_kernel"
E = lambda k, d: os.environ.get(k, d)
STAMPS = int(E("STAMPS", "0"))
FORCE_FB = int(E("FORCE_FB", "0"))
FORCE_SLOW = int(E("FORCE_SLOW", "0"))
SPINAT = E("SPINAT", "")
SPINUS = int(E("SPINUS", "60"))
XAUX = E("XAUX", "nt")
OHPLAIN = int(E("OHPLAIN", "0"))
HHPLAIN = int(E("HHPLAIN", "0"))
OHAUX = "" if OHPLAIN else "sc1"
HHAUX = "" if HHPLAIN else "sc1"
TAUX = E("TAUX", "")
OUTAUX = E("OUTAUX", "")
WTOUCH = int(E("WTOUCH", "1"))


def f2u(x):
    return "0x%08x" % struct.unpack("<I", struct.pack("<f", x))[0]


WS_KVF = 0x0000
WS_GF = 0x8000
WS_STAT = 0x40000
WS_KV = 0x100000
WS_O = 0x500000
WS_H = 0x700000
WS_HH = 0x900000
WS_ST = 0x1000000
WS_SIZE = 0x1100000

SX, SWQ, SWO, SW1, SW2, SOUT, SWS, SDBG, SB1, SB2, SKV = 8, 12, 16, 20, 24, 28, 32, 36, 40, 44, 48
sW, sJ, sRB, sVID, sROT, sT0 = 52, 53, 54, 55, 56, 57
sRT, sLO = 58, 59
sONE, sMSK = 60, 61
t0, t1, t2, t3, t4, t5 = 62, 63, 64, 65, 66, 67
sFKV, sFO, sFH, sFHH = 68, 69, 70, 71
sSPIN = 72
sVAL = [73, 74, 75, 76]
sW4K = 77
sC = [78, 79]
sSLOW = 80
sTW = 81
sST0 = 82
sKO = list(range(84, 92))
sA, sB, sD, sE = 92, 93, 94, 7
sW3K = 95
sLD = 100
sVM = 96
sF1 = 98
vFV = {1: 4, 2: 16, 3: 17}


def srd(n):
    return "s[%d:%d]" % (n, n + 3)


def v(n, c=1):
    return "v%d" % n if c == 1 else "v[%d:%d]" % (n, n + c - 1)


def a(n, c=1):
    return "a%d" % n if c == 1 else "a[%d:%d]" % (n, n + c - 1)


def mfma(d, A, B, C):
    return "v_mfma_f32_32x32x16_bf16 %s, %s, %s, %s" % (d, A, B, C)


p = Prog()
tail = Prog()
nst = [0]


def stamp(name):
    if name == SPINAT:
        p("s_waitcnt lgkmcnt(0)")
        p("L_spin:")
        p("s_memrealtime s[4:5]")
        p("s_waitcnt lgkmcnt(0)")
        p("s_sub_u32 s4, s4, s%d" % sST0)
        p("s_cmp_lt_u32 s4, %d" % (SPINUS * 100))
        p("s_cbranch_scc1 L_spin")
    if not STAMPS:
        return
    i = nst[0]
    nst[0] += 1
    assert i < 30
    p("s_waitcnt lgkmcnt(0)")
    p("s_memrealtime s[4:5]")
    p("s_memtime s[%d:%d]" % (sST0, sST0 + 1))
    p("s_waitcnt lgkmcnt(0)")
    p("v_writelane_b32 v7, s4, %d ; stamp %s" % (i, name))
    p("v_writelane_b32 v7, s%d, %d" % (sST0, 32 + i))


lab = [0]


def spin_code(q, L, vaddr, srdn, ld, need):
    q("s_mov_b32 s%d, 0" % sSPIN)
    q(L + ":")
    q("%s v3, %s, %s, 0 offen sc1" % (ld, v(vaddr), srd(srdn)))
    q("s_add_u32 s%d, s%d, 1" % (sSPIN, sSPIN))
    q("s_bitcmp1_b32 s%d, 20" % sSPIN)
    q("s_cbranch_scc1 %s_x" % L)
    q("s_waitcnt vmcnt(0)")
    q("v_cmp_gt_u32 vcc, %d, v3" % need)
    q("s_cbranch_vccnz %s" % L)
    q(L + "_x:")
    q("s_waitcnt vmcnt(0)")


def poll(vaddr, srdn, ld, need=1):
    lab[0] += 1
    spin_code(p, "L_poll%d" % lab[0], vaddr, srdn, ld, need)


def apoll_issue(vaddr, srdn, ld="buffer_load_dword"):
    return G("%s v3, %s, %s, 0 offen sc1" % (ld, v(vaddr), srd(srdn)))


def apoll_check(vaddr, srdn, need=1, ld="buffer_load_dword"):
    lab[0] += 1
    L = "L_ap%d" % lab[0]
    g = Prog()
    g("v_cmp_gt_u32 vcc, %d, v3" % need)
    g("s_cbranch_vccnz %s_s" % L)
    g(L + "_r:")
    tail(L + "_s:")
    spin_code(tail, L, vaddr, srdn, ld, need)
    tail("s_branch %s_r" % L)
    return g.ins


def flag_store(soff, val=1):
    lab[0] += 1
    L = "L_fl%d" % lab[0]
    g = Prog()
    g("s_cmp_lg_u32 s%d, 0" % sSLOW)
    g("s_mov_b64 exec, 1")
    g("s_cbranch_scc1 %s" % L)
    g("buffer_store_dword v%d, v5, %s, s%d offen" % (vFV[val], srd(SWS), soff))
    g(L + "_r:")
    g("s_mov_b64 exec, -1")
    tail(L + ":")
    tail("buffer_store_dword v%d, v5, %s, s%d offen sc1" % (vFV[val], srd(SWS), soff))
    tail("s_branch %s_r" % L)
    return g.ins


def kv_flag_store():
    g = Prog()
    g("s_mov_b64 exec, s[%d:%d]" % (sF1, sF1 + 1))
    g("buffer_store_dword v4, v5, %s, s%d offen sc1" % (srd(SWS), sFKV), cond=True)
    g("s_mov_b64 exec, -1")
    return g.ins


def W(tag):
    g = Prog()
    g.wait_vm(tag)
    return g.ins


def WD(tag=None):
    g = Prog()
    g.wait_ds(tag)
    return g.ins


BAR = lambda: G("s_barrier")


def spread(body, loads, start=0, step=None):
    n = len(loads)
    if step is None:
        step = max(1, (len(body) - start) // n)
    out, k = [], 0
    for i, ins in enumerate(body):
        if k < n and i >= start + k * step:
            out.extend(loads[k])
            k += 1
        out.append(ins)
    for g in loads[k:]:
        out.extend(g)
    return out


def split_dma(group):
    out, cur = [], []
    for i in group:
        cur.append(i)
        if i.cls == "vmem":
            out.append(cur)
            cur = []
    assert not cur
    return out


p("s_cmp_ge_u32 s2, 256")
p("s_cbranch_scc1 L_end")
if SPINAT:
    p("s_memrealtime s[%d:%d]" % (sST0, sST0 + 1))
stamp("start")
p("""
s_load_dwordx2 s[8:9], s[0:1], 0
s_load_dwordx2 s[12:13], s[0:1], 8
s_load_dwordx2 s[32:33], s[0:1], 80
s_load_dwordx2 s[16:17], s[0:1], 16
s_load_dwordx2 s[20:21], s[0:1], 32
s_load_dwordx2 s[40:41], s[0:1], 40
s_load_dwordx2 s[24:25], s[0:1], 48
s_load_dwordx2 s[44:45], s[0:1], 56
s_load_dwordx2 s[28:29], s[0:1], 64
s_load_dwordx2 s[36:37], s[0:1], 72
""")
p(f"""
s_getpc_b64 s[{SKV}:{SKV + 1}]
L_pc0:
s_mov_b32 s{SKV + 2}, L_cold-L_pc0
s_mov_b32 s{SKV + 3}, 0x20000
s_lshr_b32 s{t0}, s2, 3
s_lshl_b32 s{t2}, s{t0}, 11
v_lshlrev_b32 v3, 3, v0
v_and_b32 v3, 0x780, v3
v_add_u32 v3, s{t2}, v3
buffer_load_dword v3, v3, {srd(SKV)}, 0 offen
v_lshrrev_b32 v1, 6, v0
s_and_b32 s{t3}, s2, 7
v_readfirstlane_b32 s{sW}, v1
v_and_b32 v1, 63, v0
s_add_u32 s{sJ}, s{t0}, {E("JROT", "0")}
s_and_b32 s{sJ}, s{sJ}, 7
s_lshr_b32 s{t0}, s{t0}, 3
s_lshl_b32 s{sRB}, s{t3}, 2
s_add_u32 s{sRB}, s{sRB}, s{t0}
s_lshl_b32 s{sVID}, s{sRB}, 3
s_add_u32 s{sVID}, s{sVID}, s{sJ}
s_lshr_b32 s{sRT}, s{sW}, 1
s_and_b32 s{sLO}, s{sW}, 1
s_lshl_b32 s{sW4K}, s{sW}, 12
""")
for n, sz in ((SX, None), (SWQ, 512 * 3072), (SWS, WS_SIZE), (SWO, 512 * 1024), (SW1, 512 * 2752), (SW2, 1376 * 1024)):
    p("s_mov_b32 s%d, 0x20000" % (n + 3))
    if sz:
        p("s_mov_b32 s%d, %d" % (n + 2, sz))
p(f"""
v_lshrrev_b32 v8, 3, v1
v_and_b32 v9, 7, v1
s_lshl_b32 s{t2}, s{sW}, 14
v_lshlrev_b32 v6, 10, v8
v_lshl_add_u32 v6, v9, 4, v6
v_add_u32 v6, s{t2}, v6
v_add_u32 v11, 8192, v6
s_lshl_b32 s{t0}, s{sRB}, 16
s_lshl_b32 s{t1}, s{sJ}, 7
s_lshl_b32 s{t3}, s2, 2
s_add_u32 s{t3}, s{t3}, s{sW}
s_mul_i32 s{t2}, s{t3}, 12
v_add_lshl_u32 v22, v1, s{t2}, 7
s_mul_i32 s{t2}, s{t3}, 11
v_add_lshl_u32 v23, v1, s{t2}, 7
s_mul_i32 s{t2}, s{t3}, 4
v_add_lshl_u32 v25, v1, s{t2}, 7
v_lshrrev_b32 v10, 2, v1
v_and_b32 v10, 4, v10
v_xor_b32 v10, v10, v9
v_lshlrev_b32 v10, 4, v10
v_add_u32 v10, s{t1}, v10
v_mul_u32_u24 v19, 3072, v8
v_add_u32 v19, v19, v10
s_mul_i32 s{t2}, s{sW}, 49152
v_add_u32 v14, s{t2}, v19
v_add_u32 v12, 1024, v14
v_add_u32 v13, 24576, v14
v_add_u32 v15, {24576 - 1024}, v14
v_mov_b32 v5, 0
s_mul_i32 s{sKO[0]}, s{sJ}, 196608
""")
p("s_waitcnt lgkmcnt(0)")


def mk_srd(q, n, soff, total):
    if soff is None:
        q("s_mov_b32 s%d, %d" % (n + 2, total))
    else:
        q("s_add_u32 s%d, s%d, s%d" % (n, n, soff))
        q("s_addc_u32 s%d, s%d, 0" % (n + 1, n + 1))
        q("s_sub_u32 s%d, %d, s%d" % (n + 2, total, soff))


stamp("karg")
mk_srd(p, SX, t0, 2048 * 1024)
XR = 64


def x_load(i):
    g = Prog()
    if i == 0:
        g(f"s_mov_b32 s{t4}, s{t1}")
    else:
        g(f"s_add_u32 s{t4}, s{t4}, 128")
        g(f"s_and_b32 s{t4}, s{t4}, 0x380")
    g(f"buffer_load_dwordx4 {v(XR + i * 8, 4)}, v6, {srd(SX)}, s{t4} offen {XAUX}")
    g(f"buffer_load_dwordx4 {v(XR + i * 8 + 4, 4)}, v11, {srd(SX)}, s{t4} offen {XAUX}")
    return split_dma(g.ins)


KVSLOT = [32768 + 16384 * n for n in range(8)]
QSLOT = [32768, 49152, 65536, 81920]


def kv_dma(n):
    g = Prog()
    g(f"s_add_u32 m0, s{sW4K}, {KVSLOT[n]}")
    for i in range(4):
        g(f"buffer_load_dwordx4 v{12 + i}, {srd(SWQ)}, s{sKO[n]} offen offset:{i * 1024} lds", tag="kv%d" % n)
    return split_dma(g.ins)


def q_dma(n):
    g = Prog()
    g(f"s_cmp_eq_u32 s{sRT}, 0")
    g(f"s_cselect_b32 s{t5}, s{sKO[2 * n]}, s{sKO[2 * n + 1]}")
    g(f"s_add_u32 m0, s{sW4K}, {QSLOT[n]}")
    for i in range(4):
        g(f"buffer_load_dwordx4 v{16 + i}, {srd(SWQ)}, s{t5} offen offset:{i * 1024} lds", tag="q%d" % n)
    return split_dma(g.ins)


def touch(vreg, srdn, mask):
    return G(f"""
s_mov_b64 exec, {mask}
buffer_load_dword v{vreg}, v{vreg}, {srd(srdn)}, 0 offen
s_mov_b64 exec, -1
""")


for g in x_load(0):
    p.extend(g)
if WTOUCH:
    p.extend(touch(22, SWQ, 0xfff) + touch(25, SWO, 0xf))


def c3touch(vreg, srdn, n):
    return G(f"""
s_lshr_b32 s{sC3}, s2, 3
s_lshl_b32 s{sC3}, s{sC3}, 2
s_add_u32 s{sC3}, s{sC3}, s{sW}
s_mul_i32 s{sC3}, s{sC3}, {n}
v_add_lshl_u32 v{vreg}, v1, s{sC3}, 10
s_mov_b64 exec, {(1 << n) - 1}
buffer_load_dword v{vreg}, v{vreg}, {srd(srdn)}, 0 offen offset:384
s_mov_b64 exec, -1
""")


sC3 = 3
C3 = E("C3", "x")
c3 = c3touch(240, SWQ, 12) + c3touch(241, SWO, 4)
if C3 == "first":
    p.extend(c3)
EARLY = int(E("EARLY", "0"))
if EARLY:
    for n, sz in ((SOUT, 4), (SDBG, 4), (SB1, 4), (SB2, 4)):
        p("s_mov_b32 s%d, 0x20000" % (n + 3))
        p("s_mov_b32 s%d, %d" % (n + 2, sz))
    p("s_mov_b64 exec, 1")
    for i, n in enumerate((SWO, SW1, SW2, SWS, SOUT, SDBG, SB1, SB2)):
        p(f"buffer_load_dword v{56 + i}, v5, {srd(n)}, 0 offen")
    p("s_mov_b64 exec, -1")


def atom(q, text):
    q.ins.append(G(text))


class L2:
    def __init__(self):
        self.ins = []

    def __call__(self, text):
        for i in G(text):
            self.ins.append([i])


def spread_atoms(atoms, loads, start=0, step=None):
    total = sum(len(x) for x in atoms)
    n = len(loads)
    if step is None:
        step = max(1, (total - start) // max(n, 1))
    out, k, cnt = [], 0, 0
    for at in atoms:
        while k < n and cnt >= start + k * step:
            out.extend(loads[k])
            k += 1
        out.extend(at)
        cnt += len(at)
    for g in loads[k:]:
        out.extend(g)
    return out


u_ = L2()
sGF = sROT
u_(f"""
s_add_u32 s{t0}, s{t0}, s{t1}
""")


def srd_atom(n, soff, total):
    q = Prog()
    q("s_mov_b32 s%d, 0x20000" % (n + 3))
    mk_srd(q, n, soff, total)
    u_.ins.append(q.ins)


srd_atom(SOUT, t0, 2048 * 1024)
u_(f"""
s_lshl_b32 s{sFKV}, s{sVID}, 7
s_lshr_b32 s{sGF}, s{sVID}, 4
s_lshl_b32 s{sGF}, s{sGF}, 10
s_add_u32 s{sGF}, s{sGF}, {WS_GF}
s_and_b32 s{t2}, s{sVID}, 15
s_mul_i32 s{sT0}, s{t2}, 3
s_min_u32 s{sT0}, s{sT0}, 40
v_lshlrev_b32 v2, 4, v1
v_and_b32 v20, 31, v1
v_lshrrev_b32 v21, 5, v1
v_mov_b32 v36, 0
v_mov_b32 v37, 0
v_mov_b32 v38, 0
v_mov_b32 v39, 0
v_lshlrev_b32 v40, 7, v1
v_add_u32 v40, s{sFKV}, v40
v_add_u32 v41, s{sGF}, v2
v_subrev_u32 v41, 256, v41
v_cmp_gt_u32 vcc, 16, v1
s_or_b32 s{t2}, s{t2}, s{sW}
v_cndmask_b32 v40, v41, v40, vcc
""")
zf = G(f"""
s_cmp_eq_u32 s{t2}, 0
s_cselect_b32 s{sLD}, 1, 0
s_mov_b32 s{sLD + 1}, 0
s_cselect_b32 exec_lo, -1, 0
s_cselect_b32 exec_hi, -1, 0
""") + G(f"buffer_store_dwordx4 v[36:39], v40, {srd(SWS)}, 0 offen sc1", cond=True) + G("s_mov_b64 exec, -1")
u_.ins.append(zf)
u_(f"""
s_mov_b32 s{sONE}, 0x3f803f80
s_mov_b32 s{sMSK}, 0xffff0000
s_mov_b32 s{sVM}, 0xffff
s_mov_b32 s{sVM + 1}, 0xffff
s_min_u32 s{sTW}, s{sW}, 2
""")
for n in range(1, 8):
    u_(f"s_add_u32 s{t2}, s{sJ}, {n}")
    u_(f"s_and_b32 s{t2}, s{t2}, 7")
    u_(f"s_mul_i32 s{sKO[n]}, s{t2}, 196608")
srd_atom(SB2, t1, 1024)
u_(f"s_lshl_b32 s{t0}, s{sT0}, 6")
srd_atom(SB1, t0, 2752)
srd_atom(SDBG, None, 256)
u_(f"s_mov_b32 s{SKV}, s{SWS}")
u_(f"s_mov_b32 s{SKV + 1}, s{SWS + 1}")
atom(u_, f"""
s_cmp_eq_u32 s{sW}, 0
s_cselect_b32 s{sF1}, 1, 0
s_mov_b32 s{sF1 + 1}, 0
s_getreg_b32 s{t2}, hwreg(HW_REG_XCC_ID, 0, 4)
s_lshl_b32 s{t2}, s{t2}, 1
s_or_b32 s{t2}, s{t2}, 1
v_mov_b32 v4, s{t2}
""")
u_(f"""
v_lshl_add_u32 v244, v8, 10, v10
v_add_u32 v245, {1 * 7168}, v244
v_add_u32 v246, {2 * 7168}, v244
v_add_u32 v247, {3 * 7168}, v244
""")
u_(f"""
s_mul_i32 s{t2}, s{sLO}, 98304
v_add_u32 v16, s{t2}, v19
v_add_u32 v17, {1 * (24576 - 1024)}, v16
v_add_u32 v18, {2 * (24576 - 1024)}, v16
v_add_u32 v19, {3 * (24576 - 1024)}, v16
""")
HV, OV, OK_, OQ, HK = 160, 224, 240, 248, 176
for i in range(16):
    u_(f"v_accvgpr_write_b32 a{OV + i}, s{sONE}")
for b in range(4):
    atom(u_, f"""
s_cmp_ge_u32 s{sRB}, {4 - b}
s_cselect_b32 s{sVAL[b]}, {WS_SIZE}, 0
""")
    u_(mfma(a(HV + 16 * b, 16), "v[36:39]", "v[36:39]", a(OV, 16)))
atom(u_, f"""
s_cmp_lt_u32 s{sRB}, 4
s_cbranch_scc1 L_head
L_head_r:
""")
tail("L_head:")
tail("s_nop 15")
for b in range(4):
    tail(mfma(a(HV + 16 * b, 16), "v[36:39]", "v[36:39]", "0"))
    if b < 3:
        tail(f"s_cmp_ge_u32 s{sRB}, {3 - b}")
        tail("s_cbranch_scc1 L_head_r")
tail("s_branch L_head_r")
CC, CA = 208, 224
u_(f"""
v_lshlrev_b32 v42, 2, v21
v_sub_u32 v42, v20, v42
v_cvt_f32_i32 v42, v42
v_mov_b32 v43, {f2u(1e30)}
""")
for r in range(16):
    u_(f"v_fmaak_f32 v{CA + r}, v42, v43, {f2u((0.5 - ((r & 3) + 8 * (r >> 2))) * 1e30)}")
for r in range(16):
    u_(f"v_min_f32 v{CC + r}, 0, v{CA + r}")
    u_(f"v_min_f32_e64 v{CA + r}, 0, -v{CA + r}")
u_(f"""
v_xor_b32 v24, v8, v9
v_lshlrev_b32 v24, 4, v24
v_lshl_add_u32 v24, v9, 9, v24
s_lshl_b32 s{t2}, s{sRT}, 12
s_lshl_b32 s{t3}, s{sLO}, 8
s_add_u32 s{t3}, s{t3}, s{t2}
v_add_u32 v24, s{t3}, v24
v_xor_b32 v26, v21, v20
v_lshlrev_b32 v26, 4, v26
v_lshl_add_u32 v26, v21, 9, v26
v_add_u32 v26, s{t2}, v26
v_xor_b32 v27, 32, v26
v_xor_b32 v28, 64, v26
v_xor_b32 v29, 96, v26
""")
u_(f"""
v_bfe_u32 v42, v1, 2, 2
v_lshrrev_b32 v43, 1, v42
v_xor_b32 v43, s{sLO}, v43
v_lshlrev_b32 v43, 6, v43
v_lshl_add_u32 v30, v42, 7, v43
v_bfe_u32 v43, v1, 4, 1
v_and_b32 v44, 3, v1
v_lshlrev_b32 v44, 3, v44
v_lshl_add_u32 v44, v43, 5, v44
v_add_u32 v30, v30, v44
v_lshl_add_u32 v42, v21, 2, v42
v_mul_u32_u24 v31, 192, v42
v_add_u32 v31, v31, v44
v_lshl_add_u32 v32, v21, 10, v30
v_add_u32 v33, 0x10000, v32
v_add_u32 v34, 0x20000, v32
v_lshl_add_u32 v30, v21, 9, v30
""")
EXC = 0
XRES = 24576
vVG, vEXW, vEVW, vXW0, vXW1, vEXR, vEVR = 248, 249, 250, 251, 252, 253, 254
u_(f"""
s_lshl_b32 s{t2}, s{sRB}, 1
s_add_u32 s{t2}, s{t2}, s{sRT}
s_lshl_b32 s{t2}, s{t2}, 4
s_lshl_b32 s{t3}, s{sJ}, 1
s_add_u32 s{t2}, s{t2}, s{t3}
s_add_u32 s{t2}, s{t2}, s{sLO}
s_lshl_b32 s{sA}, s{t2}, 12
s_add_u32 s{sA}, s{sA}, {WS_KV}
s_lshl_b32 s{sD}, s{t2}, 11
s_add_u32 s{sD}, s{sD}, {WS_H}
s_lshl_b32 s{sE}, s{t2}, 8
s_add_u32 s{sE}, s{sE}, {WS_STAT}
s_and_b32 s{sFH}, s{t2}, 63
s_lshl_b32 s{sFH}, s{sFH}, 2
s_add_u32 s{sFH}, s{sFH}, s{sGF}
s_add_u32 s{sFH}, s{sFH}, 256
s_and_b32 s{t2}, s{sVID}, 15
s_lshl_b32 s{t2}, s{t2}, 2
s_add_u32 s{sFO}, s{t2}, s{sW}
s_lshl_b32 s{sFO}, s{sFO}, 2
s_add_u32 s{sFO}, s{sFO}, s{sGF}
s_lshl_b32 s{sFHH}, s{sW}, 6
s_add_u32 s{sFHH}, s{sFHH}, s{t2}
s_add_u32 s{sFHH}, s{sFHH}, s{sGF}
s_add_u32 s{sFHH}, s{sFHH}, 512
v_and_b32 v35, 15, v1
v_lshlrev_b32 v35, 4, v35
v_lshl_add_u32 v35, v21, 8, v35
v_lshl_add_u32 v{vVG}, v43, 11, v35
s_mul_i32 s{t3}, s{sW}, 6144
s_add_u32 s{t3}, s{t3}, {EXC}
v_add_u32 v{vEXW}, s{t3}, v2
v_mul_u32_u24 v{vEVW}, 3072, v43
v_add3_u32 v{vEVW}, v{vEVW}, v35, s{t3}
s_mul_i32 s{sW3K}, s{sW}, 3072
s_add_u32 s{t3}, s{sW3K}, {EXC}
v_add_u32 v{vEXR}, s{t3}, v2
v_add_u32 v{vEVR}, s{t3}, v35
v_lshrrev_b32 v42, 1, v8
v_xor_b32 v{vXW0}, v42, v9
v_lshlrev_b32 v{vXW0}, 4, v{vXW0}
v_lshl_add_u32 v{vXW0}, v8, 7, v{vXW0}
s_lshl_b32 s{t3}, s{sW}, 11
s_add_u32 s{t3}, s{t3}, {EXC}
v_add_u32 v{vXW0}, s{t3}, v{vXW0}
v_xor_b32 v{vXW1}, 64, v{vXW0}
s_lshl_b32 s{sB}, s{sRB}, 6
s_lshl_b32 s{t3}, s{sJ}, 2
s_add_u32 s{sB}, s{sB}, s{t3}
s_add_u32 s{sB}, s{sB}, s{sW}
""")
ST = 36
first = sum([x_load(i) for i in range(1, 8)], [])
NF = int(E("NF", "10"))
p.extend(spread_atoms(u_.ins, first[:NF], 0, int(E("NFSTEP", "12"))))
if C3 == "x":
    first[-1] = first[-1] + c3
later = first[NF:] + sum([kv_dma(n) for n in range(8)], [])
B2R = 48
small = G(f"""
v_lshlrev_b32 v0, 3, v21
s_lshl_b32 s{t0}, s{sLO}, 6
""")
for u in range(4):
    small += G(f"buffer_load_dwordx2 {v(B2R + 2 * u, 2)}, v0, {srd(SB2)}, s{t0} offen offset:{16 * u}")
small += G(f"""
s_lshl_b32 s{t0}, s{sTW}, 6
v_lshlrev_b32 v0, 1, v20
buffer_load_ushort v0, v0, {srd(SB1)}, s{t0} offen
""")
w1t = G("v_mov_b32 v243, v23") + touch(23, SW1, 0x7ff)
w2t = touch(243, SW2, 0x7ff)
TW1, TW2 = E("TW1", "ln"), E("TW2", "kv")
tpos = len(first) - NF + int(E("TPOS", "8"))
later = later[:tpos] + [(w1t if TW1 == "ln" else []) + (w2t if TW2 == "ln" else []) + (small if TW1 == "ln" else []) + G("s_nop 0")] + later[tpos:]
stamp("setup")

nx = len(first) - NF
k = 0
for i in range(8):
    body = Prog()
    for r in range(4):
        for gq in range(2):
            x = XR + i * 8 + gq * 4 + r
            body(f"v_dot2c_f32_bf16 v{ST + 2 * gq}, s{sONE}, v{x}")
            body(f"v_dot2c_f32_bf16 v{ST + 2 * gq + 1}, v{x}, v{x}")
    take = 2 if i < int(E("NS2", "3")) else 1
    p.extend(body.ins[:1])
    if i in (0, 4) and STAMPS > 1:
        stamp("x%d" % i)
    for g in later[k:k + take]:
        p.extend(g)
    k += take
    p.extend(body.ins[1:])
    assert 2 + NF + k >= min(16, 2 * (i + 2))
later = later[k:]
stamp("stats")
s = L2()
for mod in ("quad_perm:[1,0,3,2]", "quad_perm:[2,3,0,1]", "row_half_mirror"):
    for i in range(4):
        s(f"v_add_f32_dpp v{ST + i}, v{ST + i}, v{ST + i} {mod} row_mask:0xf bank_mask:0xf")
s(f"s_mov_b32 s{t2}, {f2u(1.0 / 512)}")
s(f"s_mov_b32 s{t3}, {f2u(1e-5)}")
for fmt in ("v_mul_f32 v{s}, s%d, v{s}" % t2, "v_mul_f32 v{q}, s%d, v{q}" % t2, "v_fma_f32 v{q}, -v{s}, v{s}, v{q}",
            "v_max_f32 v{q}, 0, v{q}", "v_add_f32 v{q}, s%d, v{q}" % t3, "v_rsq_f32 v{q}, v{q}",
            "v_mul_f32_e64 v{s}, -v{s}, v{q}"):
    for gq in range(2):
        s(fmt.format(s=ST + 2 * gq, q=ST + 2 * gq + 1))
p.extend(sum(s.ins, []))


def xn_read(i):
    return G(f"ds_read_b128 {a(4 * i, 4)}, v{26 + (i & 3)} offset:{((i >> 2) & 3) * 8192 + (i & 3) * 1024}", tag="xnr")


TMP = 40


def ln_half(hf, nld):
    k = 0
    for i in range(4 * hf, 4 * hf + 4):
        for gq in range(2):
            src = XR + i * 8 + gq * 4
            dst = src if i else 56 + gq * 4
            pr = v(ST + 2 * gq, 2)
            for r in range(4):
                p(f"v_lshlrev_b32 v{TMP + 2 * r}, 16, v{src + r}")
                p(f"v_and_b32 v{TMP + 2 * r + 1}, s{sMSK}, v{src + r}")
                if r == 2 and k < (nld * (4 * (i & 3) + 2 * gq + 1)) // 16:
                    p.extend(pop_dm(16 * hf - 1))
                    k += 1
            for r in range(4):
                p(f"v_pk_fma_f32 {v(TMP + 2 * r, 2)}, {v(TMP + 2 * r, 2)}, {pr}, {pr} op_sel:[0,1,0] op_sel_hi:[1,1,0]")
            if k < (nld * (4 * (i & 3) + 2 * gq + 2)) // 16:
                p.extend(pop_dm(16 * hf - 1))
                k += 1
            for r in range(4):
                p(f"v_cvt_pk_bf16_f32 v{dst + r}, v{TMP + 2 * r}, v{TMP + 2 * r + 1}")
            p(f"ds_write_b128 v24, {v(dst, 4)} offset:{(i & 3) * 8192 + gq * 128}")


ACK, ACV, ACQ = 128, 144, 160
WR = 128


def tr_addr(off):
    return "v%d offset:%d" % (32 + (off >> 16), off & 0xffff)


def kv_read(ks, part):
    base = KVSLOT[ks >> 2] + (ks & 3) * 4096
    st = WR + (ks & 3) * 8
    g = []
    for h in range(2):
        g += G(f"ds_read_b64_tr_b16 {a(st + part * 4 + h * 2, 2)}, {tr_addr(base + part * 2048 + h * 512)}")
    return g


def q_read(ks):
    base = QSLOT[ks >> 3] + (ks & 7) * 2048
    st = WR + (ks & 7) * 4
    g = []
    for h in range(2):
        g += G(f"ds_read_b64_tr_b16 {a(st + h * 2, 2)}, {tr_addr(base + h * 512)}")
    return g


WOL = 98304
W1L = 0


def wo_dma(n):
    g = Prog()
    g(f"s_add_u32 s{t5}, s{sW4K}, {n * 16384}")
    g(f"s_add_u32 m0, s{sW4K}, {WOL + (n >> 1) * 16384 + (n & 1) * 32768}")
    g(f"s_lshl_b32 s{t5}, s{t5}, 3")
    for i in range(4):
        g(f"buffer_load_dwordx4 v{244 + i}, {srd(SWO)}, s{t5} offen offset:{i * 1024} lds", tag="wo%d" % n)
    return split_dma(g.ins)


def w1_dma(n):
    g = Prog()
    g(f"s_add_u32 m0, s{sW3K}, {n * 12288}")
    g(f"s_mov_b32 s{t5}, {n * 4 * 44032}")
    for i in range(3):
        g(f"buffer_load_dwordx4 v{45 + i}, {srd(SW1)}, s{t5} offen offset:{i * 1024} lds", tag="w1")
    return split_dma(g.ins)


dm = later + sum([q_dma(n) for n in range(4)], []) + wo_dma(0) + wo_dma(2)
fillv = G(f"""
s_lshr_b32 s{t2}, s{sVID}, 4
v_and_b32 v43, 3, v1
v_min_u32 v40, 2, v43
v_sub_u32 v40, s{t2}, v40
v_max_i32 v40, 0, v40
v_lshlrev_b32 v40, 2, v40
v_lshlrev_b32 v43, 3, v43
s_sub_u32 s{t3}, s{sVID}, 32
v_add_u32 v43, s{t3}, v43
v_mov_b32 v44, s{sVID}
v_cmp_gt_i32 vcc, 0, v43
v_lshrrev_b32 v41, 1, v20
v_and_b32 v41, 7, v41
v_cndmask_b32 v43, v43, v44, vcc
v_lshlrev_b32 v43, 7, v43
s_lshl_b32 s{t2}, s{sLO}, 2
v_xor_b32 v41, s{t2}, v41
s_lshl_b32 s{t3}, s{sRT}, 12
s_add_u32 s{t3}, s{t3}, {EXC + XRES}
v_lshlrev_b32 v44, 7, v20
v_lshl_add_u32 v44, v21, 3, v44
v_add_u32 v44, s{t3}, v44
v_lshl_add_u32 v72, v41, 4, v44
v_xor_b32 v73, 16, v72
v_xor_b32 v74, 32, v72
v_xor_b32 v75, 48, v72
s_mul_i32 s{t2}, s{sW}, 44032
s_lshl_b32 s{t3}, s{sT0}, 6
s_add_u32 s{t2}, s{t2}, s{t3}
""")
for i in range(3):
    fillv += G(f"""
v_add_u32 v41, {64 * i}, v1
v_mul_u32_u24 v42, 0x5556, v41
v_lshrrev_b32 v42, 18, v42
v_mul_u32_u24 v42, {2752 - 192}, v42
v_lshl_add_u32 v42, v1, 4, v42
v_add_u32 v{45 + i}, s{t2}, v42
""")
avail = {"kv%d" % n: -1 for n in range(8)}
avail.update({None: -1, "q0": 10, "q1": 10, "q2": 15, "q3": 15, "wo0": 24, "wo2": 24})


def pop_dm(now):
    if dm and avail[dm[0][-1].tag if dm[0][-1].cls == "vmem" else None] <= now:
        return dm.pop(0)
    return []


fi = 0
for hf in range(2):
    ln_half(hf, int(E("NLN%d" % hf, "9")))
    k0 = 16 * hf
    assert all(avail[g[-1].tag if g[-1].cls == "vmem" else None] != -1 or int(g[-1].tag[2:]) > 4 * hf + 1 for g in dm[:1])
    p.wait_vm("kv%d" % (4 * hf + 1))
    p.wait_ds()
    p("s_barrier")
    stamp("ln%d" % hf)
    p.extend(xn_read(k0) + kv_read(k0, 0) + kv_read(k0, 1) + xn_read(k0 + 1) + kv_read(k0 + 1, 0) + kv_read(k0 + 1, 1))
    if hf == 0:
        p(f"s_lshr_b32 s{t2}, s{sVID}, 2")
        p(f"s_mov_b64 exec, s[{sLD}:{sLD + 1}]")
        p(f"buffer_store_dword v4, v5, {srd(SDBG)}, s{t2} offen sc1", cond=True)
        p("s_mov_b64 exec, -1")
    else:
        p.extend(fillv[:8])
        fi = 8
    for ks in range(k0, k0 + 16):
        nk = ks + 2
        st = WR + (ks & 3) * 8
        pre = []
        if ks == k0 + 5:
            pre = W("kv%d" % (4 * hf + 3)) + BAR()
        if ks == 10:
            pre = BAR()
        if ks == 24:
            pre = BAR()
        if ks == 29:
            pre = W("q1") + WD("xnr") + BAR()
        if ks == 15:
            pre = WD() + BAR()
        p(mfma(v(ACK, 16), a(st, 4), a(4 * ks, 4), v(ACK, 16) if ks else "0"))
        p.extend(pre)
        if nk < k0 + 16:
            p.extend(kv_read(nk, 0))
        elif hf:
            p.extend(q_read(2 * (nk - 32)))
        p.extend(pop_dm(ks))
        p(mfma(v(ACV, 16), a(4 * ks, 4), a(st + 4, 4), v(ACV, 16) if ks else "0"))
        if nk < k0 + 16:
            p.extend(kv_read(nk, 1))
            if hf == 0:
                p.extend(xn_read(nk))
            elif ks < 23:
                p.extend(xn_read(2 * ks - 14) + xn_read(2 * ks - 13))
        elif hf:
            p.extend(q_read(2 * (nk - 32) + 1))
        if ks == 24:
            p.extend(apoll_issue(40, SDBG))
        elif ks >= 23:
            p.extend(fillv[fi:fi + 3])
            fi += 3
    if hf == 0:
        stamp("kv0")
fillv = fillv[fi:]
p.extend((w1t if TW1 == "kv" else []) + (w2t if TW2 == "kv" else []) + (small if TW1 == "kv" else []))
stamp("kv")

PK = 80
cvtK = [G(f"v_cvt_pk_bf16_f32 v{PK + i}, v{ACK + 2 * i}, v{ACK + 2 * i + 1}") for i in range(8)]
cvtV = [G(f"v_cvt_pk_bf16_f32 v{PK + 8 + i}, v{ACV + 2 * i}, v{ACV + 2 * i + 1}") for i in range(8)]
stK = [G(f"buffer_store_dwordx4 {v(PK + 4 * i, 4)}, v2, {srd(SWS)}, s{sA} offen offset:{2048 * i} sc1", tag="kvst") for i in range(2)]
stV = [G(f"buffer_store_dwordx4 {v(PK + 8 + 4 * i, 4)}, v{vVG}, {srd(SWS)}, s{sA} offen offset:{1024 + 512 * i} sc1", tag="kvst") for i in range(2)]
exw = [G(f"ds_write_b128 v{vEXW}, {v(PK, 4)} offset:1024"),
       G(f"ds_write_b128 v{vEXW}, {v(PK + 4, 4)} offset:{3072 + 1024}"),
       G(f"ds_write_b128 v{vEVW}, {v(PK + 8, 4)} offset:2048"),
       G(f"ds_write_b128 v{vEVW}, {v(PK + 12, 4)} offset:{2048 + 512}"),
       G(f"ds_write_b128 v{vXW0}, {v(XR, 4)} offset:{XRES}"),
       G(f"ds_write_b128 v{vXW1}, {v(XR + 4, 4)} offset:{XRES + 1024}")]
qf = {0: sum(cvtK[:4], []), 1: stK[0] + sum(cvtK[4:], []), 2: stK[1] + sum(cvtV[:4], []), 3: stV[0] + sum(cvtV[4:], []),
      4: stV[1]}
for i in range(0, len(fillv), 2):
    qf.setdefault(5 + i // 2, []).extend(fillv[i:i + 2])
assert not dm, len(dm)
rest = wo_dma(1) + wo_dma(3)
QS0 = int(E("QS0", "22"))
NQ = int(E("NQ", "5"))
for i in range(NQ):
    qf.setdefault(QS0 + 2 * i, []).extend(rest.pop(0))
for i in range(6):
    qf.setdefault(9 + 2 * i, []).extend(exw[i])
FLAGAT = int(E("FLAGAT", "28"))
w1d = sum([w1_dma(n) for n in range(8)], [])
for ks in range(32):
    nk = ks + 4
    st = WR + (ks & 7) * 4
    p(mfma(v(ACQ, 16), a(st, 4), a(4 * ks, 4), v(ACQ, 16) if ks else "0"))
    if ks == 8:
        p.extend(W("q3") + BAR())
    if ks == FLAGAT:
        p.extend(apoll_check(40, SDBG) + W("kvst") + BAR() + kv_flag_store())
    if nk < 32:
        p.extend(q_read(nk))
    p.extend(qf.get(ks, []))
p(f"""
s_mov_b32 s{sC[0]}, {f2u(0.25 * math.log2(math.e))}
s_lshl_b32 s{t4}, s{sB}, 11
s_add_u32 s{t4}, s{t4}, {WS_KV - 8 * 65536}
s_lshl_b32 s{t2}, s{sLO}, 14
s_add_u32 s{t2}, s{t2}, {WOL}
v_add_u32 v32, s{t2}, v30
v_xor_b32 v33, 64, v32
s_and_b32 s{t2}, s{sVID}, 0xf0
v_and_b32 v41, 15, v1
v_add_lshl_u32 v41, v41, s{t2}, 7
""")
for i in range(8):
    p(f"v_pk_mul_f32 {v(ACQ + 2 * i, 2)}, {v(ACQ + 2 * i, 2)}, s[{sC[0]}:{sC[1]}] op_sel_hi:[1,0]")
for i in range(4):
    p(f"v_cvt_pk_bf16_f32 v{PK + i}, v{ACQ + 2 * i}, v{ACQ + 2 * i + 1}")
p(f"ds_write_b128 v{vEXW}, {v(PK, 4)}")
for i in range(4, 8):
    p(f"v_cvt_pk_bf16_f32 v{PK + i}, v{ACQ + 2 * i}, v{ACQ + 2 * i + 1}")
p(f"ds_write_b128 v{vEXW}, {v(PK + 4, 4)} offset:3072")
if FLAGAT >= 32:
    p.extend(apoll_check(40, SDBG) + W("kvst"))
p.wait_ds()
p("s_barrier")
if FLAGAT >= 32:
    p.extend(kv_flag_store())
for g in rest:
    p.extend(g)
p.extend(apoll_issue(43, SWS))
stamp("q")
for rt in range(2):
    p(f"ds_read_b128 {a(OQ + 4 * rt, 4)}, v{vEXR} offset:{rt * 12288}")
    p(f"ds_read_b128 {a(OK_ + 4 * rt, 4)}, v{vEXR} offset:{rt * 12288 + 1024}")
p(f"s_mov_b64 exec, s[{sVM}:{sVM + 1}]")
for rt in range(2):
    for u in range(2):
        p(f"ds_read_b128 {a(OV + 8 * rt + 4 * u, 4)}, v{vEVR} offset:{rt * 12288 + 2048 + u * 512}")
p("s_mov_b64 exec, -1")
XS = 56
for u in range(4):
    p(f"ds_read_b64 {v(XS + 2 * u, 2)}, v{72 + u}")
wor = []
for ks in range(16):
    for b in range(2):
        for h in range(2):
            wor += G(f"ds_read_b64_tr_b16 {a((ks * 2 + b) * 4 + 2 * h, 2)}, v{32 + b} offset:{(ks >> 3) * 32768 + (ks & 7) * 2048 + h * 1024}")
WOPRE = 32
p.extend(wor[:WOPRE])
wor = wor[WOPRE:]
p.extend(apoll_check(43, SWS))
stamp("kvpoll")


def halo(i):
    g = Prog()
    if i & 1:
        g(f"s_mov_b32 s{SKV + 2}, s{sVAL[i >> 1]}")
    g(f"s_add_u32 s{t3}, s{t4}, {i * 65536}")
    g(f"buffer_load_dwordx4 {v(HK + 4 * i, 4)}, v2, {srd(SKV)}, s{t3} offen sc1")
    g2 = Prog()
    g2(f"s_mov_b64 exec, s[{sVM}:{sVM + 1}]")
    g2(f"buffer_load_dwordx4 {a(HV + 8 * i, 4)}, v35, {srd(SKV)}, s{t3} offen offset:1024 sc1")
    g2(f"buffer_load_dwordx4 {a(HV + 8 * i + 4, 4)}, v35, {srd(SKV)}, s{t3} offen offset:1536 sc1")
    g2("s_mov_b64 exec, -1")
    return [g.ins, g2.ins]


hl = sum([halo(i) for i in range(7, -1, -1)], [])
for g in hl[:4]:
    p.extend(g)
hl = hl[4:]
p.wait_ds()
p("s_barrier")

SB = [80, 96]
PB = [112, 120]
OA = [128, 144]
WIN = 98304
EX3 = 147456


def kfrag(t):
    return a(OK_ + 4 * t[1], 4) if t[0] == "o" else v(HK + 4 * t[1], 4)


def vfrag(t, u):
    return a((OV if t[0] == "o" else HV) + 8 * t[1] + 4 * u, 4)


steps = [(0, ("o", 0), CC), (1, ("o", 0), None), (1, ("o", 1), CC)]
for i in range(7, 1, -1):
    steps += [(0, ("h", i), None), (1, ("h", i), None)]
steps += [(0, ("h", 1), None), (1, ("h", 1), CA), (0, ("h", 0), CA)]


def s_mfma(n):
    q, t, c = steps[n]
    return mfma(v(SB[n & 1], 16), kfrag(t), a(OQ + 4 * q, 4), v(c, 16) if c else "0")


def tile_of(pos):
    return 3 * pos if pos < 14 else (3 * (pos - 14) + 1 if pos < 28 else min(3 * (pos - 28) + 2, 42))


def w2_lds(pos):
    return WIN + (pos % 12) * 4096 if pos < 36 else (pos - 36) * 4096


sW96K = 6


def w2_dma(i):
    g = Prog()
    tl = [tile_of(min(4 * i + w, 42)) for w in range(4)]
    if all(tl[w] == tl[0] + 3 * w for w in range(4)):
        g(f"s_add_u32 s{t5}, s{sW96K}, {tl[0] * 32768}")
    elif i == 3:
        g(f"s_mul_i32 s{t5}, s{sRT}, {41 * 32768}")
        g(f"s_sub_u32 s{t5}, s{sW96K}, s{t5}")
        g(f"s_add_u32 s{t5}, s{t5}, {36 * 32768}")
        assert tl == [36, 39, 1, 4]
    else:
        assert tl == [38, 41, 42, 42]
        g(f"s_add_u32 s{t5}, s{sW96K}, {38 * 32768}")
        g(f"s_min_u32 s{t5}, s{t5}, {42 * 32768}")
    g(f"s_add_u32 m0, s{sW4K}, {w2_lds(4 * i)}")
    for k_ in range(4):
        g(f"buffer_load_dwordx4 v{12 + k_}, {srd(SW2)}, s{t5} offen offset:{k_ * 1024} lds", tag="w2_%d" % i)
    return split_dma(g.ins)


def w2_reg(pos):
    if pos < 12:
        return 128 + 8 * pos
    if pos < 22:
        return 48 + 8 * (pos - 12)
    if pos < 24:
        return 224 + 8 * (pos - 22)
    return 8 * (pos & 3)


def w2_read(pos):
    off = w2_lds(pos)
    dst = w2_reg(pos)
    g = []
    for b in range(2):
        for h in range(2):
            if pos < 36:
                ad = "v%d offset:%d" % (32 + b, off - WIN + h * 1024)
            else:
                ad = "v%d offset:%d" % (26 + b, off + h * 1024)
            g += G(f"ds_read_b64_tr_b16 {a(dst + 4 * b + 2 * h, 2)}, {ad}")
    return g


pts = [[] for _ in range(54)]
HSTEP = int(E("HSTEP", "1"))
for i, g in enumerate(hl):
    pts[i * HSTEP] += g
nxt = len(hl) * HSTEP
pts[nxt] += apoll_issue(41, SWS, "buffer_load_dword")
pts[nxt + 1] += G(f"buffer_load_dword v78, v78, {srd(SWS)}, s{sGF} offen")
mode = apoll_check(41, SWS) + G(f"""
v_readfirstlane_b32 s{t2}, v3
s_nop 1
v_cmp_ne_u32 vcc, s{t2}, v3
s_and_b32 s{sSLOW}, vcc_lo, 0xffff
""")
if FORCE_SLOW:
    mode += G(f"s_mov_b32 s{sSLOW}, 1")
pts[50] += mode
DSTART = nxt + 2
DEND = int(E("DEND", "44"))
NW1 = int(E("NW1", "24"))
dmas = ([w2t] if TW2 == "p2" else []) + w1d[:NW1] + ([c3touch(242, SW2, 11)] if C3 != "no" else [])
osync = w1d[NW1:] + w2_dma(0) + w2_dma(1) + w2_dma(2)
for i in range(8):
    pts[i] += wor[4 * i:4 * i + 4]
for i, g in enumerate(dmas):
    pts[DSTART + (i * (DEND - DSTART)) // len(dmas)] += g
p(s_mfma(0))
sHH = sKO[:3]
p(f"""
v_mov_b32 v4, 1
v_min_u32 v78, 5, v1
v_lshlrev_b32 v78, 7, v78
v_mov_b32 v12, v244
v_mov_b32 v13, v245
v_mov_b32 v14, v246
v_mov_b32 v15, v247
s_lshl_b32 s{sA}, s{sB}, 10
s_add_u32 s{sA}, s{sA}, {WS_O}
s_add_u32 s{sB}, s{sA}, 32768
v_mov_b32 v22, {f2u(2.0 ** 64)}
s_mov_b32 s{sC[0]}, {f2u(2.0 ** -64)}
s_mul_i32 s{sW96K}, s{sW}, 98304
s_lshr_b32 s{t1}, s{sRB}, 1
s_lshl_b32 s{t1}, s{t1}, 2
s_add_u32 s{t1}, s{t1}, s{sW}
s_mul_i32 s{t0}, s{t1}, 88
s_and_b32 s{t2}, s{sVID}, 15
s_add_u32 s{sHH[2]}, s{t2}, 28
s_add_u32 s{sHH[1]}, s{t2}, 14
s_cmp_lt_u32 s{t2}, 14
s_cselect_b32 s{sHH[0]}, s{t2}, 43
s_cselect_b32 s{sHH[1]}, s{sHH[1]}, 43
""")
for i in range(3):
    p(f"""
s_add_u32 s{sHH[i]}, s{sHH[i]}, s{t0}
s_lshl_b32 s{sHH[i]}, s{sHH[i]}, 10
s_add_u32 s{sHH[i]}, s{sHH[i]}, {WS_HH}
""")
seen = set()
pend = None
for n in range(18):
    q, t, c = steps[n]
    S, P_ = SB[n & 1], PB[n & 1]
    ex = lambda lo, hi: [p(f"v_exp_f32 v{S + r}, v{S + r}") for r in range(lo, hi)]
    cv = lambda u: [p(f"v_cvt_pk_bf16_f32 v{P_ + 4 * u + r}, v{S + 8 * u + 2 * r}, v{S + 8 * u + 2 * r + 1}") for r in range(4)]
    ex(0, 2)
    if pend:
        p(pend)
        p.extend(pts[3 * n - 1])
    ex(2, 6)
    if n + 1 < 18:
        p(s_mfma(n + 1))
    p.extend(pts[3 * n])
    ex(6, 9)
    cv(0)
    ex(9, 11)
    p(mfma(v(OA[q], 16), vfrag(t, 0), v(P_, 4), v(OA[q], 16) if q in seen else "0"))
    seen.add(q)
    p.extend(pts[3 * n + 1])
    ex(11, 16)
    cv(1)
    pend = mfma(v(OA[q], 16), vfrag(t, 1), v(P_ + 4, 4), v(OA[q], 16))
p(pend)


def o_epilogue(q_, qq, pk):
    q_(f"v_rcp_f32 v{OA[qq] + 8}, v{OA[qq] + 8}")
    q_("s_nop 0")
    if pk:
        for i in range(4):
            q_(f"v_pk_mul_f32 {v(OA[qq] + 2 * i, 2)}, {v(OA[qq] + 2 * i, 2)}, {v(OA[qq] + 8, 2)} op_sel_hi:[1,0]")
    else:
        for i in range(8):
            q_(f"v_mul_f32 v{OA[qq] + i}, v{OA[qq] + i}, v{OA[qq] + 8}")
    for i in range(4):
        q_(f"v_cvt_pk_bf16_f32 v{SB[0] + 4 * qq + i}, v{OA[qq] + 2 * i}, v{OA[qq] + 2 * i + 1}")
    q_(f"buffer_store_dwordx4 {v(SB[0] + 4 * qq, 4)}, v2, {srd(SWS)}, s{[sA, sB][qq]} offen {OHAUX}", tag="ost")


p(f"""
v_med3_f32 v25, v{OA[1] + 8}, s{sC[0]}, v22
v_cmp_neq_f32 s[4:5], v25, v{OA[1] + 8}
""")
o_epilogue(p, 1, False)
p(f"""
v_med3_f32 v23, v{OA[0] + 8}, s{sC[0]}, v22
v_cmp_neq_f32 vcc, v23, v{OA[0] + 8}
""")
o_epilogue(p, 0, True)
p("s_or_b64 vcc, vcc, s[4:5]")
if FORCE_FB:
    p("s_branch L_fallback")
else:
    p("s_cbranch_vccnz L_fallback")
p("L_fbret:")
stamp("attn")
HR = 240
for i in range(8):
    p(f"v_lshlrev_b32 v{HR + 2 * i}, 16, v{XS + i}")
    p(f"v_and_b32 v{HR + 2 * i + 1}, s{sMSK}, v{XS + i}")
p(f"""
v_mov_b32 v16, 2
v_mov_b32 v17, 3
v_and_b32 v29, 15, v1
v_lshlrev_b32 v29, 2, v29
s_and_b32 s{t2}, s{sFO}, 0xffffff80
s_lshl_b32 s{t3}, s{sLO}, 6
s_add_u32 s{t2}, s{t2}, s{t3}
v_add_u32 v40, s{t2}, v29
s_lshl_b32 s{t4}, s{sRB}, 2
s_add_u32 s{t4}, s{t4}, s{sW}
s_lshl_b32 s{t4}, s{t4}, 14
s_add_u32 s{t4}, s{t4}, {WS_O}
s_lshl_b32 s{t2}, s{sTW}, 6
v_add_u32 v34, s{t2}, v31
v_add_u32 v35, 0x10000, v34
v_mov_b32 v18, 0
v_mov_b32 v19, 0
s_add_u32 s{t2}, s{sW4K}, {EX3}
v_add_u32 v41, s{t2}, v2
v_xor_b32 v42, 4096, v41
s_lshl_b32 s{t2}, s{sLO}, 11
v_add_u32 v26, s{t2}, v30
v_xor_b32 v27, 64, v26
v_add_u32 v32, {WIN}, v26
v_add_u32 v33, {WIN}, v27
""")
NO1 = int(E("NO1", "6"))
p.extend(WD() + BAR())
for g in osync[:NO1]:
    p.extend(g)
p.wait_vm("ost")
p.extend(flag_store(sFO))
for g in osync[NO1:]:
    p.extend(g)


def w1off(vb, off):
    return "v%d offset:%d" % (vb + (off >> 16), off & 0xffff)


CSR = 176


def cs_read(b):
    g = []
    for ks in range(4 * b, 4 * b + 4):
        for h in range(2):
            g += G(f"ds_read_b64_tr_b16 {v(CSR + 16 * (b & 3) + 4 * (ks & 3) + 2 * h, 2)}, {w1off(34, ks * 3072 + h * 1536)}")
    return g


def cs_dot(b):
    return sum([G(f"v_dot2c_f32_bf16 v{18 + (r & 1)}, s{sONE}, v{CSR + 16 * (b & 3) + r}") for r in range(16)], [])


poll(40, SWS, "buffer_load_dword")
stamp("opoll")

OF = 64


def o_load(ks):
    g = Prog()
    if ks and ks % 4 == 0:
        g(f"s_add_u32 s{t4}, s{t4}, 4096")
    g(f"buffer_load_dwordx4 {v(OF + 4 * ks, 4)}, v2, {srd(SWS)}, s{t4} offen offset:{(ks & 3) * 1024} sc1")
    return g.ins


LA3 = int(E("LA3", "9"))
assert LA3 >= 9
for ks in range(5):
    p.extend(o_load(ks))
p("s_barrier")
for ks in range(5, LA3):
    p.extend(cs_read(ks - 5) if ks < 9 else [])
    p.extend(o_load(ks))
ld3 = [o_load(ks) for ks in range(LA3, 16)]
KEEP, SEND, RECV = 128, 144, 160
r1 = sum([w2_read(pos) for pos in range(12)], [])
for ks in range(16):
    p(mfma(v(SEND, 16), a((ks * 2 + 1) * 4, 4), v(OF + 4 * ks, 4), v(SEND, 16) if ks else "0"))
    if ld3:
        p.extend(ld3.pop(0))
    p(mfma(v(KEEP, 16), a((ks * 2) * 4, 4), v(OF + 4 * ks, 4), v(KEEP, 16) if ks else v(HR, 16)))
    p.extend(r1[4 * ks:4 * ks + 4])
for i in range(4):
    p(f"ds_write_b128 v41, {v(SEND + 4 * i, 4)} offset:{i * 1024}")
p.wait_ds()
p("s_barrier")
for i in range(4):
    p(f"ds_read_b128 {v(RECV + 4 * i, 4)}, v42 offset:{i * 1024}")
for u in range(2):
    for i in range(4 * u, 4 * u + 4):
        p(f"v_pk_add_f32 {v(HR + 2 * i, 2)}, {v(KEEP + 2 * i, 2)}, {v(RECV + 2 * i, 2)}")
    for i in range(4 * u, 4 * u + 4):
        p(f"v_cvt_pk_bf16_f32 v{PK + i}, v{HR + 2 * i}, v{HR + 2 * i + 1}")
    p(f"buffer_store_dwordx4 {v(PK + 4 * u, 4)}, v2, {srd(SWS)}, s{sD} offen offset:{u * 1024} {OHAUX}", tag="hst")
p(f"v_pk_add_f32 v[36:37], {v(HR, 2)}, {v(HR + 2, 2)}")
p(f"v_pk_mul_f32 v[38:39], {v(HR, 2)}, {v(HR, 2)}")
for i in range(1, 8):
    if i > 1:
        p(f"v_pk_add_f32 v[36:37], v[36:37], {v(HR + 2 * i, 2)}")
    p(f"v_pk_fma_f32 v[38:39], {v(HR + 2 * i, 2)}, {v(HR + 2 * i, 2)}, v[38:39]")
p(f"""
v_add_f32 v36, v36, v37
v_add_f32 v38, v38, v39
v_lshlrev_b32 v43, 2, v1
v_permlane32_swap_b32 v36, v38
v_add_f32 v36, v36, v38
""")
p(f"buffer_store_dword v36, v43, {srd(SWS)}, s{sE} offen {OHAUX}", tag="hst")
stamp("wo")
hsync = w2_dma(3) + w2_dma(4) + w2_dma(5)
NH1 = int(E("NH1", "6"))
for b in range(4):
    p.extend(cs_dot(b))
    p.extend(cs_read(b + 4))
    if b:
        p.extend(sum(hsync[(b - 1) * NH1 // 3:b * NH1 // 3], []))
CSL = EX3
p(f"""
s_and_b32 s{t2}, s{sFHH}, 0xffffffc0
s_sub_u32 s{t2}, s{t2}, 256
v_add_u32 v40, s{t2}, v29
v_and_b32 v43, 1, v1
v_bfe_u32 v38, v1, 1, 1
v_lshl_add_u32 v43, v43, 1, v38
v_bfe_u32 v38, v1, 2, 3
v_lshl_add_u32 v43, v43, 4, v38
v_lshlrev_b32 v43, 2, v43
s_lshl_b32 s{sA}, s{t1}, 12
s_add_u32 s{sA}, s{sA}, {WS_STAT}
s_lshl_b32 s{t4}, s{t1}, 15
s_add_u32 s{t4}, s{t4}, {WS_H}
""")
p.wait_vm("hst")
p.extend(flag_store(sFH))
for g in hsync[NH1:]:
    p.extend(g)
p.extend(apoll_issue(40, SWS))
for b in range(4, 8):
    p.extend(cs_dot(b))
p("s_barrier")
p(f"""
v_add_f32 v18, v18, v19
v_mov_b32 v19, v18
v_lshlrev_b32 v44, 16, v0
v_cmp_gt_u32 vcc, 32, v1
v_permlane32_swap_b32 v18, v19
v_add_f32 v18, v18, v19
v_cndmask_b32 v44, v44, v18, vcc
v_lshlrev_b32 v37, 2, v20
v_lshl_add_u32 v37, v21, 9, v37
s_lshl_b32 s{t2}, s{sTW}, 7
s_add_u32 s{t2}, s{t2}, {CSL}
v_add_u32 v37, s{t2}, v37
ds_write_b32 v37, v44
v_mov_b32 v34, v31
v_add_u32 v35, 0x10000, v31
v_lshlrev_b32 v41, 4, v21
v_add_u32 v41, {CSL}, v41
""")
W1R = 0
AC4 = 192
HF = 64


def w1_read(ks):
    g = []
    for t in range(3):
        for h in range(2):
            g += G(f"ds_read_b64_tr_b16 {a(W1R + (ks & 3) * 12 + t * 4 + 2 * h, 2)}, {w1off(34, ks * 3072 + t * 64 + h * 1536)}")
    return g


p.extend(w1_read(0))
p.extend(w1_read(1))
p.extend(apoll_check(40, SWS))
stamp("hpoll")


def h_load(ks):
    g = Prog()
    if ks and ks % 4 == 0:
        g(f"s_add_u32 s{t4}, s{t4}, 4096")
    g(f"buffer_load_dwordx4 {v(HF + 4 * ks, 4)}, v2, {srd(SWS)}, s{t4} offen offset:{(ks & 3) * 1024} sc1")
    return g.ins


SP = 48
LA4 = int(E("LA4", "9"))
hb = []
for i in range(8):
    hb += G(f"""
v_lshlrev_b32 v38, 16, v{B2R + i}
v_and_b32 v39, s{sMSK}, v{B2R + i}
v_pk_add_f32 {v(HR + 2 * i, 2)}, {v(HR + 2 * i, 2)}, v[38:39]
""")
for ks in range(LA4):
    p.extend(h_load(ks))
    if ks == 3:
        p.extend(hb[:12])
    if ks == 4:
        p.extend(hb[12:])
ld4 = [h_load(ks) for ks in range(LA4, 32)]
for i in range(4):
    ld4.insert(9 + 3 * i, G(f"buffer_load_dwordx4 {v(SP + 4 * i, 4)}, v2, {srd(SWS)}, s{sA} offen offset:{1024 * i} sc1"))
ld4 += w2_dma(6) + w2_dma(7) + w2_dma(8)
c1 = -2.0 * math.sqrt(2.0 / math.pi) * math.log2(math.e)
stat = []
for i in range(1, 4):
    for e in range(4):
        stat += G(f"v_add_f32 v{SP + e}, v{SP + e}, v{SP + 4 * i + e}")
stat += G(f"""
s_mov_b32 s{t2}, {f2u(1.0 / 512)}
s_mov_b32 s{t3}, {f2u(1e-5)}
v_permlane32_swap_b32 v{SP}, v{SP + 1}
v_permlane32_swap_b32 v{SP + 2}, v{SP + 3}
v_add_f32 v{SP}, v{SP}, v{SP + 1}
v_add_f32 v{SP + 2}, v{SP + 2}, v{SP + 3}
s_and_b32 s{t0}, s{sFH}, 0xffffffc0
s_add_u32 s{t0}, s{t0}, 256
v_permlane16_swap_b32 v{SP}, v{SP + 2}
v_add_f32 v{SP}, v{SP}, v{SP + 2}
v_mul_f32 v{SP}, s{t2}, v{SP}
v_add_u32 v40, s{t0}, v29
ds_bpermute_b32 v36, v43, v{SP}
ds_bpermute_b32 v38, v43, v{SP} offset:32
v_mov_b32 v42, {f2u(c1)}
""")
stat2 = G(f"""
v_fma_f32 v38, -v36, v36, v38
v_max_f32 v38, 0, v38
v_add_f32 v39, s{t3}, v38
v_rsq_f32 v39, v39
s_mov_b32 s{sC[0]}, {f2u(c1 * 0.044715)}
v_mul_f32 v38, v38, v39
v_fma_f32 v38, v38, v39, s{t3}
v_rsq_f32 v38, v38
v_add_u32 v28, 45056, v2
v_mul_f32 v37, v38, v39
v_mul_f32_e64 v36, -v36, v37
""")
CB = [64, 96]
E_, PKD = 128, 144


def cb_read(t):
    g = []
    for u in range(4):
        g += G(f"ds_read_b128 {v(CB[t & 1] + 4 * u, 4)}, v41 offset:{t * 128 + u * 32}")
        g += G(f"ds_read_b128 {v(CB[t & 1] + 16 + 4 * u, 4)}, v41 offset:{512 + t * 128 + u * 32}")
    return g


si = 0
r2 = sum([w2_read(pos) for pos in range(12, 24)], [])
nl4 = len(ld4)
done4 = 0
for ks in range(32):
    rd = w1_read(ks + 2) if ks + 2 < 32 else []
    for t in range(3):
        p(mfma(v(AC4 + 16 * t, 16), a(W1R + (ks & 3) * 12 + t * 4, 4), v(HF + 4 * ks, 4), v(AC4 + 16 * t, 16) if ks else "0"))
        if ks in (1, 19) and t == 0:
            p("s_barrier")
        p.extend(rd[2 * t:2 * t + 2])
        if ks >= 1 and r2:
            p.extend([r2.pop(0)])
        if ld4 and done4 * 94 <= (3 * ks + t) * nl4:
            assert ks >= 19 or "m0" not in ld4[0][-1].rd
            p.extend(ld4.pop(0))
            done4 += 1
        elif ks >= 24 and si < len(stat):
            p.extend(stat[si:si + 4])
            si += 4
        elif ks >= 30:
            p.extend(stat2[:4])
            stat2 = stat2[4:]
    if ks == 30:
        p.extend(WD() + BAR())
        p.extend(cb_read(0))
for g in ld4:
    p.extend(g)
assert si >= len(stat)
p.extend(stat2)
stamp("w1")
bursts = [w2_dma(9) + w2_dma(10), [], []]
AR = [168 + 4 * i for i in range(14)]
p5a = G(f"""
s_lshl_b32 s{t4}, s{sRB}, 2
s_add_u32 s{t4}, s{t4}, s{sW}
s_mul_i32 s{t4}, s{t4}, 45056
s_add_u32 s{t4}, s{t4}, {WS_HH}
""")


def hh_load(pos):
    g = Prog()
    if pos and pos % 4 == 0:
        g(f"s_add_u32 s{t4}, s{t4}, 4096")
    g(f"buffer_load_dwordx4 {v(AR[pos % 14], 4)}, v2, {srd(SWS)}, s{t4} offen offset:{(pos & 3) * 1024} sc1")
    return g.ins


for t in range(3):
    Z = AC4 + 16 * t
    cs, b1 = CB[t & 1], CB[t & 1] + 16
    b = Prog()
    for i in range(8):
        b_ = v(b1 + 2 * i, 2)
        b(f"v_pk_fma_f32 {b_}, {v(cs + 2 * i, 2)}, v[36:37], {b_} op_sel_hi:[1,0,1]")
    for i in range(8):
        z = v(Z + 2 * i, 2)
        b(f"v_pk_fma_f32 {z}, {z}, v[36:37], {v(b1 + 2 * i, 2)} op_sel:[0,1,0] op_sel_hi:[1,1,1]")
    if t < 2:
        b.extend(cb_read(t + 1))
    for i in range(8):
        b(f"v_pk_mul_f32 {v(E_ + 2 * i, 2)}, {v(Z + 2 * i, 2)}, {v(Z + 2 * i, 2)}")
    for i in range(8):
        e = v(E_ + 2 * i, 2)
        b(f"v_pk_fma_f32 {e}, {e}, s[{sC[0]}:{sC[1]}], v[42:43] op_sel_hi:[1,0,0]")
    for i in range(8):
        e = v(E_ + 2 * i, 2)
        b(f"v_pk_mul_f32 {e}, {e}, {v(Z + 2 * i, 2)}")
    for i in range(16):
        b(f"v_exp_f32 v{E_ + i}, v{E_ + i}")
    p.extend(spread(b.ins, bursts[t], 0, 8) if bursts[t] else b.ins)
    for i in range(8):
        e = v(E_ + 2 * i, 2)
        p(f"v_pk_add_f32 {e}, {e}, 1.0 op_sel_hi:[1,0]")
    if t == 0:
        p.extend(p5a)
    if t == 2:
        p.extend(W("hhst0") + flag_store(sFHH, 1))
    for u in range(2):
        for i in range(8 * u, 8 * u + 8):
            p(f"v_rcp_f32 v{E_ + i}, v{E_ + i}")
        for i in range(4 * u, 4 * u + 4):
            e = v(E_ + 2 * i, 2)
            p(f"v_pk_mul_f32 {e}, {e}, {v(Z + 2 * i, 2)}")
        for i in range(4 * u, 4 * u + 4):
            p(f"v_cvt_pk_bf16_f32 v{PKD + 8 * t + i}, v{E_ + 2 * i}, v{E_ + 2 * i + 1}")
        p(f"buffer_store_dwordx4 {v(PKD + 8 * t + 4 * u, 4)}, v{[2, 28][u]}, {srd(SWS)}, s{sHH[t]} offen {HHAUX}", tag="hhst%d" % t)
stamp("gelu")
p.extend(W("hhst1") + flag_store(sFHH, 2))
p.extend(apoll_issue(40, SWS))
p.extend(W("hhst2") + flag_store(sFHH, 3))
p.extend(apoll_check(40, SWS, 1))
stamp("hhpoll")

LA5 = int(E("LA5", "10"))
for pos in range(LA5):
    p.extend(hh_load(pos))
    if pos == 3:
        p.extend(apoll_issue(40, SWS))
KEEP, SEND, RECV = 96, 112, 128
p(f"""
s_add_u32 s{t2}, s{sW4K}, {EX3}
v_add_u32 v41, s{t2}, v2
v_xor_b32 v42, 4096, v41
v_lshlrev_b32 v43, 10, v20
v_lshl_add_u32 v43, v21, 4, v43
s_lshl_b32 s{sA}, s{sRT}, 15
s_lshl_b32 s{t2}, s{sLO}, 6
s_add_u32 s{sA}, s{sA}, s{t2}
""")
for pos in range(43):
    bf = w2_reg(pos)
    rd = w2_read(pos + 2) if 24 <= pos + 2 < 43 else []
    nl = pos + LA5
    p(mfma(v(SEND, 16), a(bf + 4, 4), v(AR[pos % 14], 4), v(SEND, 16) if pos else "0"))
    if pos == 12:
        p("s_barrier")
    p.extend(rd[:2])
    if nl in (14, 28):
        p.extend(apoll_check(40, SWS, 2 if nl == 14 else 3))
    if nl < 43:
        p.extend(hh_load(nl))
    p(mfma(v(KEEP, 16), a(bf, 4), v(AR[pos % 14], 4), v(KEEP, 16) if pos else v(HR, 16)))
    p.extend(rd[2:])
    if nl + LA5 == 28:
        p.extend(apoll_issue(40, SWS))
stamp("w2")
for i in range(4):
    p(f"ds_write_b128 v41, {v(SEND + 4 * i, 4)} offset:{i * 1024}")
p.wait_ds()
p("s_barrier")
for i in range(4):
    p(f"ds_read_b128 {v(RECV + 4 * i, 4)}, v42 offset:{i * 1024}")
for u in range(2):
    for i in range(4 * u, 4 * u + 4):
        p(f"v_pk_add_f32 {v(KEEP + 2 * i, 2)}, {v(KEEP + 2 * i, 2)}, {v(RECV + 2 * i, 2)}")
    for i in range(4 * u, 4 * u + 4):
        p(f"v_cvt_pk_bf16_f32 v{64 + i}, v{KEEP + 2 * i}, v{KEEP + 2 * i + 1}")
    p(f"v_permlane32_swap_b32 v{64 + 4 * u}, v{64 + 4 * u + 2}")
    p(f"v_permlane32_swap_b32 v{64 + 4 * u + 1}, v{64 + 4 * u + 3}")
    p(f"buffer_store_dwordx4 {v(64 + 4 * u, 4)}, v43, {srd(SOUT)}, s{sA} offen offset:{32 * u} {OUTAUX}")
if SPINAT == "end":
    stamp("end")
if STAMPS:
    p("s_waitcnt vmcnt(0)")
    stamp("end")
    p(f"""
s_lshl_b32 s{t2}, s2, 2
s_add_u32 s{t2}, s{t2}, s{sW}
s_lshl_b32 s{t2}, s{t2}, 8
s_add_u32 s{t2}, s{t2}, {WS_ST}
v_lshlrev_b32 v22, 2, v1
buffer_store_dword v7, v22, {srd(SWS)}, s{t2} offen
""")
p("s_endpgm")
p("s_waitcnt vmcnt(0) lgkmcnt(0)")
p.extend(tail)
p("L_cold:")

p("L_fallback:")
p("s_nop 15")
MX = 22
for q in range(2):
    mine = [(t, c) for (qq, t, c) in steps if qq == q]
    p(f"v_mov_b32 v{MX}, 0xff7fffff")
    for t, c in mine:
        p(mfma(v(SB[0], 16), kfrag(t), a(OQ + 4 * q, 4), v(c, 16) if c else "0"))
        p(f"v_max3_f32 v23, v{SB[0]}, v{SB[0] + 1}, v{SB[0] + 2}")
        for r in range(3, 15, 2):
            p(f"v_max3_f32 v23, v23, v{SB[0] + r}, v{SB[0] + r + 1}")
        p(f"v_max_f32 v23, v23, v{SB[0] + 15}")
        if t[0] == "h":
            p(f"s_cmp_eq_u32 s{sVAL[t[1] >> 1]}, 0")
            p(f"s_cselect_b32 s{t2}, 0xf149f2ca, 0")
            p(f"v_add_f32 v23, s{t2}, v23")
        p(f"v_max_f32 v{MX}, v{MX}, v23")
    p(f"""
v_mov_b32 v23, v{MX}
v_permlane32_swap_b32 v{MX}, v23
v_max_f32 v{MX}, v{MX}, v23
""")
    first_ = True
    for t, c in mine:
        S, P_ = SB[0], PB[0]
        p(mfma(v(S, 16), kfrag(t), a(OQ + 4 * q, 4), v(c, 16) if c else "0"))
        for r in range(16):
            p(f"v_sub_f32 v{S + r}, v{S + r}, v{MX}")
        for r in range(16):
            p(f"v_min_f32 v{S + r}, 0, v{S + r}")
        for r in range(16):
            p(f"v_exp_f32 v{S + r}, v{S + r}")
        for r in range(8):
            p(f"v_cvt_pk_bf16_f32 v{P_ + r}, v{S + 2 * r}, v{S + 2 * r + 1}")
        for u in range(2):
            p(mfma(v(OA[q], 16), vfrag(t, u), v(P_ + 4 * u, 4), "0" if first_ else v(OA[q], 16)))
            first_ = False
p("s_waitcnt vmcnt(0)")
o_epilogue(p, 0, True)
o_epilogue(p, 1, True)
p("s_waitcnt vmcnt(0)")
p("s_branch L_fbret")
p("L_end:")

waited = set()
for i in p.ins:
    if i.cls == "wait_vm":
        waited.add(i.tag)
    elif i.cls == "vmem" and i.tag in waited and i.tag != "ost":
        raise SystemExit("load issued after its wait: " + i.tag)
ABL = E("ABL", "")
if ABL:
    keep = []
    for i in p.ins:
        if i.text.startswith("s_cbranch_vccnz L_fallback"):
            continue
        if "dma" in ABL and i.cls == "vmem" and "m0" in i.rd:
            continue
        if "ld" in ABL and i.cls == "vmem" and i.mn == "buffer_load_dwordx4" and "m0" not in i.rd:
            continue
        if "mfma" in ABL and i.cls == "mfma":
            continue
        keep.append(i)
    p.ins = keep
body, ins, nops = finalize(p)
print("instructions:", sum(1 for i in ins if i.cls not in ("label", "none")), "nop states:", nops, file=sys.stderr)

ref = open("sequential_preLN__sliding_block__mixer_channel_mlp__prompt.s.ref").read()
head = []
for line in ref.split("\n"):
    if not line.startswith(";"):
        break
    if "@launch" in line:
        line = "; @launch grid=(256,1,1) block=(256,1,1) lds=163840"
    head.append(line)
out = "\n".join(head) + f"""
.amdgcn_target "amdgcn-amd-amdhsa--gfx950"
.text
.globl {NAME}
.p2align 8
.type {NAME},@function
{NAME}:
{body}    s_endpgm
.section .rodata,"a"
.p2align 6
.amdhsa_kernel {NAME}
  .amdhsa_next_free_vgpr 512
  .amdhsa_next_free_sgpr 102
  .amdhsa_accum_offset 256
  .amdhsa_group_segment_fixed_size 0
  .amdhsa_kernarg_size 88
  .amdhsa_user_sgpr_count 2
  .amdhsa_user_sgpr_kernarg_segment_ptr 1
  .amdhsa_system_sgpr_workgroup_id_x 1
.end_amdhsa_kernel
"""
open(sys.argv[1] if len(sys.argv) > 1 else "out.s", "w").write(out)
```

```python
import re

TRANS = ("v_exp_f32", "v_log_f32", "v_rcp_f32", "v_rsq_f32", "v_sqrt_f32", "v_sin_f32", "v_cos_f32")
NO_DST_SALU = ("s_cmp", "s_cbranch", "s_branch", "s_waitcnt", "s_barrier", "s_nop", "s_bitcmp", "s_endpgm",
               "s_setprio", "s_sleep", "s_setreg")

_reg_re = re.compile(r"^-?(?:abs\()?\|?([vas])(?:(\d+)|\[(\d+):(\d+)\])\|?\)?$")


def regs_of(op):
    op = op.strip()
    if op in ("vcc", "exec"):
        return {op}
    if op in ("vcc_lo", "vcc_hi"):
        return {"vcc"}
    if op in ("exec_lo", "exec_hi"):
        return {"exec"}
    if op == "m0":
        return {"m0"}
    m = _reg_re.match(op)
    if not m:
        return set()
    if m.group(2) is not None:
        return {m.group(1) + m.group(2)}
    return {m.group(1) + str(i) for i in range(int(m.group(3)), int(m.group(4)) + 1)}


class Ins:
    __slots__ = ("text", "mn", "ops", "rd", "wr", "cls", "tag", "cond", "shadow", "srcC", "dstD", "passes",
                 "wide", "data", "dpp", "ab")

    def __init__(self, text, tag=None, cond=False, shadow=False):
        self.text = text
        self.tag = tag
        self.cond = cond
        self.shadow = shadow
        self.rd = set()
        self.wr = set()
        self.srcC = set()
        self.dstD = set()
        self.ab = set()
        self.data = set()
        self.passes = 0
        self.wide = False
        self.dpp = False
        t = text.split(";")[0].strip()
        if not t or t.endswith(":") or t.startswith("."):
            self.mn = ""
            self.ops = []
            self.cls = "label" if t.endswith(":") else "none"
            return
        parts = t.split(None, 1)
        self.mn = mn = parts[0]
        rest = parts[1] if len(parts) > 1 else ""
        ops, depth, cur = [], 0, ""
        for ch in rest:
            if ch in "[(":
                depth += 1
            if ch in "])":
                depth -= 1
            if ch == "," and depth == 0:
                ops.append(cur.strip())
                cur = ""
            else:
                cur += ch
        if cur.strip():
            ops.append(cur.strip())
        mods = ""
        if ops:
            last = ops[-1].split(None, 1)
            ops[-1] = last[0]
            mods = last[1] if len(last) > 1 else ""
        self.ops = ops
        R = [regs_of(o) for o in ops]
        un = lambda l: set().union(*l) if l else set()
        if mn.startswith("v_mfma"):
            self.cls = "mfma"
            self.wr = R[0]
            self.dstD = R[0]
            self.ab = R[1] | R[2]
            self.srcC = R[3]
            self.rd = R[1] | R[2] | R[3]
            self.passes = 8 if "32x32x16" in mn else 4
            assert "32x32x16" in mn or "16x16x32" in mn
        elif mn.startswith("v_"):
            base = mn.replace("_e32", "").replace("_e64", "").replace("_dpp", "")
            self.cls = "trans" if base in TRANS else ("dot" if base.startswith("v_dot") else "valu")
            self.dpp = mn.endswith("_dpp")
            if base == "v_nop":
                pass
            elif base.startswith("v_permlane"):
                self.wr = R[0] | R[1]
                self.rd = R[0] | R[1]
            elif "_co_" in base:
                self.wr = R[0] | R[1]
                self.rd = un(R[2:])
            else:
                self.wr = R[0]
                self.rd = un(R[1:])
                if base.startswith(("v_fmac", "v_dot2c", "v_pk_fmac")) or self.dpp or base.startswith("v_writelane"):
                    self.rd |= R[0]
        elif mn.startswith("ds_"):
            self.cls = "ds"
            if mn.startswith(("ds_read", "ds_bpermute", "ds_permute", "ds_swizzle")):
                self.wr = R[0]
                self.rd = un(R[1:])
            else:
                self.rd = un(R)
        elif mn.startswith("buffer_"):
            self.cls = "vmem"
            if mn.startswith("buffer_load"):
                if " lds" in " " + mods:
                    self.rd = un(R) | {"m0"}
                else:
                    self.wr = R[0]
                    self.rd = un(R[1:])
            elif mn.startswith("buffer_store"):
                self.rd = un(R)
                self.data = R[0]
                self.wide = mn.endswith(("x3", "x4"))
            elif mn.startswith("buffer_atomic"):
                self.rd = un(R)
                if "sc0" in mods:
                    self.wr = R[0]
        elif mn.startswith(("s_load", "s_memtime", "s_memrealtime", "s_buffer_load")):
            self.cls = "smem"
            self.wr = R[0]
            self.rd = un(R[1:])
        elif mn.startswith("s_"):
            self.cls = "salu"
            if mn.startswith(NO_DST_SALU):
                self.rd = un(R)
                if mn.startswith("s_cbranch_vcc"):
                    self.rd = {"vcc"}
            else:
                self.wr = R[0]
                self.rd = un(R[1:])
                if "saveexec" in mn:
                    self.wr = self.wr | {"exec"}
        else:
            raise ValueError("unknown instr: " + text)


class Prog:
    def __init__(self):
        self.ins = []

    def __call__(self, text, **kw):
        for line in text.strip("\n").split("\n"):
            line = line.strip()
            if line:
                self.ins.append(Ins(line, **kw))
        return self

    def wait_vm(self, tag):
        i = Ins("")
        i.cls = "wait_vm"
        i.tag = tag
        self.ins.append(i)

    def wait_ds(self, tag=None):
        i = Ins("")
        i.cls = "wait_ds"
        i.tag = tag
        self.ins.append(i)

    def extend(self, other):
        self.ins.extend(other.ins if isinstance(other, Prog) else other)


def interleave(main, fills):
    n = len(main)
    extra = [[] for _ in range(n)]
    for groups, a, b in fills:
        m = len(groups)
        span = b - a + 1
        for i, g in enumerate(groups):
            extra[a + (i * span) // m].extend(g)
    out = []
    for s, e in zip(main, extra):
        out.extend(s)
        out.extend(e)
    return out


def G(text, **kw):
    return Prog()(text, **kw).ins


def insert_waits(ins, verbose=False):
    out = []
    vm = []
    lg = []

    def emit_wait(nv, nl):
        parts = []
        if nv is not None:
            parts.append("vmcnt(%d)" % min(nv, 62))
            keep = min(nv, 62)
            cnt, idx = 0, len(vm)
            while idx > 0 and (cnt < keep):
                idx -= 1
                if not vm[idx].cond:
                    cnt += 1
            del vm[:idx]
        if nl is not None:
            parts.append("lgkmcnt(%d)" % min(nl, 14))
            keep = min(nl, 14)
            del lg[:max(0, len(lg) - keep)]
        out.append(Ins("s_waitcnt " + " ".join(parts)))

    def younger_vm(idx):
        return sum(1 for x in vm[idx + 1:] if not x.cond)

    for I in ins:
        if I.cls == "wait_vm":
            idx = [k for k, x in enumerate(vm) if x.tag == I.tag]
            if idx:
                emit_wait(younger_vm(idx[-1]), None)
            continue
        if I.cls == "wait_ds":
            if I.tag is None:
                if lg:
                    emit_wait(None, 0)
            else:
                idx = [k for k, x in enumerate(lg) if x.tag == I.tag]
                if idx:
                    n = len(lg) - 1 - idx[-1]
                    if any(x.cls == "smem" for x in lg):
                        n = 0
                    emit_wait(None, n)
            continue
        if I.shadow:
            out.append(I)
            continue
        if I.mn == "s_waitcnt":
            m = re.search(r"vmcnt\((\d+)\)", I.text)
            if m:
                assert int(m.group(1)) == 0
                vm.clear()
            m = re.search(r"lgkmcnt\((\d+)\)", I.text)
            if m:
                assert int(m.group(1)) == 0
                lg.clear()
            out.append(I)
            continue
        touch = I.rd | I.wr
        nv = nl = None
        for k in range(len(vm) - 1, -1, -1):
            if vm[k].wr & touch:
                nv = younger_vm(k)
                break
        for k in range(len(lg) - 1, -1, -1):
            if lg[k].wr & touch:
                nl = len(lg) - 1 - k
                if any(x.cls == "smem" for x in lg):
                    nl = 0
                break
        if nv is not None or nl is not None:
            emit_wait(nv, nl)
        out.append(I)
        if I.cls == "vmem":
            vm.append(I)
            assert sum(1 for x in vm) <= 63 or True
        elif I.cls in ("ds", "smem"):
            assert not I.cond
            lg.append(I)
    return out


def need_states(P, C):
    n = 0
    pv = P.cls in ("valu", "trans", "dot")
    cv = C.cls in ("valu", "trans", "dot")
    vw = {r for r in P.wr if r[0] in "va" and r != "vcc"}
    sw = {r for r in P.wr if r[0] == "s" or r == "vcc"}
    if pv:
        if C.cls == "mfma" and vw & C.rd:
            n = max(n, 3 if P.cls == "dot" else 2)
        if cv:
            if C.mn.startswith(("v_readfirstlane", "v_readlane")) and vw & C.rd:
                n = max(n, 1)
            if C.mn.startswith("v_permlane") and vw & C.rd:
                n = max(n, 2)
            if C.dpp and vw & C.rd:
                n = max(n, 2)
            if sw & C.rd:
                n = max(n, 4 if C.mn.startswith(("v_readlane", "v_writelane")) else 2)
            if P.cls == "trans" and C.cls != "trans" and vw & C.rd:
                n = max(n, 1)
        if P.cls == "trans" and C.cls in ("vmem", "ds") and vw & C.rd:
            n = max(n, 1)
        if C.cls == "vmem" and sw & C.rd:
            n = max(n, 5)
        if P.cls == "dot" and vw & (C.rd | C.wr):
            same = C.mn == P.mn
            onlyC = False
            if same:
                if P.mn.startswith("v_dot2c"):
                    onlyC = not (vw & set().union(*[regs_of(o) for o in C.ops[1:]]))
                else:
                    onlyC = not (vw & (regs_of(C.ops[1]) | regs_of(C.ops[2])))
            if not (same and onlyC):
                n = max(n, 3)
    if P.cls == "mfma":
        far = {8: 12, 4: 8}[P.passes]
        ovl = {8: 10, 4: 6}[P.passes]
        war = {8: 7, 4: 3}[P.passes]
        if C.cls == "mfma":
            if P.dstD & C.ab:
                n = max(n, far)
            if P.dstD & C.srcC:
                if not (P.dstD == C.srcC and P.passes == C.passes):
                    n = max(n, ovl)
            elif P.dstD & C.dstD:
                n = max(n, ovl)
        elif cv:
            if P.dstD & (C.rd | C.wr):
                n = max(n, far)
            if P.srcC & C.wr:
                n = max(n, war)
        elif C.cls in ("vmem", "ds"):
            if P.dstD & (C.rd | C.wr):
                n = max(n, far)
            if P.srcC & C.wr:
                n = max(n, war)
    if P.cls == "salu" and "m0" in P.wr and C.cls == "vmem" and "m0" in C.rd:
        n = max(n, 1)
    if P.cls == "vmem" and P.wide and P.data & C.wr:
        n = max(n, 2)
    return n


def states_of(I):
    if I.cls in ("label", "none"):
        return 0
    if I.mn == "s_nop":
        return int(I.ops[0]) + 1
    return 1


def insert_nops(ins):
    out = []
    total = 0
    for I in ins:
        if I.cls not in ("label", "none"):
            need, dist = 0, 0
            for P in reversed(out):
                if dist >= 12:
                    break
                if P.cls in ("label", "none"):
                    continue
                r = need_states(P, I) - dist
                if r > need:
                    need = r
                if not P.cond:
                    dist += states_of(P)
            if need > 0:
                nop = Ins("s_nop %d" % (need - 1))
                nop.cond = I.cond
                out.append(nop)
                total += need
        out.append(I)
    return out, total


def finalize(prog):
    ins = insert_waits(prog.ins)
    ins, nops = insert_nops(ins)
    text = []
    for I in ins:
        if I.cls == "label":
            text.append(I.text)
        else:
            text.append("    " + I.text)
    return "\n".join(text) + "\n", ins, nops
```

```python
import sys, os, struct, math
sys.path.insert(0, os.path.dirname(os.path.abspath(__file__)))
from asmgen import *

NAME = "sequential_preLN__sliding_block__mixer_channel_mlp__prompt_kernel"
E = lambda k, d: os.environ.get(k, d)
STAMPS = int(E("STAMPS", "0"))
FORCE_FB = int(E("FORCE_FB", "0"))
FORCE_SLOW = int(E("FORCE_SLOW", "0"))
SPINAT = E("SPINAT", "")
SPINUS = int(E("SPINUS", "60"))
XAUX = E("XAUX", "nt")
OHPLAIN = int(E("OHPLAIN", "0"))
HHPLAIN = int(E("HHPLAIN", "0"))
OHAUX = "" if OHPLAIN else "sc1"
HHAUX = "" if HHPLAIN else "sc1"
TAUX = E("TAUX", "")
OUTAUX = E("OUTAUX", "")
WTOUCH = int(E("WTOUCH", "1"))


def f2u(x):
    return "0x%08x" % struct.unpack("<I", struct.pack("<f", x))[0]


WS_KVF = 0x0000
WS_GF = 0x8000
WS_STAT = 0x40000
WS_KV = 0x100000
WS_O = 0x500000
WS_H = 0x700000
WS_HH = 0x900000
WS_ST = 0x1000000
WS_SIZE = 0x1100000

SX, SWQ, SWO, SW1, SW2, SOUT, SWS, SDBG, SB1, SB2, SKV = 8, 12, 16, 20, 24, 28, 32, 36, 40, 44, 48
sW, sJ, sRB, sVID, sROT, sT0 = 52, 53, 54, 55, 56, 57
sRT, sLO = 58, 59
sONE, sMSK = 60, 61
t0, t1, t2, t3, t4, t5 = 62, 63, 64, 65, 66, 67
sFKV, sFO, sFH, sFHH = 68, 69, 70, 71
sSPIN = 72
sVAL = [73, 74, 75, 76]
sW4K = 77
sC = [78, 79]
sSLOW = 80
sTW = 81
sST0 = 82
sKO = list(range(84, 92))
sA, sB, sD, sE = 92, 93, 94, 7
sW3K = 95
sLD = 100
sVM = 96
sF1 = 98
vFV = {1: 4, 2: 16, 3: 17}


def srd(n):
    return "s[%d:%d]" % (n, n + 3)


def v(n, c=1):
    return "v%d" % n if c == 1 else "v[%d:%d]" % (n, n + c - 1)


def a(n, c=1):
    return "a%d" % n if c == 1 else "a[%d:%d]" % (n, n + c - 1)


def mfma(d, A, B, C):
    return "v_mfma_f32_32x32x16_bf16 %s, %s, %s, %s" % (d, A, B, C)


p = Prog()
tail = Prog()
nst = [0]


def stamp(name):
    if name == SPINAT:
        p("s_waitcnt lgkmcnt(0)")
        p("L_spin:")
        p("s_memrealtime s[4:5]")
        p("s_waitcnt lgkmcnt(0)")
        p("s_sub_u32 s4, s4, s%d" % sST0)
        p("s_cmp_lt_u32 s4, %d" % (SPINUS * 100))
        p("s_cbranch_scc1 L_spin")
    if not STAMPS or name in E("NOST", "").split(","):
        return
    i = nst[0]
    nst[0] += 1
    assert i < 30
    p("s_waitcnt lgkmcnt(0)")
    p("s_memrealtime s[4:5]")
    p("s_memtime s[%d:%d]" % (sST0, sST0 + 1))
    p("s_waitcnt lgkmcnt(0)")
    p("v_writelane_b32 v7, s4, %d ; stamp %s" % (i, name))
    p("v_writelane_b32 v7, s%d, %d" % (sST0, 32 + i))


lab = [0]


def spin_code(q, L, vaddr, srdn, ld, need):
    q("s_mov_b32 s%d, 0" % sSPIN)
    q(L + ":")
    q("%s v3, %s, %s, 0 offen sc1" % (ld, v(vaddr), srd(srdn)))
    q("s_add_u32 s%d, s%d, 1" % (sSPIN, sSPIN))
    q("s_bitcmp1_b32 s%d, 20" % sSPIN)
    q("s_cbranch_scc1 %s_x" % L)
    q("s_waitcnt vmcnt(0)")
    q("v_cmp_gt_u32 vcc, %d, v3" % need)
    q("s_cbranch_vccnz %s" % L)
    q(L + "_x:")
    q("s_waitcnt vmcnt(0)")


def poll(vaddr, srdn, ld, need=1):
    lab[0] += 1
    spin_code(p, "L_poll%d" % lab[0], vaddr, srdn, ld, need)


def apoll_issue(vaddr, srdn, ld="buffer_load_dword"):
    return G("%s v3, %s, %s, 0 offen sc1" % (ld, v(vaddr), srd(srdn)))


def apoll_check(vaddr, srdn, need=1, ld="buffer_load_dword"):
    lab[0] += 1
    L = "L_ap%d" % lab[0]
    g = Prog()
    g("v_cmp_gt_u32 vcc, %d, v3" % need)
    g("s_cbranch_vccnz %s_s" % L)
    g(L + "_r:")
    tail(L + "_s:")
    spin_code(tail, L, vaddr, srdn, ld, need)
    tail("s_branch %s_r" % L)
    return g.ins


def flag_store(soff, val=1):
    lab[0] += 1
    L = "L_fl%d" % lab[0]
    g = Prog()
    g("s_cmp_lg_u32 s%d, 0" % sSLOW)
    g("s_mov_b64 exec, 1")
    g("s_cbranch_scc1 %s" % L)
    g("buffer_store_dword v%d, v5, %s, s%d offen" % (vFV[val], srd(SWS), soff))
    g(L + "_r:")
    g("s_mov_b64 exec, -1")
    tail(L + ":")
    tail("buffer_store_dword v%d, v5, %s, s%d offen sc1" % (vFV[val], srd(SWS), soff))
    tail("s_branch %s_r" % L)
    return g.ins


def kv_flag_store():
    g = Prog()
    g("s_mov_b64 exec, s[%d:%d]" % (sF1, sF1 + 1))
    g("buffer_store_dword v4, v5, %s, s%d offen sc1" % (srd(SWS), sFKV), cond=True)
    g("s_mov_b64 exec, -1")
    return g.ins


def W(tag):
    g = Prog()
    g.wait_vm(tag)
    return g.ins


def WD(tag=None):
    g = Prog()
    g.wait_ds(tag)
    return g.ins


BAR = lambda: G("s_barrier")


def spread(body, loads, start=0, step=None):
    n = len(loads)
    if step is None:
        step = max(1, (len(body) - start) // n)
    out, k = [], 0
    for i, ins in enumerate(body):
        if k < n and i >= start + k * step:
            out.extend(loads[k])
            k += 1
        out.append(ins)
    for g in loads[k:]:
        out.extend(g)
    return out


def split_dma(group):
    out, cur = [], []
    for i in group:
        cur.append(i)
        if i.cls == "vmem":
            out.append(cur)
            cur = []
    assert not cur
    return out


p("""
s_load_dwordx2 s[8:9], s[0:1], 0
s_load_dwordx2 s[32:33], s[0:1], 80
s_cmpk_ge_u32 s2, 256
s_cbranch_scc1 L_end
""")
if SPINAT:
    p("s_memrealtime s[%d:%d]" % (sST0, sST0 + 1))
if STAMPS:
    p("s_memrealtime s[4:5]")
    p("s_memtime s[%d:%d]" % (sST0, sST0 + 1))
p(f"""
s_getpc_b64 s[{SKV}:{SKV + 1}]
L_pc0:
s_mov_b32 s{SKV + 2}, L_cold-L_pc0
s_mov_b32 s{SKV + 3}, 0x20000
s_lshr_b32 s{t0}, s2, 3
v_lshl_add_u32 v3, s{t0}, 8, v0
v_lshlrev_b32 v3, 2, v3
buffer_load_dword v3, v3, {srd(SKV)}, 0 offen
s_load_dwordx2 s[12:13], s[0:1], 8
v_lshrrev_b32 v1, 6, v0
s_and_b32 s{t3}, s2, 7
v_readfirstlane_b32 s{sW}, v1
v_and_b32 v1, 63, v0
s_add_u32 s{sJ}, s{t0}, {E("JROT", "0")}
s_and_b32 s{sJ}, s{sJ}, 7
s_lshr_b32 s{t0}, s{t0}, 3
s_lshl_b32 s{sRB}, s{t3}, 2
s_add_u32 s{sRB}, s{sRB}, s{t0}
s_lshl_b32 s{sVID}, s{sRB}, 3
s_add_u32 s{sVID}, s{sVID}, s{sJ}
s_lshr_b32 s{sRT}, s{sW}, 1
s_and_b32 s{sLO}, s{sW}, 1
s_lshl_b32 s{sW4K}, s{sW}, 12
""")
p("s_mov_b32 s%d, 0x20000" % (SX + 3))
p(f"""
v_lshrrev_b32 v8, 3, v1
v_and_b32 v9, 7, v1
s_lshl_b32 s{t2}, s{sW}, 14
v_lshlrev_b32 v6, 10, v8
v_lshl_add_u32 v6, v9, 4, v6
v_add_u32 v6, s{t2}, v6
v_add_u32 v11, 8192, v6
s_lshl_b32 s{t0}, s{sRB}, 16
s_lshl_b32 s{t1}, s{sJ}, 7
""")
p("s_waitcnt lgkmcnt(0)")


def mk_srd(q, n, soff, total):
    if soff is None:
        q("s_mov_b32 s%d, %d" % (n + 2, total))
    else:
        q("s_add_u32 s%d, s%d, s%d" % (n, n, soff))
        q("s_addc_u32 s%d, s%d, 0" % (n + 1, n + 1))
        q("s_sub_u32 s%d, %d, s%d" % (n + 2, total, soff))


if STAMPS:
    nst[0] = 1
    p("v_writelane_b32 v7, s4, 0")
    p("v_writelane_b32 v7, s%d, 32" % sST0)
stamp("karg")
mk_srd(p, SX, t0, 2048 * 1024)
XR = 64


def x_load(i):
    g = Prog()
    if i == 0:
        g(f"s_mov_b32 s{t4}, s{t1}")
    else:
        g(f"s_add_u32 s{t4}, s{t4}, 128")
        g(f"s_and_b32 s{t4}, s{t4}, 0x380")
    g(f"buffer_load_dwordx4 {v(XR + i * 8, 4)}, v6, {srd(SX)}, s{t4} offen {XAUX}")
    g(f"buffer_load_dwordx4 {v(XR + i * 8 + 4, 4)}, v11, {srd(SX)}, s{t4} offen {XAUX}")
    return split_dma(g.ins)


KVSLOT = [32768 + 16384 * n for n in range(8)]
QSLOT = [32768, 49152, 65536, 81920]


def kv_dma(n):
    g = Prog()
    g(f"s_add_u32 m0, s{sW4K}, {KVSLOT[n]}")
    for i in range(4):
        g(f"buffer_load_dwordx4 v{12 + i}, {srd(SWQ)}, s{sKO[n]} offen offset:{i * 1024} lds", tag="kv%d" % n)
    return split_dma(g.ins)


def q_dma(n):
    g = Prog()
    g(f"s_cmp_eq_u32 s{sRT}, 0")
    g(f"s_cselect_b32 s{t5}, s{sKO[2 * n]}, s{sKO[2 * n + 1]}")
    g(f"s_add_u32 m0, s{sW4K}, {QSLOT[n]}")
    for i in range(4):
        g(f"buffer_load_dwordx4 v{16 + i}, {srd(SWQ)}, s{t5} offen offset:{i * 1024} lds", tag="q%d" % n)
    return split_dma(g.ins)


def touch(vreg, srdn, mask):
    return G(f"""
s_mov_b64 exec, {mask}
buffer_load_dword v{vreg}, v{vreg}, {srd(srdn)}, 0 offen
s_mov_b64 exec, -1
""")


for i in range(2):
    for g in x_load(i):
        p.extend(g)
p("""
s_load_dwordx2 s[16:17], s[0:1], 16
s_load_dwordx2 s[20:21], s[0:1], 32
s_load_dwordx2 s[40:41], s[0:1], 40
s_load_dwordx2 s[24:25], s[0:1], 48
s_load_dwordx2 s[44:45], s[0:1], 56
s_load_dwordx2 s[28:29], s[0:1], 64
s_load_dwordx2 s[36:37], s[0:1], 72
""")


def c3touch(vreg, srdn, n):
    return G(f"""
s_lshr_b32 s{sC3}, s2, 3
s_lshl_b32 s{sC3}, s{sC3}, 2
s_add_u32 s{sC3}, s{sC3}, s{sW}
s_mul_i32 s{sC3}, s{sC3}, {n}
v_add_lshl_u32 v{vreg}, v1, s{sC3}, 10
s_mov_b64 exec, {(1 << n) - 1}
buffer_load_dword v{vreg}, v{vreg}, {srd(srdn)}, 0 offen offset:384
s_mov_b64 exec, -1
""")


sC3 = 3
C3 = E("C3", "x")


def atom(q, text):
    q.ins.append(G(text))


class L2:
    def __init__(self):
        self.ins = []

    def __call__(self, text):
        for i in G(text):
            self.ins.append([i])


def spread_atoms(atoms, loads, start=0, step=None):
    total = sum(len(x) for x in atoms)
    n = len(loads)
    if step is None:
        step = max(1, (total - start) // max(n, 1))
    out, k, cnt = [], 0, 0
    for at in atoms:
        while k < n and cnt >= start + k * step:
            out.extend(loads[k])
            k += 1
        out.extend(at)
        cnt += len(at)
    for g in loads[k:]:
        out.extend(g)
    return out


u_ = L2()
sGF = sROT
for n, sz in ((SWQ, 512 * 3072), (SWS, WS_SIZE), (SWO, 512 * 1024), (SW1, 512 * 2752), (SW2, 1376 * 1024)):
    u_("s_mov_b32 s%d, 0x20000" % (n + 3))
    u_("s_mov_b32 s%d, %d" % (n + 2, sz))
u_(f"""
s_lshl_b32 s{t3}, s2, 2
s_add_u32 s{t3}, s{t3}, s{sW}
s_mul_i32 s{t2}, s{t3}, 12
v_add_lshl_u32 v22, v1, s{t2}, 7
s_mul_i32 s{t2}, s{t3}, 11
v_add_lshl_u32 v23, v1, s{t2}, 7
s_mul_i32 s{t2}, s{t3}, 4
v_add_lshl_u32 v25, v1, s{t2}, 7
v_lshrrev_b32 v10, 2, v1
v_and_b32 v10, 4, v10
v_xor_b32 v10, v10, v9
v_lshlrev_b32 v10, 4, v10
v_add_u32 v10, s{t1}, v10
v_mul_u32_u24 v19, 3072, v8
v_add_u32 v19, v19, v10
s_mul_i32 s{t2}, s{sW}, 49152
v_add_u32 v14, s{t2}, v19
v_add_u32 v12, 1024, v14
v_add_u32 v13, 24576, v14
v_add_u32 v15, {24576 - 1024}, v14
v_mov_b32 v5, 0
s_mul_i32 s{sKO[0]}, s{sJ}, 196608
""")
u_(f"""
s_add_u32 s{t0}, s{t0}, s{t1}
""")


def srd_atom(n, soff, total):
    q = Prog()
    q("s_mov_b32 s%d, 0x20000" % (n + 3))
    mk_srd(q, n, soff, total)
    u_.ins.append(q.ins)


srd_atom(SOUT, t0, 2048 * 1024)
u_(f"""
s_lshl_b32 s{sFKV}, s{sVID}, 7
s_lshr_b32 s{sGF}, s{sVID}, 4
s_lshl_b32 s{sGF}, s{sGF}, 10
s_add_u32 s{sGF}, s{sGF}, {WS_GF}
s_and_b32 s{t2}, s{sVID}, 15
s_mul_i32 s{sT0}, s{t2}, 3
s_min_u32 s{sT0}, s{sT0}, 40
v_lshlrev_b32 v2, 4, v1
v_and_b32 v20, 31, v1
v_lshrrev_b32 v21, 5, v1
v_mov_b32 v36, 0
v_mov_b32 v37, 0
v_mov_b32 v38, 0
v_mov_b32 v39, 0
v_lshlrev_b32 v40, 7, v1
v_add_u32 v40, s{sFKV}, v40
v_add_u32 v41, s{sGF}, v2
v_subrev_u32 v41, 256, v41
v_cmp_gt_u32 vcc, 16, v1
s_or_b32 s{t2}, s{t2}, s{sW}
v_cndmask_b32 v40, v41, v40, vcc
""")
zf = G(f"""
s_cmp_eq_u32 s{t2}, 0
s_cselect_b32 s{sLD}, 1, 0
s_mov_b32 s{sLD + 1}, 0
s_cselect_b32 exec_lo, -1, 0
s_cselect_b32 exec_hi, -1, 0
""") + G(f"buffer_store_dwordx4 v[36:39], v40, {srd(SWS)}, 0 offen sc1", cond=True) + G("s_mov_b64 exec, -1")
u_.ins.append(zf)
u_(f"""
s_mov_b32 s{sONE}, 0x3f803f80
s_mov_b32 s{sMSK}, 0xffff0000
s_mov_b32 s{sVM}, 0xffff
s_mov_b32 s{sVM + 1}, 0xffff
s_min_u32 s{sTW}, s{sW}, 2
""")
for n in range(1, 8):
    u_(f"s_add_u32 s{t2}, s{sJ}, {n}")
    u_(f"s_and_b32 s{t2}, s{t2}, 7")
    u_(f"s_mul_i32 s{sKO[n]}, s{t2}, 196608")
srd_atom(SB2, t1, 1024)
u_(f"s_lshl_b32 s{t0}, s{sT0}, 6")
srd_atom(SB1, t0, 2752)
srd_atom(SDBG, None, 256)
u_(f"s_mov_b32 s{SKV}, s{SWS}")
u_(f"s_mov_b32 s{SKV + 1}, s{SWS + 1}")
atom(u_, f"""
s_cmp_eq_u32 s{sW}, 0
s_cselect_b32 s{sF1}, 1, 0
s_mov_b32 s{sF1 + 1}, 0
s_getreg_b32 s{t2}, hwreg(HW_REG_XCC_ID, 0, 4)
s_lshl_b32 s{t2}, s{t2}, 1
s_or_b32 s{t2}, s{t2}, 1
v_mov_b32 v4, s{t2}
""")
u_(f"""
v_lshl_add_u32 v244, v8, 10, v10
v_add_u32 v245, {1 * 7168}, v244
v_add_u32 v246, {2 * 7168}, v244
v_add_u32 v247, {3 * 7168}, v244
""")
u_(f"""
s_mul_i32 s{t2}, s{sLO}, 98304
v_add_u32 v16, s{t2}, v19
v_add_u32 v17, {1 * (24576 - 1024)}, v16
v_add_u32 v18, {2 * (24576 - 1024)}, v16
v_add_u32 v19, {3 * (24576 - 1024)}, v16
""")
HV, OV, OK_, OQ, HK = 160, 224, 240, 248, 176
for i in range(16):
    u_(f"v_accvgpr_write_b32 a{OV + i}, s{sONE}")
for b in range(4):
    atom(u_, f"""
s_cmp_ge_u32 s{sRB}, {4 - b}
s_cselect_b32 s{sVAL[b]}, {WS_SIZE}, 0
""")
    u_(mfma(a(HV + 16 * b, 16), "v[36:39]", "v[36:39]", a(OV, 16)))
atom(u_, f"""
s_cmp_lt_u32 s{sRB}, 4
s_cbranch_scc1 L_head
L_head_r:
""")
tail("L_head:")
tail("s_nop 15")
for b in range(4):
    tail(mfma(a(HV + 16 * b, 16), "v[36:39]", "v[36:39]", "0"))
    if b < 3:
        tail(f"s_cmp_ge_u32 s{sRB}, {3 - b}")
        tail("s_cbranch_scc1 L_head_r")
tail("s_branch L_head_r")
CC, CA = 208, 224
u_(f"""
v_lshlrev_b32 v42, 2, v21
v_sub_u32 v42, v20, v42
v_cvt_f32_i32 v42, v42
v_mov_b32 v43, {f2u(1e30)}
""")
for r in range(16):
    u_(f"v_fmaak_f32 v{CA + r}, v42, v43, {f2u((0.5 - ((r & 3) + 8 * (r >> 2))) * 1e30)}")
for r in range(16):
    u_(f"v_min_f32 v{CC + r}, 0, v{CA + r}")
    u_(f"v_min_f32_e64 v{CA + r}, 0, -v{CA + r}")
u_(f"""
v_xor_b32 v24, v8, v9
v_lshlrev_b32 v24, 4, v24
v_lshl_add_u32 v24, v9, 9, v24
s_lshl_b32 s{t2}, s{sRT}, 12
s_lshl_b32 s{t3}, s{sLO}, 8
s_add_u32 s{t3}, s{t3}, s{t2}
v_add_u32 v24, s{t3}, v24
v_xor_b32 v26, v21, v20
v_lshlrev_b32 v26, 4, v26
v_lshl_add_u32 v26, v21, 9, v26
v_add_u32 v26, s{t2}, v26
v_xor_b32 v27, 32, v26
v_xor_b32 v28, 64, v26
v_xor_b32 v29, 96, v26
""")
u_(f"""
v_bfe_u32 v42, v1, 2, 2
v_lshrrev_b32 v43, 1, v42
v_xor_b32 v43, s{sLO}, v43
v_lshlrev_b32 v43, 6, v43
v_lshl_add_u32 v30, v42, 7, v43
v_bfe_u32 v43, v1, 4, 1
v_and_b32 v44, 3, v1
v_lshlrev_b32 v44, 3, v44
v_lshl_add_u32 v44, v43, 5, v44
v_add_u32 v30, v30, v44
v_lshl_add_u32 v42, v21, 2, v42
v_mul_u32_u24 v31, 192, v42
v_add_u32 v31, v31, v44
v_lshl_add_u32 v32, v21, 10, v30
v_add_u32 v33, 0x10000, v32
v_add_u32 v34, 0x20000, v32
v_lshl_add_u32 v30, v21, 9, v30
""")
EXC = 0
XRES = 24576
vVG, vEXW, vEVW, vXW0, vXW1, vEXR, vEVR = 248, 249, 250, 251, 252, 253, 254
u_(f"""
s_lshl_b32 s{t2}, s{sRB}, 1
s_add_u32 s{t2}, s{t2}, s{sRT}
s_lshl_b32 s{t2}, s{t2}, 4
s_lshl_b32 s{t3}, s{sJ}, 1
s_add_u32 s{t2}, s{t2}, s{t3}
s_add_u32 s{t2}, s{t2}, s{sLO}
s_lshl_b32 s{sA}, s{t2}, 12
s_add_u32 s{sA}, s{sA}, {WS_KV}
s_lshl_b32 s{sD}, s{t2}, 11
s_add_u32 s{sD}, s{sD}, {WS_H}
s_lshl_b32 s{sE}, s{t2}, 8
s_add_u32 s{sE}, s{sE}, {WS_STAT}
s_and_b32 s{sFH}, s{t2}, 63
s_lshl_b32 s{sFH}, s{sFH}, 2
s_add_u32 s{sFH}, s{sFH}, s{sGF}
s_add_u32 s{sFH}, s{sFH}, 256
s_and_b32 s{t2}, s{sVID}, 15
s_lshl_b32 s{t2}, s{t2}, 2
s_add_u32 s{sFO}, s{t2}, s{sW}
s_lshl_b32 s{sFO}, s{sFO}, 2
s_add_u32 s{sFO}, s{sFO}, s{sGF}
s_lshl_b32 s{sFHH}, s{sW}, 6
s_add_u32 s{sFHH}, s{sFHH}, s{t2}
s_add_u32 s{sFHH}, s{sFHH}, s{sGF}
s_add_u32 s{sFHH}, s{sFHH}, 512
v_and_b32 v35, 15, v1
v_lshlrev_b32 v35, 4, v35
v_lshl_add_u32 v35, v21, 8, v35
v_lshl_add_u32 v{vVG}, v43, 11, v35
s_mul_i32 s{t3}, s{sW}, 6144
s_add_u32 s{t3}, s{t3}, {EXC}
v_add_u32 v{vEXW}, s{t3}, v2
v_mul_u32_u24 v{vEVW}, 3072, v43
v_add3_u32 v{vEVW}, v{vEVW}, v35, s{t3}
s_mul_i32 s{sW3K}, s{sW}, 3072
s_add_u32 s{t3}, s{sW3K}, {EXC}
v_add_u32 v{vEXR}, s{t3}, v2
v_add_u32 v{vEVR}, s{t3}, v35
v_lshrrev_b32 v42, 1, v8
v_xor_b32 v{vXW0}, v42, v9
v_lshlrev_b32 v{vXW0}, 4, v{vXW0}
v_lshl_add_u32 v{vXW0}, v8, 7, v{vXW0}
s_lshl_b32 s{t3}, s{sW}, 11
s_add_u32 s{t3}, s{t3}, {EXC}
v_add_u32 v{vXW0}, s{t3}, v{vXW0}
v_xor_b32 v{vXW1}, 64, v{vXW0}
s_lshl_b32 s{sB}, s{sRB}, 6
s_lshl_b32 s{t3}, s{sJ}, 2
s_add_u32 s{sB}, s{sB}, s{t3}
s_add_u32 s{sB}, s{sB}, s{sW}
""")
ST = 36
B2R = 48
small = G(f"""
v_lshlrev_b32 v0, 3, v21
s_lshl_b32 s{t0}, s{sLO}, 6
""")
for u in range(4):
    small += G(f"buffer_load_dwordx2 {v(B2R + 2 * u, 2)}, v0, {srd(SB2)}, s{t0} offen offset:{16 * u}")
small += G(f"""
s_lshl_b32 s{t0}, s{sTW}, 6
v_lshlrev_b32 v0, 1, v20
buffer_load_ushort v0, v0, {srd(SB1)}, s{t0} offen
""")
u_("v_mov_b32 v243, v23")
w1t = touch(23, SW1, 0x7ff)
w2t = touch(243, SW2, 0x7ff)
TW1, TW2 = E("TW1", "kv"), E("TW2", "kv")
tok = {"tq": [touch(22, SWQ, 0xfff) + touch(25, SWO, 0xf)], "c3": [c3touch(240, SWQ, 12) + c3touch(241, SWO, 4)],
       "t1": [w1t], "t2": [w2t], "sm": [small]}
tok["ca"] = [G(f"""
s_lshr_b32 s{sC3}, s2, 3
s_lshl_b32 s{sC3}, s{sC3}, 2
s_add_u32 s{sC3}, s{sC3}, s{sW}
s_mul_i32 s{sC3}, s{sC3}, 6144
s_add_u32 s{sC3}, s{sC3}, {192 * 3072 + 1024}
v_lshrrev_b32 v242, 1, v1
v_add_lshl_u32 v242, v242, v1, 10
s_mov_b64 exec, 15
buffer_load_dword v242, v242, {srd(SWQ)}, s{sC3} offen offset:384
s_mov_b64 exec, -1
""")]
for n in range(4):
    tok["q%d" % n] = q_dma(n)


def stouch(srdn, rowbytes, lines, wait=False):
    g = Prog()
    g(f"""
s_lshr_b32 s4, s2, 1
s_lshl_b32 s4, s4, 2
s_add_u32 s4, s4, s{sW}
s_mul_i32 s4, s4, {rowbytes}
s_and_b32 s5, s2, 1
s_lshl_b32 s5, s5, 6
s_add_u32 s4, s4, s5
s_min_u32 s4, s4, {512 * rowbytes - 128 * max(lines) - 64}
s_add_u32 s4, s4, s{srdn}
s_addc_u32 s5, s{srdn + 1}, 0
""")
    if wait:
        g("s_waitcnt lgkmcnt(0)")
    for i in lines:
        g.ins.append(Ins(f"s_load_dword s0, s[4:5], {128 * i}"))
        g.ins[-1].wr = set()
    return g.ins


tok["sa"] = [stouch(SWQ, 3072, range(8, 23), True)]
tok["sb"] = [stouch(SWQ, 3072, [23] + list(range(8))) + stouch(SWO, 1024, range(6))]
tok["sc"] = [stouch(SWO, 1024, range(6, 8)) + stouch(SW1, 2752, range(10))]
tok["sd"] = [stouch(SW1, 2752, range(10, 22))]
tok["s1"] = [stouch(SW1, 2752, range(11))]
tok["s2"] = [stouch(SW1, 2752, range(11, 22))]
for i in range(2, 8):
    tok["x%d" % i] = x_load(i)
for n in range(8):
    tok["k%d" % n] = kv_dma(n)
ORDER = E("ORDER", "tq,x2,x3,x4,x5,x6,x7,c3,k0,k1,k2,k3,k4,k5,k6,k7,t1,t2,sm,q0,q1,q2,q3").split(",")
later = sum([tok[x] for x in ORDER], [])
xpos = {i: max(k_ for k_, g in enumerate(later) if g in tok["x%d" % i]) for i in range(2, 8)}
TW1 = "ln" if "sm" in ORDER else TW1
TW2 = "ln" if "t2" in ORDER else TW2
NF1, NF2 = int(E("NF1", "4")), int(E("NF2", "5"))
NF = NF1 + NF2
p.extend(spread_atoms(u_.ins, later[:NF1], 0 if ORDER[0] != "tq" else 36, int(E("NFSTEP", "12"))))
for g in later[NF1:NF]:
    p.extend(g)
later = later[NF:]
stamp("setup")

k = 0
for i in range(8):
    body = Prog()
    for r in range(4):
        for gq in range(2):
            x = XR + i * 8 + gq * 4 + r
            body(f"v_dot2c_f32_bf16 v{ST + 2 * gq}, s{sONE}, v{x}")
            body(f"v_dot2c_f32_bf16 v{ST + 2 * gq + 1}, v{x}, v{x}")
    take = int(E("NS", "22222222")[i])
    assert i < 2 or xpos[i] < NF + k
    p.extend(body.ins[:1])
    if i in (0, 4) and STAMPS > 1:
        stamp("x%d" % i)
    for g in later[k:k + take]:
        p.extend(g)
    k += take
    p.extend(body.ins[1:])
later = later[k:]
stamp("stats")
s = L2()
for mod in ("quad_perm:[1,0,3,2]", "quad_perm:[2,3,0,1]", "row_half_mirror"):
    for i in range(4):
        s(f"v_add_f32_dpp v{ST + i}, v{ST + i}, v{ST + i} {mod} row_mask:0xf bank_mask:0xf")
s(f"s_mov_b32 s{t2}, {f2u(1.0 / 512)}")
s(f"s_mov_b32 s{t3}, {f2u(1e-5)}")
for fmt in ("v_mul_f32 v{s}, s%d, v{s}" % t2, "v_mul_f32 v{q}, s%d, v{q}" % t2, "v_fma_f32 v{q}, -v{s}, v{s}, v{q}",
            "v_max_f32 v{q}, 0, v{q}", "v_add_f32 v{q}, s%d, v{q}" % t3, "v_rsq_f32 v{q}, v{q}",
            "v_mul_f32_e64 v{s}, -v{s}, v{q}"):
    for gq in range(2):
        s(fmt.format(s=ST + 2 * gq, q=ST + 2 * gq + 1))
p.extend(sum(s.ins, []))


def xn_read(i):
    return G(f"ds_read_b128 {a(4 * i, 4)}, v{26 + (i & 3)} offset:{((i >> 2) & 3) * 8192 + (i & 3) * 1024}", tag="xnr")


TMP = 40


def ln_half(hf, nld):
    k = 0
    for i in range(4 * hf, 4 * hf + 4):
        for gq in range(2):
            src = XR + i * 8 + gq * 4
            dst = src if i else 56 + gq * 4
            pr = v(ST + 2 * gq, 2)
            for r in range(4):
                p(f"v_lshlrev_b32 v{TMP + 2 * r}, 16, v{src + r}")
                p(f"v_and_b32 v{TMP + 2 * r + 1}, s{sMSK}, v{src + r}")
                if r == 2:
                    for _ in range(int(nld[4 * (i & 3) + 2 * gq])):
                        p.extend(pop_dm(16 * hf - 1))
            for r in range(4):
                p(f"v_pk_fma_f32 {v(TMP + 2 * r, 2)}, {v(TMP + 2 * r, 2)}, {pr}, {pr} op_sel:[0,1,0] op_sel_hi:[1,1,0]")
            for _ in range(int(nld[4 * (i & 3) + 2 * gq + 1])):
                p.extend(pop_dm(16 * hf - 1))
            for r in range(4):
                p(f"v_cvt_pk_bf16_f32 v{dst + r}, v{TMP + 2 * r}, v{TMP + 2 * r + 1}")
            p(f"ds_write_b128 v24, {v(dst, 4)} offset:{(i & 3) * 8192 + gq * 128}")


ACK, ACV, ACQ = 128, 144, 160
WR = 128


def tr_addr(off):
    return "v%d offset:%d" % (32 + (off >> 16), off & 0xffff)


def kv_read(ks, part):
    base = KVSLOT[ks >> 2] + (ks & 3) * 4096
    st = WR + (ks & 3) * 8
    g = []
    for h in range(2):
        g += G(f"ds_read_b64_tr_b16 {a(st + part * 4 + h * 2, 2)}, {tr_addr(base + part * 2048 + h * 512)}")
    return g


def q_read(ks):
    base = QSLOT[ks >> 3] + (ks & 7) * 2048
    st = WR + (ks & 7) * 4
    g = []
    for h in range(2):
        g += G(f"ds_read_b64_tr_b16 {a(st + h * 2, 2)}, {tr_addr(base + h * 512)}")
    return g


WOL = 98304
W1L = 0


def wo_dma(n):
    g = Prog()
    g(f"s_add_u32 s{t5}, s{sW4K}, {n * 16384}")
    g(f"s_add_u32 m0, s{sW4K}, {WOL + (n >> 1) * 16384 + (n & 1) * 32768}")
    g(f"s_lshl_b32 s{t5}, s{t5}, 3")
    for i in range(4):
        g(f"buffer_load_dwordx4 v{244 + i}, {srd(SWO)}, s{t5} offen offset:{i * 1024} lds", tag="wo%d" % n)
    return split_dma(g.ins)


def w1_dma(n):
    g = Prog()
    g(f"s_add_u32 m0, s{sW3K}, {n * 12288}")
    g(f"s_mov_b32 s{t5}, {n * 4 * 44032}")
    for i in range(3):
        g(f"buffer_load_dwordx4 v{45 + i}, {srd(SW1)}, s{t5} offen offset:{i * 1024} lds", tag="w1")
    return split_dma(g.ins)


dm = later + wo_dma(0) + wo_dma(2)
fillv = G(f"""
s_lshr_b32 s{t2}, s{sVID}, 4
v_and_b32 v43, 3, v1
v_min_u32 v40, 2, v43
v_sub_u32 v40, s{t2}, v40
v_max_i32 v40, 0, v40
v_lshlrev_b32 v40, 2, v40
v_lshlrev_b32 v43, 3, v43
s_sub_u32 s{t3}, s{sVID}, 32
v_add_u32 v43, s{t3}, v43
v_mov_b32 v44, s{sVID}
v_cmp_gt_i32 vcc, 0, v43
v_lshrrev_b32 v41, 1, v20
v_and_b32 v41, 7, v41
v_cndmask_b32 v43, v43, v44, vcc
v_lshlrev_b32 v43, 7, v43
s_lshl_b32 s{t2}, s{sLO}, 2
v_xor_b32 v41, s{t2}, v41
s_lshl_b32 s{t3}, s{sRT}, 12
s_add_u32 s{t3}, s{t3}, {EXC + XRES}
v_lshlrev_b32 v44, 7, v20
v_lshl_add_u32 v44, v21, 3, v44
v_add_u32 v44, s{t3}, v44
v_lshl_add_u32 v72, v41, 4, v44
v_xor_b32 v73, 16, v72
v_xor_b32 v74, 32, v72
v_xor_b32 v75, 48, v72
s_mul_i32 s{t2}, s{sW}, 44032
s_lshl_b32 s{t3}, s{sT0}, 6
s_add_u32 s{t2}, s{t2}, s{t3}
""")
for i in range(3):
    fillv += G(f"""
v_add_u32 v41, {64 * i}, v1
v_mul_u32_u24 v42, 0x5556, v41
v_lshrrev_b32 v42, 18, v42
v_mul_u32_u24 v42, {2752 - 192}, v42
v_lshl_add_u32 v42, v1, 4, v42
v_add_u32 v{45 + i}, s{t2}, v42
""")
avail = {"kv%d" % n: -1 for n in range(8)}
avail.update({None: -1, "q0": 9, "q1": 9, "q2": 15, "q3": 15, "wo0": 25, "wo2": 25})


def pop_dm(now):
    if dm and avail[dm[0][-1].tag if dm[0][-1].cls == "vmem" else None] <= now:
        return dm.pop(0)
    return []


fi = 0
for hf in range(2):
    ln_half(hf, E("NLN%d" % hf, "0101010101010101"))
    k0 = 16 * hf
    p.wait_vm("kv%d" % (4 * hf + 1))
    p.wait_ds()
    p("s_barrier")
    stamp("ln%d" % hf)
    for i in range(3):
        p.extend(xn_read(k0 + i) + kv_read(k0 + i, 0) + kv_read(k0 + i, 1))
    if hf == 0:
        p(f"s_lshr_b32 s{t2}, s{sVID}, 2")
        p(f"s_mov_b64 exec, s[{sLD}:{sLD + 1}]")
        p(f"buffer_store_dword v4, v5, {srd(SDBG)}, s{t2} offen sc1", cond=True)
        p("s_mov_b64 exec, -1")
    else:
        p.extend(fillv[:8])
        fi = 8
    for ks in range(k0, k0 + 16):
        nk = ks + 3
        st = WR + (ks & 3) * 8
        pre = []
        if ks == k0 + 5:
            pre = W("kv%d" % (4 * hf + 2)) + BAR()
        if ks == k0 + 9:
            pre = W("kv%d" % (4 * hf + 3)) + BAR()
        if ks == 15:
            pre = WD() + BAR()
        if ks == 29:
            pre = W("q1") + WD("xnr") + BAR()
        p(mfma(v(ACK, 16), a(st, 4), a(4 * ks, 4), v(ACK, 16) if ks else "0"))
        p.extend(pre)
        for _ in range(int(E("NKV", "1" * 32)[ks])):
            p.extend(pop_dm(ks))
        if nk < k0 + 16:
            p.extend(xn_read(nk))
        if ks == 24:
            p.extend(apoll_issue(40, SDBG))
        p(mfma(v(ACV, 16), a(4 * ks, 4), a(st + 4, 4), v(ACV, 16) if ks else "0"))
        if nk < k0 + 16:
            p.extend(kv_read(nk, 0) + kv_read(nk, 1))
        elif hf:
            p.extend(q_read(2 * (nk - 32)) + q_read(2 * (nk - 32) + 1))
        if hf:
            p.extend(fillv[fi:fi + 2])
            fi += 2
    if hf == 0:
        stamp("kv0")
fillv = fillv[fi:]
p.extend((w1t if TW1 == "kv" else []) + (w2t if TW2 == "kv" else []) + (small if TW1 == "kv" else []))
stamp("kv")

PK = 80
cvtK = [G(f"v_cvt_pk_bf16_f32 v{PK + i}, v{ACK + 2 * i}, v{ACK + 2 * i + 1}") for i in range(8)]
cvtV = [G(f"v_cvt_pk_bf16_f32 v{PK + 8 + i}, v{ACV + 2 * i}, v{ACV + 2 * i + 1}") for i in range(8)]
stK = [G(f"buffer_store_dwordx4 {v(PK + 4 * i, 4)}, v2, {srd(SWS)}, s{sA} offen offset:{2048 * i} sc1", tag="kvst") for i in range(2)]
stV = [G(f"buffer_store_dwordx4 {v(PK + 8 + 4 * i, 4)}, v{vVG}, {srd(SWS)}, s{sA} offen offset:{1024 + 512 * i} sc1", tag="kvst") for i in range(2)]
exw = [G(f"ds_write_b128 v{vEXW}, {v(PK, 4)} offset:1024"),
       G(f"ds_write_b128 v{vEXW}, {v(PK + 4, 4)} offset:{3072 + 1024}"),
       G(f"ds_write_b128 v{vEVW}, {v(PK + 8, 4)} offset:2048"),
       G(f"ds_write_b128 v{vEVW}, {v(PK + 12, 4)} offset:{2048 + 512}"),
       G(f"ds_write_b128 v{vXW0}, {v(XR, 4)} offset:{XRES}"),
       G(f"ds_write_b128 v{vXW1}, {v(XR + 4, 4)} offset:{XRES + 1024}")]
qf = {0: sum(cvtK[:4], []), 1: stK[0] + sum(cvtK[4:], []), 2: stK[1] + sum(cvtV[:4], []), 3: stV[0] + sum(cvtV[4:], []),
      4: stV[1]}
for i in range(0, len(fillv), 2):
    qf.setdefault(5 + i // 2, []).extend(fillv[i:i + 2])
print("left after KV loop:", len(dm), file=sys.stderr)
for g in dm:
    p.extend(g)
rest = wo_dma(1) + wo_dma(3)
QS0 = int(E("QS0", "22"))
NQ = int(E("NQ", "5"))
for i in range(NQ):
    qf.setdefault(QS0 + 2 * i, []).extend(rest.pop(0))
for i in range(6):
    qf.setdefault(9 + 2 * i, []).extend(exw[i])
FLAGAT = int(E("FLAGAT", "28"))
w1d = sum([w1_dma(n) for n in range(8)], [])
for ks in range(32):
    nk = ks + 6
    st = WR + (ks & 7) * 4
    p(mfma(v(ACQ, 16), a(st, 4), a(4 * ks, 4), v(ACQ, 16) if ks else "0"))
    if ks == 8:
        p.extend(W("q3") + BAR())
    if ks == FLAGAT:
        p.extend(apoll_check(40, SDBG) + W("kvst") + BAR() + kv_flag_store())
    if nk < 32:
        p.extend(q_read(nk))
    p.extend(qf.get(ks, []))
p(f"""
s_mov_b32 s{sC[0]}, {f2u(0.25 * math.log2(math.e))}
s_lshl_b32 s{t4}, s{sB}, 11
s_add_u32 s{t4}, s{t4}, {WS_KV - 8 * 65536}
s_lshl_b32 s{t2}, s{sLO}, 14
s_add_u32 s{t2}, s{t2}, {WOL}
v_add_u32 v32, s{t2}, v30
v_xor_b32 v33, 64, v32
s_and_b32 s{t2}, s{sVID}, 0xf0
v_and_b32 v41, 15, v1
v_add_lshl_u32 v41, v41, s{t2}, 7
""")
for i in range(8):
    p(f"v_pk_mul_f32 {v(ACQ + 2 * i, 2)}, {v(ACQ + 2 * i, 2)}, s[{sC[0]}:{sC[1]}] op_sel_hi:[1,0]")
for i in range(4):
    p(f"v_cvt_pk_bf16_f32 v{PK + i}, v{ACQ + 2 * i}, v{ACQ + 2 * i + 1}")
p(f"ds_write_b128 v{vEXW}, {v(PK, 4)}")
for i in range(4, 8):
    p(f"v_cvt_pk_bf16_f32 v{PK + i}, v{ACQ + 2 * i}, v{ACQ + 2 * i + 1}")
p(f"ds_write_b128 v{vEXW}, {v(PK + 4, 4)} offset:3072")
if FLAGAT >= 32:
    p.extend(apoll_check(40, SDBG) + W("kvst"))
p.wait_ds()
p("s_barrier")
if FLAGAT >= 32:
    p.extend(kv_flag_store())
for g in rest:
    p.extend(g)
p.extend(apoll_issue(43, SWS))
stamp("q")
for rt in range(2):
    p(f"ds_read_b128 {a(OQ + 4 * rt, 4)}, v{vEXR} offset:{rt * 12288}")
    p(f"ds_read_b128 {a(OK_ + 4 * rt, 4)}, v{vEXR} offset:{rt * 12288 + 1024}")
p(f"s_mov_b64 exec, s[{sVM}:{sVM + 1}]")
for rt in range(2):
    for u in range(2):
        p(f"ds_read_b128 {a(OV + 8 * rt + 4 * u, 4)}, v{vEVR} offset:{rt * 12288 + 2048 + u * 512}")
p("s_mov_b64 exec, -1")
XS = 56
for u in range(4):
    p(f"ds_read_b64 {v(XS + 2 * u, 2)}, v{72 + u}")
wor = []
for ks in range(16):
    for b in range(2):
        for h in range(2):
            wor += G(f"ds_read_b64_tr_b16 {a((ks * 2 + b) * 4 + 2 * h, 2)}, v{32 + b} offset:{(ks >> 3) * 32768 + (ks & 7) * 2048 + h * 1024}")
WOPRE = 32
p.extend(wor[:WOPRE])
wor = wor[WOPRE:]
p.extend(apoll_check(43, SWS))
stamp("kvpoll")


def halo(i):
    g = Prog()
    if i & 1:
        g(f"s_mov_b32 s{SKV + 2}, s{sVAL[i >> 1]}")
    g(f"s_add_u32 s{t3}, s{t4}, {i * 65536}")
    g(f"buffer_load_dwordx4 {v(HK + 4 * i, 4)}, v2, {srd(SKV)}, s{t3} offen sc1")
    g2 = Prog()
    g2(f"s_mov_b64 exec, s[{sVM}:{sVM + 1}]")
    g2(f"buffer_load_dwordx4 {a(HV + 8 * i, 4)}, v35, {srd(SKV)}, s{t3} offen offset:1024 sc1")
    g2(f"buffer_load_dwordx4 {a(HV + 8 * i + 4, 4)}, v35, {srd(SKV)}, s{t3} offen offset:1536 sc1")
    g2("s_mov_b64 exec, -1")
    return [g.ins, g2.ins]


hl = sum([halo(i) for i in range(7, -1, -1)], [])
for g in hl[:4]:
    p.extend(g)
hl = hl[4:]
p.wait_ds()
p("s_barrier")

SB = [80, 96]
PB = [112, 120]
OA = [128, 144]
WIN = 98304
EX3 = 147456


def kfrag(t):
    return a(OK_ + 4 * t[1], 4) if t[0] == "o" else v(HK + 4 * t[1], 4)


def vfrag(t, u):
    return a((OV if t[0] == "o" else HV) + 8 * t[1] + 4 * u, 4)


steps = [(0, ("o", 0), CC), (1, ("o", 0), None), (1, ("o", 1), CC)]
for i in range(7, 1, -1):
    steps += [(0, ("h", i), None), (1, ("h", i), None)]
steps += [(0, ("h", 1), None), (1, ("h", 1), CA), (0, ("h", 0), CA)]


def s_mfma(n):
    q, t, c = steps[n]
    return mfma(v(SB[n & 1], 16), kfrag(t), a(OQ + 4 * q, 4), v(c, 16) if c else "0")


def tile_of(pos):
    return 3 * pos if pos < 14 else (3 * (pos - 14) + 1 if pos < 28 else min(3 * (pos - 28) + 2, 42))


def w2_lds(pos):
    return WIN + (pos % 12) * 4096 if pos < 36 else (pos - 36) * 4096


sW96K = 6


def w2_dma(i):
    g = Prog()
    tl = [tile_of(min(4 * i + w, 42)) for w in range(4)]
    if all(tl[w] == tl[0] + 3 * w for w in range(4)):
        g(f"s_add_u32 s{t5}, s{sW96K}, {tl[0] * 32768}")
    elif i == 3:
        g(f"s_mul_i32 s{t5}, s{sRT}, {41 * 32768}")
        g(f"s_sub_u32 s{t5}, s{sW96K}, s{t5}")
        g(f"s_add_u32 s{t5}, s{t5}, {36 * 32768}")
        assert tl == [36, 39, 1, 4]
    else:
        assert tl == [38, 41, 42, 42]
        g(f"s_add_u32 s{t5}, s{sW96K}, {38 * 32768}")
        g(f"s_min_u32 s{t5}, s{t5}, {42 * 32768}")
    g(f"s_add_u32 m0, s{sW4K}, {w2_lds(4 * i)}")
    for k_ in range(4):
        g(f"buffer_load_dwordx4 v{12 + k_}, {srd(SW2)}, s{t5} offen offset:{k_ * 1024} lds", tag="w2_%d" % i)
    return split_dma(g.ins)


def w2_reg(pos):
    if pos < 12:
        return 128 + 8 * pos
    if pos < 22:
        return 48 + 8 * (pos - 12)
    if pos < 24:
        return 224 + 8 * (pos - 22)
    return 8 * (pos & 3)


def w2_read(pos):
    off = w2_lds(pos)
    dst = w2_reg(pos)
    g = []
    for b in range(2):
        for h in range(2):
            if pos < 36:
                ad = "v%d offset:%d" % (32 + b, off - WIN + h * 1024)
            else:
                ad = "v%d offset:%d" % (26 + b, off + h * 1024)
            g += G(f"ds_read_b64_tr_b16 {a(dst + 4 * b + 2 * h, 2)}, {ad}")
    return g


pts = [[] for _ in range(54)]
HSTEP = int(E("HSTEP", "1"))
for i, g in enumerate(hl):
    pts[i * HSTEP] += g
nxt = len(hl) * HSTEP
pts[nxt] += apoll_issue(41, SWS, "buffer_load_dword")
pts[nxt + 1] += G(f"buffer_load_dword v78, v78, {srd(SWS)}, s{sGF} offen")
mode = apoll_check(41, SWS) + G(f"""
v_readfirstlane_b32 s{t2}, v3
s_nop 1
v_cmp_ne_u32 vcc, s{t2}, v3
s_and_b32 s{sSLOW}, vcc_lo, 0xffff
""")
if FORCE_SLOW:
    mode += G(f"s_mov_b32 s{sSLOW}, 1")
pts[50] += mode
DSTART = nxt + 2
DEND = int(E("DEND", "44"))
NW1 = int(E("NW1", "24"))
dmas = ([w2t] if TW2 == "p2" else []) + w1d[:NW1] + ([c3touch(242, SW2, 11)] if C3 != "no" else [])
osync = w1d[NW1:] + w2_dma(0) + w2_dma(1) + w2_dma(2)
for i in range(8):
    pts[i] += wor[4 * i:4 * i + 4]
if TW2 == "s":
    pts[int(E("SP1", "10"))] += stouch(SW2, 2752, range(11))
    pts[int(E("SP2", "24"))] += stouch(SW2, 2752, range(11, 22))
for i, g in enumerate(dmas):
    pts[DSTART + (i * (DEND - DSTART)) // len(dmas)] += g
p(s_mfma(0))
sHH = sKO[:3]
p(f"""
v_mov_b32 v4, 1
v_min_u32 v78, 5, v1
v_lshlrev_b32 v78, 7, v78
v_mov_b32 v12, v244
v_mov_b32 v13, v245
v_mov_b32 v14, v246
v_mov_b32 v15, v247
s_lshl_b32 s{sA}, s{sB}, 10
s_add_u32 s{sA}, s{sA}, {WS_O}
s_add_u32 s{sB}, s{sA}, 32768
v_mov_b32 v22, {f2u(2.0 ** 64)}
s_mov_b32 s{sC[0]}, {f2u(2.0 ** -64)}
s_mul_i32 s{sW96K}, s{sW}, 98304
s_lshr_b32 s{t1}, s{sRB}, 1
s_lshl_b32 s{t1}, s{t1}, 2
s_add_u32 s{t1}, s{t1}, s{sW}
s_mul_i32 s{t0}, s{t1}, 88
s_and_b32 s{t2}, s{sVID}, 15
s_add_u32 s{sHH[2]}, s{t2}, 28
s_add_u32 s{sHH[1]}, s{t2}, 14
s_cmp_lt_u32 s{t2}, 14
s_cselect_b32 s{sHH[0]}, s{t2}, 43
s_cselect_b32 s{sHH[1]}, s{sHH[1]}, 43
""")
for i in range(3):
    p(f"""
s_add_u32 s{sHH[i]}, s{sHH[i]}, s{t0}
s_lshl_b32 s{sHH[i]}, s{sHH[i]}, 10
s_add_u32 s{sHH[i]}, s{sHH[i]}, {WS_HH}
""")
seen = set()
pend = None
for n in range(18):
    q, t, c = steps[n]
    S, P_ = SB[n & 1], PB[n & 1]
    ex = lambda lo, hi: [p(f"v_exp_f32 v{S + r}, v{S + r}") for r in range(lo, hi)]
    cv = lambda u: [p(f"v_cvt_pk_bf16_f32 v{P_ + 4 * u + r}, v{S + 8 * u + 2 * r}, v{S + 8 * u + 2 * r + 1}") for r in range(4)]
    ex(0, 2)
    if pend:
        p(pend)
        p.extend(pts[3 * n - 1])
    ex(2, 6)
    if n + 1 < 18:
        p(s_mfma(n + 1))
    p.extend(pts[3 * n])
    ex(6, 9)
    cv(0)
    ex(9, 11)
    p(mfma(v(OA[q], 16), vfrag(t, 0), v(P_, 4), v(OA[q], 16) if q in seen else "0"))
    seen.add(q)
    p.extend(pts[3 * n + 1])
    ex(11, 16)
    cv(1)
    pend = mfma(v(OA[q], 16), vfrag(t, 1), v(P_ + 4, 4), v(OA[q], 16))
p(pend)


def o_epilogue(q_, qq, pk):
    q_(f"v_rcp_f32 v{OA[qq] + 8}, v{OA[qq] + 8}")
    q_("s_nop 0")
    if pk:
        for i in range(4):
            q_(f"v_pk_mul_f32 {v(OA[qq] + 2 * i, 2)}, {v(OA[qq] + 2 * i, 2)}, {v(OA[qq] + 8, 2)} op_sel_hi:[1,0]")
    else:
        for i in range(8):
            q_(f"v_mul_f32 v{OA[qq] + i}, v{OA[qq] + i}, v{OA[qq] + 8}")
    for i in range(4):
        q_(f"v_cvt_pk_bf16_f32 v{SB[0] + 4 * qq + i}, v{OA[qq] + 2 * i}, v{OA[qq] + 2 * i + 1}")
    q_(f"buffer_store_dwordx4 {v(SB[0] + 4 * qq, 4)}, v2, {srd(SWS)}, s{[sA, sB][qq]} offen {OHAUX}", tag="ost")


p(f"""
v_med3_f32 v25, v{OA[1] + 8}, s{sC[0]}, v22
v_cmp_neq_f32 s[4:5], v25, v{OA[1] + 8}
""")
o_epilogue(p, 1, False)
p(f"""
v_med3_f32 v23, v{OA[0] + 8}, s{sC[0]}, v22
v_cmp_neq_f32 vcc, v23, v{OA[0] + 8}
""")
o_epilogue(p, 0, True)
p("s_or_b64 vcc, vcc, s[4:5]")
if FORCE_FB:
    p("s_branch L_fallback")
else:
    p("s_cbranch_vccnz L_fallback")
p("L_fbret:")
stamp("attn")
HR = 240
for i in range(8):
    p(f"v_lshlrev_b32 v{HR + 2 * i}, 16, v{XS + i}")
    p(f"v_and_b32 v{HR + 2 * i + 1}, s{sMSK}, v{XS + i}")
p(f"""
v_mov_b32 v16, 2
v_mov_b32 v17, 3
v_and_b32 v29, 15, v1
v_lshlrev_b32 v29, 2, v29
s_and_b32 s{t2}, s{sFO}, 0xffffff80
s_lshl_b32 s{t3}, s{sLO}, 6
s_add_u32 s{t2}, s{t2}, s{t3}
v_add_u32 v40, s{t2}, v29
s_lshl_b32 s{t4}, s{sRB}, 2
s_add_u32 s{t4}, s{t4}, s{sW}
s_lshl_b32 s{t4}, s{t4}, 14
s_add_u32 s{t4}, s{t4}, {WS_O}
s_lshl_b32 s{t2}, s{sTW}, 6
v_add_u32 v34, s{t2}, v31
v_add_u32 v35, 0x10000, v34
v_mov_b32 v18, 0
v_mov_b32 v19, 0
s_add_u32 s{t2}, s{sW4K}, {EX3}
v_add_u32 v41, s{t2}, v2
v_xor_b32 v42, 4096, v41
s_lshl_b32 s{t2}, s{sLO}, 11
v_add_u32 v26, s{t2}, v30
v_xor_b32 v27, 64, v26
v_add_u32 v32, {WIN}, v26
v_add_u32 v33, {WIN}, v27
""")
NO1 = int(E("NO1", "6"))
p.extend(WD() + BAR())
for g in osync[:NO1]:
    p.extend(g)
p.wait_vm("ost")
p.extend(flag_store(sFO))
for g in osync[NO1:]:
    p.extend(g)


def w1off(vb, off):
    return "v%d offset:%d" % (vb + (off >> 16), off & 0xffff)


CSR = 176


def cs_read(b):
    g = []
    for ks in range(4 * b, 4 * b + 4):
        for h in range(2):
            g += G(f"ds_read_b64_tr_b16 {v(CSR + 16 * (b & 3) + 4 * (ks & 3) + 2 * h, 2)}, {w1off(34, ks * 3072 + h * 1536)}")
    return g


def cs_dot(b):
    return sum([G(f"v_dot2c_f32_bf16 v{18 + (r & 1)}, s{sONE}, v{CSR + 16 * (b & 3) + r}") for r in range(16)], [])


poll(40, SWS, "buffer_load_dword")
stamp("opoll")

OF = 64


def o_load(ks):
    g = Prog()
    if ks and ks % 4 == 0:
        g(f"s_add_u32 s{t4}, s{t4}, 4096")
    g(f"buffer_load_dwordx4 {v(OF + 4 * ks, 4)}, v2, {srd(SWS)}, s{t4} offen offset:{(ks & 3) * 1024} sc1")
    return g.ins


LA3 = int(E("LA3", "9"))
assert LA3 >= 9
for ks in range(5):
    p.extend(o_load(ks))
p("s_barrier")
for ks in range(5, LA3):
    p.extend(cs_read(ks - 5) if ks < 9 else [])
    p.extend(o_load(ks))
ld3 = [o_load(ks) for ks in range(LA3, 16)]
KEEP, SEND, RECV = 128, 144, 160
r1 = sum([w2_read(pos) for pos in range(12)], [])
for ks in range(16):
    p(mfma(v(SEND, 16), a((ks * 2 + 1) * 4, 4), v(OF + 4 * ks, 4), v(SEND, 16) if ks else "0"))
    if ld3:
        p.extend(ld3.pop(0))
    p(mfma(v(KEEP, 16), a((ks * 2) * 4, 4), v(OF + 4 * ks, 4), v(KEEP, 16) if ks else v(HR, 16)))
    p.extend(r1[4 * ks:4 * ks + 4])
for i in range(4):
    p(f"ds_write_b128 v41, {v(SEND + 4 * i, 4)} offset:{i * 1024}")
p.wait_ds()
p("s_barrier")
for i in range(4):
    p(f"ds_read_b128 {v(RECV + 4 * i, 4)}, v42 offset:{i * 1024}")
for u in range(2):
    for i in range(4 * u, 4 * u + 4):
        p(f"v_pk_add_f32 {v(HR + 2 * i, 2)}, {v(KEEP + 2 * i, 2)}, {v(RECV + 2 * i, 2)}")
    for i in range(4 * u, 4 * u + 4):
        p(f"v_cvt_pk_bf16_f32 v{PK + i}, v{HR + 2 * i}, v{HR + 2 * i + 1}")
    p(f"buffer_store_dwordx4 {v(PK + 4 * u, 4)}, v2, {srd(SWS)}, s{sD} offen offset:{u * 1024} {OHAUX}", tag="hst")
p(f"v_pk_add_f32 v[36:37], {v(HR, 2)}, {v(HR + 2, 2)}")
p(f"v_pk_mul_f32 v[38:39], {v(HR, 2)}, {v(HR, 2)}")
for i in range(1, 8):
    if i > 1:
        p(f"v_pk_add_f32 v[36:37], v[36:37], {v(HR + 2 * i, 2)}")
    p(f"v_pk_fma_f32 v[38:39], {v(HR + 2 * i, 2)}, {v(HR + 2 * i, 2)}, v[38:39]")
p(f"""
v_add_f32 v36, v36, v37
v_add_f32 v38, v38, v39
v_lshlrev_b32 v43, 2, v1
v_permlane32_swap_b32 v36, v38
v_add_f32 v36, v36, v38
""")
p(f"buffer_store_dword v36, v43, {srd(SWS)}, s{sE} offen {OHAUX}", tag="hst")
stamp("wo")
hsync = w2_dma(3) + w2_dma(4) + w2_dma(5)
NH1 = int(E("NH1", "6"))
for b in range(4):
    p.extend(cs_dot(b))
    p.extend(cs_read(b + 4))
    if b:
        p.extend(sum(hsync[(b - 1) * NH1 // 3:b * NH1 // 3], []))
CSL = EX3
p(f"""
s_and_b32 s{t2}, s{sFHH}, 0xffffffc0
s_sub_u32 s{t2}, s{t2}, 256
v_add_u32 v40, s{t2}, v29
v_and_b32 v43, 1, v1
v_bfe_u32 v38, v1, 1, 1
v_lshl_add_u32 v43, v43, 1, v38
v_bfe_u32 v38, v1, 2, 3
v_lshl_add_u32 v43, v43, 4, v38
v_lshlrev_b32 v43, 2, v43
s_lshl_b32 s{sA}, s{t1}, 12
s_add_u32 s{sA}, s{sA}, {WS_STAT}
s_lshl_b32 s{t4}, s{t1}, 15
s_add_u32 s{t4}, s{t4}, {WS_H}
""")
p.wait_vm("hst")
p.extend(flag_store(sFH))
for g in hsync[NH1:]:
    p.extend(g)
p.extend(apoll_issue(40, SWS))
for b in range(4, 8):
    p.extend(cs_dot(b))
p("s_barrier")
p(f"""
v_add_f32 v18, v18, v19
v_mov_b32 v19, v18
v_lshlrev_b32 v44, 16, v0
v_cmp_gt_u32 vcc, 32, v1
v_permlane32_swap_b32 v18, v19
v_add_f32 v18, v18, v19
v_cndmask_b32 v44, v44, v18, vcc
v_lshlrev_b32 v37, 2, v20
v_lshl_add_u32 v37, v21, 9, v37
s_lshl_b32 s{t2}, s{sTW}, 7
s_add_u32 s{t2}, s{t2}, {CSL}
v_add_u32 v37, s{t2}, v37
ds_write_b32 v37, v44
v_mov_b32 v34, v31
v_add_u32 v35, 0x10000, v31
v_lshlrev_b32 v41, 4, v21
v_add_u32 v41, {CSL}, v41
""")
W1R = 0
AC4 = 192
HF = 64


def w1_read(ks):
    g = []
    for t in range(3):
        for h in range(2):
            g += G(f"ds_read_b64_tr_b16 {a(W1R + (ks & 3) * 12 + t * 4 + 2 * h, 2)}, {w1off(34, ks * 3072 + t * 64 + h * 1536)}")
    return g


p.extend(w1_read(0))
p.extend(w1_read(1))
p.extend(apoll_check(40, SWS))
stamp("hpoll")


def h_load(ks):
    g = Prog()
    if ks and ks % 4 == 0:
        g(f"s_add_u32 s{t4}, s{t4}, 4096")
    g(f"buffer_load_dwordx4 {v(HF + 4 * ks, 4)}, v2, {srd(SWS)}, s{t4} offen offset:{(ks & 3) * 1024} sc1")
    return g.ins


SP = 48
LA4 = int(E("LA4", "9"))
hb = []
for i in range(8):
    hb += G(f"""
v_lshlrev_b32 v38, 16, v{B2R + i}
v_and_b32 v39, s{sMSK}, v{B2R + i}
v_pk_add_f32 {v(HR + 2 * i, 2)}, {v(HR + 2 * i, 2)}, v[38:39]
""")
for ks in range(LA4):
    p.extend(h_load(ks))
    if ks == 3:
        p.extend(hb[:12])
    if ks == 4:
        p.extend(hb[12:])
ld4 = [h_load(ks) for ks in range(LA4, 32)]
for i in range(4):
    ld4.insert(9 + 3 * i, G(f"buffer_load_dwordx4 {v(SP + 4 * i, 4)}, v2, {srd(SWS)}, s{sA} offen offset:{1024 * i} sc1"))
ld4 += w2_dma(6) + w2_dma(7) + w2_dma(8)
c1 = -2.0 * math.sqrt(2.0 / math.pi) * math.log2(math.e)
stat = []
for i in range(1, 4):
    for e in range(4):
        stat += G(f"v_add_f32 v{SP + e}, v{SP + e}, v{SP + 4 * i + e}")
stat += G(f"""
s_mov_b32 s{t2}, {f2u(1.0 / 512)}
s_mov_b32 s{t3}, {f2u(1e-5)}
v_permlane32_swap_b32 v{SP}, v{SP + 1}
v_permlane32_swap_b32 v{SP + 2}, v{SP + 3}
v_add_f32 v{SP}, v{SP}, v{SP + 1}
v_add_f32 v{SP + 2}, v{SP + 2}, v{SP + 3}
s_and_b32 s{t0}, s{sFH}, 0xffffffc0
s_add_u32 s{t0}, s{t0}, 256
v_permlane16_swap_b32 v{SP}, v{SP + 2}
v_add_f32 v{SP}, v{SP}, v{SP + 2}
v_mul_f32 v{SP}, s{t2}, v{SP}
v_add_u32 v40, s{t0}, v29
ds_bpermute_b32 v36, v43, v{SP}
ds_bpermute_b32 v38, v43, v{SP} offset:32
v_mov_b32 v42, {f2u(c1)}
""")
stat2 = G(f"""
v_fma_f32 v38, -v36, v36, v38
v_max_f32 v38, 0, v38
v_add_f32 v39, s{t3}, v38
v_rsq_f32 v39, v39
s_mov_b32 s{sC[0]}, {f2u(c1 * 0.044715)}
v_mul_f32 v38, v38, v39
v_fma_f32 v38, v38, v39, s{t3}
v_rsq_f32 v38, v38
v_add_u32 v28, 45056, v2
v_mul_f32 v37, v38, v39
v_mul_f32_e64 v36, -v36, v37
""")
CB = [64, 96]
E_, PKD = 128, 144


def cb_read(t):
    g = []
    for u in range(4):
        g += G(f"ds_read_b128 {v(CB[t & 1] + 4 * u, 4)}, v41 offset:{t * 128 + u * 32}")
        g += G(f"ds_read_b128 {v(CB[t & 1] + 16 + 4 * u, 4)}, v41 offset:{512 + t * 128 + u * 32}")
    return g


si = 0
r2 = sum([w2_read(pos) for pos in range(12, 24)], [])
nl4 = len(ld4)
done4 = 0
for ks in range(32):
    rd = w1_read(ks + 2) if ks + 2 < 32 else []
    for t in range(3):
        p(mfma(v(AC4 + 16 * t, 16), a(W1R + (ks & 3) * 12 + t * 4, 4), v(HF + 4 * ks, 4), v(AC4 + 16 * t, 16) if ks else "0"))
        if ks in (1, 19) and t == 0:
            p("s_barrier")
        p.extend(rd[2 * t:2 * t + 2])
        if ks >= 1 and r2:
            p.extend([r2.pop(0)])
        if ld4 and done4 * 94 <= (3 * ks + t) * nl4:
            assert ks >= 19 or "m0" not in ld4[0][-1].rd
            p.extend(ld4.pop(0))
            done4 += 1
        elif ks >= 24 and si < len(stat):
            p.extend(stat[si:si + 4])
            si += 4
        elif ks >= 30:
            p.extend(stat2[:4])
            stat2 = stat2[4:]
    if ks == 30:
        p.extend(WD() + BAR())
        p.extend(cb_read(0))
for g in ld4:
    p.extend(g)
assert si >= len(stat)
p.extend(stat2)
stamp("w1")
bursts = [w2_dma(9) + w2_dma(10), [], []]
AR = [168 + 4 * i for i in range(14)]
p5a = G(f"""
s_lshl_b32 s{t4}, s{sRB}, 2
s_add_u32 s{t4}, s{t4}, s{sW}
s_mul_i32 s{t4}, s{t4}, 45056
s_add_u32 s{t4}, s{t4}, {WS_HH}
""")


def hh_load(pos):
    g = Prog()
    if pos and pos % 4 == 0:
        g(f"s_add_u32 s{t4}, s{t4}, 4096")
    g(f"buffer_load_dwordx4 {v(AR[pos % 14], 4)}, v2, {srd(SWS)}, s{t4} offen offset:{(pos & 3) * 1024} sc1")
    return g.ins


for t in range(3):
    Z = AC4 + 16 * t
    cs, b1 = CB[t & 1], CB[t & 1] + 16
    b = Prog()
    for i in range(8):
        b_ = v(b1 + 2 * i, 2)
        b(f"v_pk_fma_f32 {b_}, {v(cs + 2 * i, 2)}, v[36:37], {b_} op_sel_hi:[1,0,1]")
    for i in range(8):
        z = v(Z + 2 * i, 2)
        b(f"v_pk_fma_f32 {z}, {z}, v[36:37], {v(b1 + 2 * i, 2)} op_sel:[0,1,0] op_sel_hi:[1,1,1]")
    if t < 2:
        b.extend(cb_read(t + 1))
    for i in range(8):
        b(f"v_pk_mul_f32 {v(E_ + 2 * i, 2)}, {v(Z + 2 * i, 2)}, {v(Z + 2 * i, 2)}")
    for i in range(8):
        e = v(E_ + 2 * i, 2)
        b(f"v_pk_fma_f32 {e}, {e}, s[{sC[0]}:{sC[1]}], v[42:43] op_sel_hi:[1,0,0]")
    for i in range(8):
        e = v(E_ + 2 * i, 2)
        b(f"v_pk_mul_f32 {e}, {e}, {v(Z + 2 * i, 2)}")
    for i in range(16):
        b(f"v_exp_f32 v{E_ + i}, v{E_ + i}")
    p.extend(spread(b.ins, bursts[t], 0, 8) if bursts[t] else b.ins)
    for i in range(8):
        e = v(E_ + 2 * i, 2)
        p(f"v_pk_add_f32 {e}, {e}, 1.0 op_sel_hi:[1,0]")
    if t == 0:
        p.extend(p5a)
    if t == 2:
        p.extend(W("hhst0") + flag_store(sFHH, 1))
    for u in range(2):
        for i in range(8 * u, 8 * u + 8):
            p(f"v_rcp_f32 v{E_ + i}, v{E_ + i}")
        for i in range(4 * u, 4 * u + 4):
            e = v(E_ + 2 * i, 2)
            p(f"v_pk_mul_f32 {e}, {e}, {v(Z + 2 * i, 2)}")
        for i in range(4 * u, 4 * u + 4):
            p(f"v_cvt_pk_bf16_f32 v{PKD + 8 * t + i}, v{E_ + 2 * i}, v{E_ + 2 * i + 1}")
        p(f"buffer_store_dwordx4 {v(PKD + 8 * t + 4 * u, 4)}, v{[2, 28][u]}, {srd(SWS)}, s{sHH[t]} offen {HHAUX}", tag="hhst%d" % t)
stamp("gelu")
p.extend(W("hhst1") + flag_store(sFHH, 2))
p.extend(apoll_issue(40, SWS))
p.extend(W("hhst2") + flag_store(sFHH, 3))
p.extend(apoll_check(40, SWS, 1))
stamp("hhpoll")

LA5 = int(E("LA5", "10"))
for pos in range(LA5):
    p.extend(hh_load(pos))
    if pos == 3:
        p.extend(apoll_issue(40, SWS))
KEEP, SEND, RECV = 96, 112, 128
p(f"""
s_add_u32 s{t2}, s{sW4K}, {EX3}
v_add_u32 v41, s{t2}, v2
v_xor_b32 v42, 4096, v41
v_lshlrev_b32 v43, 10, v20
v_lshl_add_u32 v43, v21, 4, v43
s_lshl_b32 s{sA}, s{sRT}, 15
s_lshl_b32 s{t2}, s{sLO}, 6
s_add_u32 s{sA}, s{sA}, s{t2}
""")
for pos in range(43):
    bf = w2_reg(pos)
    rd = w2_read(pos + 2) if 24 <= pos + 2 < 43 else []
    nl = pos + LA5
    p(mfma(v(SEND, 16), a(bf + 4, 4), v(AR[pos % 14], 4), v(SEND, 16) if pos else "0"))
    if pos == 12:
        p("s_barrier")
    p.extend(rd[:2])
    if nl in (14, 28):
        p.extend(apoll_check(40, SWS, 2 if nl == 14 else 3))
    if nl < 43:
        p.extend(hh_load(nl))
    p(mfma(v(KEEP, 16), a(bf, 4), v(AR[pos % 14], 4), v(KEEP, 16) if pos else v(HR, 16)))
    p.extend(rd[2:])
    if nl + LA5 == 28:
        p.extend(apoll_issue(40, SWS))
stamp("w2")
for i in range(4):
    p(f"ds_write_b128 v41, {v(SEND + 4 * i, 4)} offset:{i * 1024}")
p.wait_ds()
p("s_barrier")
for i in range(4):
    p(f"ds_read_b128 {v(RECV + 4 * i, 4)}, v42 offset:{i * 1024}")
for u in range(2):
    for i in range(4 * u, 4 * u + 4):
        p(f"v_pk_add_f32 {v(KEEP + 2 * i, 2)}, {v(KEEP + 2 * i, 2)}, {v(RECV + 2 * i, 2)}")
    for i in range(4 * u, 4 * u + 4):
        p(f"v_cvt_pk_bf16_f32 v{64 + i}, v{KEEP + 2 * i}, v{KEEP + 2 * i + 1}")
    p(f"v_permlane32_swap_b32 v{64 + 4 * u}, v{64 + 4 * u + 2}")
    p(f"v_permlane32_swap_b32 v{64 + 4 * u + 1}, v{64 + 4 * u + 3}")
    p(f"buffer_store_dwordx4 {v(64 + 4 * u, 4)}, v43, {srd(SOUT)}, s{sA} offen offset:{32 * u} {OUTAUX}")
if SPINAT == "end":
    stamp("end")
if STAMPS:
    p("s_waitcnt vmcnt(0)")
    stamp("end")
    p(f"""
s_lshl_b32 s{t2}, s2, 2
s_add_u32 s{t2}, s{t2}, s{sW}
s_lshl_b32 s{t2}, s{t2}, 8
s_add_u32 s{t2}, s{t2}, {WS_ST}
v_lshlrev_b32 v22, 2, v1
buffer_store_dword v7, v22, {srd(SWS)}, s{t2} offen
""")
p("s_endpgm")
p("s_waitcnt vmcnt(0) lgkmcnt(0)")
p.extend(tail)
p("L_cold:")

p("L_fallback:")
p("s_nop 15")
MX = 22
for q in range(2):
    mine = [(t, c) for (qq, t, c) in steps if qq == q]
    p(f"v_mov_b32 v{MX}, 0xff7fffff")
    for t, c in mine:
        p(mfma(v(SB[0], 16), kfrag(t), a(OQ + 4 * q, 4), v(c, 16) if c else "0"))
        p(f"v_max3_f32 v23, v{SB[0]}, v{SB[0] + 1}, v{SB[0] + 2}")
        for r in range(3, 15, 2):
            p(f"v_max3_f32 v23, v23, v{SB[0] + r}, v{SB[0] + r + 1}")
        p(f"v_max_f32 v23, v23, v{SB[0] + 15}")
        if t[0] == "h":
            p(f"s_cmp_eq_u32 s{sVAL[t[1] >> 1]}, 0")
            p(f"s_cselect_b32 s{t2}, 0xf149f2ca, 0")
            p(f"v_add_f32 v23, s{t2}, v23")
        p(f"v_max_f32 v{MX}, v{MX}, v23")
    p(f"""
v_mov_b32 v23, v{MX}
v_permlane32_swap_b32 v{MX}, v23
v_max_f32 v{MX}, v{MX}, v23
""")
    first_ = True
    for t, c in mine:
        S, P_ = SB[0], PB[0]
        p(mfma(v(S, 16), kfrag(t), a(OQ + 4 * q, 4), v(c, 16) if c else "0"))
        for r in range(16):
            p(f"v_sub_f32 v{S + r}, v{S + r}, v{MX}")
        for r in range(16):
            p(f"v_min_f32 v{S + r}, 0, v{S + r}")
        for r in range(16):
            p(f"v_exp_f32 v{S + r}, v{S + r}")
        for r in range(8):
            p(f"v_cvt_pk_bf16_f32 v{P_ + r}, v{S + 2 * r}, v{S + 2 * r + 1}")
        for u in range(2):
            p(mfma(v(OA[q], 16), vfrag(t, u), v(P_ + 4 * u, 4), "0" if first_ else v(OA[q], 16)))
            first_ = False
p("s_waitcnt vmcnt(0)")
o_epilogue(p, 0, True)
o_epilogue(p, 1, True)
p("s_waitcnt vmcnt(0)")
p("s_branch L_fbret")
p("L_end:")

waited = set()
for i in p.ins:
    if i.cls == "wait_vm":
        waited.add(i.tag)
    elif i.cls == "vmem" and i.tag in waited and i.tag != "ost":
        raise SystemExit("load issued after its wait: " + i.tag)
ABL = E("ABL", "")
if ABL:
    keep = []
    for i in p.ins:
        if i.text.startswith("s_cbranch_vccnz L_fallback"):
            continue
        if "dma" in ABL and i.cls == "vmem" and "m0" in i.rd:
            continue
        if "ld" in ABL and i.cls == "vmem" and i.mn == "buffer_load_dwordx4" and "m0" not in i.rd:
            continue
        if "mfma" in ABL and i.cls == "mfma":
            continue
        keep.append(i)
    p.ins = keep
body, ins, nops = finalize(p)
print("instructions:", sum(1 for i in ins if i.cls not in ("label", "none")), "nop states:", nops, file=sys.stderr)

ref = open("sequential_preLN__sliding_block__mixer_channel_mlp__prompt.s.ref").read()
head = []
for line in ref.split("\n"):
    if not line.startswith(";"):
        break
    if "@launch" in line:
        line = "; @launch grid=(256,1,1) block=(256,1,1) lds=163840"
    head.append(line)
out = "\n".join(head) + f"""
.amdgcn_target "amdgcn-amd-amdhsa--gfx950"
.text
.globl {NAME}
.p2align 8
.type {NAME},@function
{NAME}:
{body}    s_endpgm
.section .rodata,"a"
.p2align 6
.amdhsa_kernel {NAME}
  .amdhsa_next_free_vgpr 512
  .amdhsa_next_free_sgpr 102
  .amdhsa_accum_offset 256
  .amdhsa_group_segment_fixed_size 0
  .amdhsa_kernarg_size 88
  .amdhsa_user_sgpr_count 2
  .amdhsa_user_sgpr_kernarg_segment_ptr 1
  .amdhsa_system_sgpr_workgroup_id_x 1
.end_amdhsa_kernel
"""
open(sys.argv[1] if len(sys.argv) > 1 else "out.s", "w").write(out)
```

```python
import re

TRANS = ("v_exp_f32", "v_log_f32", "v_rcp_f32", "v_rsq_f32", "v_sqrt_f32", "v_sin_f32", "v_cos_f32")
NO_DST_SALU = ("s_cmp", "s_cbranch", "s_branch", "s_waitcnt", "s_barrier", "s_nop", "s_bitcmp", "s_endpgm",
               "s_setprio", "s_sleep", "s_setreg")

_reg_re = re.compile(r"^-?(?:abs\()?\|?([vas])(?:(\d+)|\[(\d+):(\d+)\])\|?\)?$")


def regs_of(op):
    op = op.strip()
    if op in ("vcc", "exec"):
        return {op}
    if op in ("vcc_lo", "vcc_hi"):
        return {"vcc"}
    if op in ("exec_lo", "exec_hi"):
        return {"exec"}
    if op == "m0":
        return {"m0"}
    m = _reg_re.match(op)
    if not m:
        return set()
    if m.group(2) is not None:
        return {m.group(1) + m.group(2)}
    return {m.group(1) + str(i) for i in range(int(m.group(3)), int(m.group(4)) + 1)}


class Ins:
    __slots__ = ("text", "mn", "ops", "rd", "wr", "cls", "tag", "cond", "shadow", "srcC", "dstD", "passes",
                 "wide", "data", "dpp", "ab")

    def __init__(self, text, tag=None, cond=False, shadow=False):
        self.text = text
        self.tag = tag
        self.cond = cond
        self.shadow = shadow
        self.rd = set()
        self.wr = set()
        self.srcC = set()
        self.dstD = set()
        self.ab = set()
        self.data = set()
        self.passes = 0
        self.wide = False
        self.dpp = False
        t = text.split(";")[0].strip()
        if not t or t.endswith(":") or t.startswith("."):
            self.mn = ""
            self.ops = []
            self.cls = "label" if t.endswith(":") else "none"
            return
        parts = t.split(None, 1)
        self.mn = mn = parts[0]
        rest = parts[1] if len(parts) > 1 else ""
        ops, depth, cur = [], 0, ""
        for ch in rest:
            if ch in "[(":
                depth += 1
            if ch in "])":
                depth -= 1
            if ch == "," and depth == 0:
                ops.append(cur.strip())
                cur = ""
            else:
                cur += ch
        if cur.strip():
            ops.append(cur.strip())
        mods = ""
        if ops:
            last = ops[-1].split(None, 1)
            ops[-1] = last[0]
            mods = last[1] if len(last) > 1 else ""
        self.ops = ops
        R = [regs_of(o) for o in ops]
        un = lambda l: set().union(*l) if l else set()
        if mn.startswith("v_mfma"):
            self.cls = "mfma"
            self.wr = R[0]
            self.dstD = R[0]
            self.ab = R[1] | R[2]
            self.srcC = R[3]
            self.rd = R[1] | R[2] | R[3]
            self.passes = 8 if "32x32x16" in mn else 4
            assert "32x32x16" in mn or "16x16x32" in mn
        elif mn.startswith("v_"):
            base = mn.replace("_e32", "").replace("_e64", "").replace("_dpp", "")
            self.cls = "trans" if base in TRANS else ("dot" if base.startswith("v_dot") else "valu")
            self.dpp = mn.endswith("_dpp")
            if base == "v_nop":
                pass
            elif base.startswith("v_permlane"):
                self.wr = R[0] | R[1]
                self.rd = R[0] | R[1]
            elif "_co_" in base:
                self.wr = R[0] | R[1]
                self.rd = un(R[2:])
            else:
                self.wr = R[0]
                self.rd = un(R[1:])
                if base.startswith(("v_fmac", "v_dot2c", "v_pk_fmac")) or self.dpp or base.startswith("v_writelane"):
                    self.rd |= R[0]
        elif mn.startswith("ds_"):
            self.cls = "ds"
            if mn.startswith(("ds_read", "ds_bpermute", "ds_permute", "ds_swizzle")):
                self.wr = R[0]
                self.rd = un(R[1:])
            else:
                self.rd = un(R)
        elif mn.startswith("buffer_"):
            self.cls = "vmem"
            if mn.startswith("buffer_load"):
                if " lds" in " " + mods:
                    self.rd = un(R) | {"m0"}
                else:
                    self.wr = R[0]
                    self.rd = un(R[1:])
            elif mn.startswith("buffer_store"):
                self.rd = un(R)
                self.data = R[0]
                self.wide = mn.endswith(("x3", "x4"))
            elif mn.startswith("buffer_atomic"):
                self.rd = un(R)
                if "sc0" in mods:
                    self.wr = R[0]
        elif mn.startswith(("s_load", "s_memtime", "s_memrealtime", "s_buffer_load")):
            self.cls = "smem"
            self.wr = R[0]
            self.rd = un(R[1:])
        elif mn.startswith("s_"):
            self.cls = "salu"
            if mn.startswith(NO_DST_SALU):
                self.rd = un(R)
                if mn.startswith("s_cbranch_vcc"):
                    self.rd = {"vcc"}
            else:
                self.wr = R[0]
                self.rd = un(R[1:])
                if "saveexec" in mn:
                    self.wr = self.wr | {"exec"}
        else:
            raise ValueError("unknown instr: " + text)


class Prog:
    def __init__(self):
        self.ins = []

    def __call__(self, text, **kw):
        for line in text.strip("\n").split("\n"):
            line = line.strip()
            if line:
                self.ins.append(Ins(line, **kw))
        return self

    def wait_vm(self, tag):
        i = Ins("")
        i.cls = "wait_vm"
        i.tag = tag
        self.ins.append(i)

    def wait_ds(self, tag=None):
        i = Ins("")
        i.cls = "wait_ds"
        i.tag = tag
        self.ins.append(i)

    def extend(self, other):
        self.ins.extend(other.ins if isinstance(other, Prog) else other)


def interleave(main, fills):
    n = len(main)
    extra = [[] for _ in range(n)]
    for groups, a, b in fills:
        m = len(groups)
        span = b - a + 1
        for i, g in enumerate(groups):
            extra[a + (i * span) // m].extend(g)
    out = []
    for s, e in zip(main, extra):
        out.extend(s)
        out.extend(e)
    return out


def G(text, **kw):
    return Prog()(text, **kw).ins


def insert_waits(ins, verbose=False):
    out = []
    vm = []
    lg = []

    def emit_wait(nv, nl):
        parts = []
        if nv is not None:
            parts.append("vmcnt(%d)" % min(nv, 62))
            keep = min(nv, 62)
            cnt, idx = 0, len(vm)
            while idx > 0 and (cnt < keep):
                idx -= 1
                if not vm[idx].cond:
                    cnt += 1
            del vm[:idx]
        if nl is not None:
            parts.append("lgkmcnt(%d)" % min(nl, 14))
            keep = min(nl, 14)
            del lg[:max(0, len(lg) - keep)]
        out.append(Ins("s_waitcnt " + " ".join(parts)))

    def younger_vm(idx):
        return sum(1 for x in vm[idx + 1:] if not x.cond)

    for I in ins:
        if I.cls == "wait_vm":
            idx = [k for k, x in enumerate(vm) if x.tag == I.tag]
            if idx:
                emit_wait(younger_vm(idx[-1]), None)
            continue
        if I.cls == "wait_ds":
            if I.tag is None:
                if lg:
                    emit_wait(None, 0)
            else:
                idx = [k for k, x in enumerate(lg) if x.tag == I.tag]
                if idx:
                    n = len(lg) - 1 - idx[-1]
                    if any(x.cls == "smem" for x in lg):
                        n = 0
                    emit_wait(None, n)
            continue
        if I.shadow:
            out.append(I)
            continue
        if I.mn == "s_waitcnt":
            m = re.search(r"vmcnt\((\d+)\)", I.text)
            if m:
                assert int(m.group(1)) == 0
                vm.clear()
            m = re.search(r"lgkmcnt\((\d+)\)", I.text)
            if m:
                assert int(m.group(1)) == 0
                lg.clear()
            out.append(I)
            continue
        touch = I.rd | I.wr
        nv = nl = None
        for k in range(len(vm) - 1, -1, -1):
            if vm[k].wr & touch:
                nv = younger_vm(k)
                break
        for k in range(len(lg) - 1, -1, -1):
            if lg[k].wr & touch:
                nl = len(lg) - 1 - k
                if any(x.cls == "smem" for x in lg):
                    nl = 0
                break
        if nv is not None or nl is not None:
            emit_wait(nv, nl)
        out.append(I)
        if I.cls == "vmem":
            vm.append(I)
            assert sum(1 for x in vm) <= 63 or True
        elif I.cls in ("ds", "smem"):
            assert not I.cond
            lg.append(I)
    return out


def need_states(P, C):
    n = 0
    pv = P.cls in ("valu", "trans", "dot")
    cv = C.cls in ("valu", "trans", "dot")
    vw = {r for r in P.wr if r[0] in "va" and r != "vcc"}
    sw = {r for r in P.wr if r[0] == "s" or r == "vcc"}
    if pv:
        if C.cls == "mfma" and vw & C.rd:
            n = max(n, 3 if P.cls == "dot" else 2)
        if cv:
            if C.mn.startswith(("v_readfirstlane", "v_readlane")) and vw & C.rd:
                n = max(n, 1)
            if C.mn.startswith("v_permlane") and vw & C.rd:
                n = max(n, 2)
            if C.dpp and vw & C.rd:
                n = max(n, 2)
            if sw & C.rd:
                n = max(n, 4 if C.mn.startswith(("v_readlane", "v_writelane")) else 2)
            if P.cls == "trans" and C.cls != "trans" and vw & C.rd:
                n = max(n, 1)
        if P.cls == "trans" and C.cls in ("vmem", "ds") and vw & C.rd:
            n = max(n, 1)
        if C.cls == "vmem" and sw & C.rd:
            n = max(n, 5)
        if P.cls == "dot" and vw & (C.rd | C.wr):
            same = C.mn == P.mn
            onlyC = False
            if same:
                if P.mn.startswith("v_dot2c"):
                    onlyC = not (vw & set().union(*[regs_of(o) for o in C.ops[1:]]))
                else:
                    onlyC = not (vw & (regs_of(C.ops[1]) | regs_of(C.ops[2])))
            if not (same and onlyC):
                n = max(n, 3)
    if P.cls == "mfma":
        far = {8: 12, 4: 8}[P.passes]
        ovl = {8: 10, 4: 6}[P.passes]
        war = {8: 7, 4: 3}[P.passes]
        if C.cls == "mfma":
            if P.dstD & C.ab:
                n = max(n, far)
            if P.dstD & C.srcC:
                if not (P.dstD == C.srcC and P.passes == C.passes):
                    n = max(n, ovl)
            elif P.dstD & C.dstD:
                n = max(n, ovl)
        elif cv:
            if P.dstD & (C.rd | C.wr):
                n = max(n, far)
            if P.srcC & C.wr:
                n = max(n, war)
        elif C.cls in ("vmem", "ds"):
            if P.dstD & (C.rd | C.wr):
                n = max(n, far)
            if P.srcC & C.wr:
                n = max(n, war)
    if P.cls == "salu" and "m0" in P.wr and C.cls == "vmem" and "m0" in C.rd:
        n = max(n, 1)
    if P.cls == "vmem" and P.wide and P.data & C.wr:
        n = max(n, 2)
    return n


def states_of(I):
    if I.cls in ("label", "none"):
        return 0
    if I.mn == "s_nop":
        return int(I.ops[0]) + 1
    return 1


def insert_nops(ins):
    out = []
    total = 0
    for I in ins:
        if I.cls not in ("label", "none"):
            need, dist = 0, 0
            for P in reversed(out):
                if dist >= 12:
                    break
                if P.cls in ("label", "none"):
                    continue
                r = need_states(P, I) - dist
                if r > need:
                    need = r
                if not P.cond:
                    dist += states_of(P)
            if need > 0:
                nop = Ins("s_nop %d" % (need - 1))
                nop.cond = I.cond
                out.append(nop)
                total += need
        out.append(I)
    return out, total


WIDEN = ("v_exp_f32", "v_rcp_f32", "v_rsq_f32", "v_mul_f32", "v_add_f32", "v_sub_f32", "v_lshlrev_b32", "v_lshrrev_b32",
         "v_and_b32", "v_mov_b32", "v_xor_b32", "v_add_u32", "v_max_f32", "v_min_f32")


def sizes_of(ins):
    import subprocess, tempfile, os
    d = tempfile.mkdtemp()
    src = '.amdgcn_target "amdgcn-amd-amdhsa--gfx950"\n.text\n' + "\n".join(i.text for i in ins) + "\ns_endpgm\n"
    open(d + "/a.s", "w").write(src)
    subprocess.run(["clang", "-x", "assembler", "-target", "amdgcn-amd-amdhsa", "-mcpu=gfx950", "-c",
                    d + "/a.s", "-o", d + "/a.o"], check=True)
    out = subprocess.run(["llvm-objdump", "-d", "--mcpu=gfx950", d + "/a.o"], capture_output=True, text=True).stdout
    addr = [int(m.group(1), 16) for m in re.finditer(r"// ([0-9A-F]{12}):", out)]
    real = [i for i in ins if i.cls not in ("label", "none")]
    assert len(addr) == len(real) + 1
    return {id(i): addr[k + 1] - addr[k] for k, i in enumerate(real)}


def align_runs(ins):
    sz = sizes_of(ins)
    real = [i for i in ins if i.cls not in ("label", "none")]
    off, k, fixed = 0, 0, 0
    pad = {}
    while k < len(real):
        if sz[id(real[k])] == 8:
            e = k
            while e < len(real) and sz[id(real[e])] == 8:
                e += 1
            nv = sum(1 for x in real[k:e] if x.cls in ("valu", "trans", "dot"))
            if off % 8 and nv >= 6:
                for b in range(k - 1, max(k - 6, -1), -1):
                    x = real[b]
                    if sz[id(x)] == 4 and x.mn in WIDEN:
                        x.text = x.text.replace(x.mn, x.mn + "_e64", 1)
                        x.mn += "_e64"
                        sz[id(x)] = 8
                        off += 4
                        fixed += 1
                        break
                else:
                    if nv >= 10:
                        pad[id(real[k])] = True
                        off += 4
                        fixed += 1
            off += 8 * (e - k)
            k = e
        else:
            off += sz[id(real[k])]
            k += 1
    out = []
    for i in ins:
        if id(i) in pad:
            out.append(Ins("s_nop 0"))
        out.append(i)
    return out


def finalize(prog, align=0):
    ins = insert_waits(prog.ins)
    ins, nops = insert_nops(ins)
    if align:
        ins = align_runs(ins)
    text = []
    for I in ins:
        if I.cls == "label":
            text.append(I.text)
        else:
            text.append("    " + I.text)
    return "\n".join(text) + "\n", ins, nops
```

```python
import sys, os, struct, math
sys.path.insert(0, os.path.dirname(os.path.abspath(__file__)))
from asmgen import *

NAME = "sequential_preLN__sliding_block__mixer_channel_mlp__prompt_kernel"
E = lambda k, d: os.environ.get(k, d)
I = lambda k, d: int(os.environ.get(k, d))
STAMPS = I("STAMPS", 0)
FORCE_FB = I("FORCE_FB", 0)
FORCE_SLOW = I("FORCE_SLOW", 0)
SPINAT = E("SPINAT", "")
SPINUS = I("SPINUS", 30)
XAUX = E("XAUX", "nt")


def f2u(x):
    return "0x%08x" % struct.unpack("<I", struct.pack("<f", x))[0]


WS_GF = 0x8000
WS_STAT = 0x40000
WS_KV = 0x100000
WS_O = 0x500000
WS_H = 0x700000
WS_HH = 0x900000
WS_ST = 0x1000000
WS_SIZE = 0x1100000

KVSLOT = [32768 + 16384 * n for n in range(8)]
QSLOT = KVSLOT[:4]
XRES = 24576
WOL = 98304
WIN = 98304
EX3 = 147456
EX5 = 57344
OTL = 49152

SX, SWQ, SWO, SW1, SW2, SOUT, SWS, SDBG, SB1, SB2, SKV = 8, 12, 16, 20, 24, 28, 32, 36, 40, 44, 48
sW, sJ, sRB, sVID, sGF, sJJ, sRT, sLO = 52, 53, 54, 55, 56, 57, 58, 59
sONE, sMSK = 60, 61
t0, t1, t2, t3, t4, t5 = 62, 63, 64, 65, 66, 67
sFKV, sFO, sFH, sFHH = 68, 69, 70, 71
sSPIN = 72
sVAL = [73, 74, 75, 76]
sW4K = 77
sC = [78, 79]
sSLOW, sTW = 80, 81
sST0 = 82
sKO = list(range(84, 92))
sA, sB, sD, sW3K = 92, 93, 94, 95
sVM, sF1, sLD = 96, 98, 100
sGW, sE, sHH = 3, 7, 6
sPO, sPH, sPHH = 84, 85, 86
sW96, sW64, sT4 = 87, 88, 89
sOB, sHHB = 90, 91

vB1, vLN, vL16, vP, vFL, vZ, vX0, vST, vR8, vC8, vX1 = 0, 1, 2, 3, 4, 5, 6, 7, 8, 9, 11
vWO = 12
vF2, vF3 = 16, 17
vCS = 18
vTK, vHI = 20, 21
vBIG = 22
vW1 = 23
vW2L = 26
vU1, vPL = 28, 29
vTR, vT1 = 30, 31
vWR = 32
vT1H, vVL = 34, 35
vS = 36
vGK, vEA, vEB, vBP, vCB, vCW = 40, 41, 42, 43, 44, 45
vCA = 46
B2R = 48
vS2 = 10
XR = 64
ACK, ACV, ACQ = 128, 144, 160
TMP, D0, ST = 160, 168, 176
vKV, vQ, vXW, vXN, vP1, vDB, vKF = 180, 184, 188, 189, 193, 196, 197
vTA, vTB = 198, 199
HK, CC, CA = 176, 208, 224
vVG, vEXW, vEVW, vXW0, vXW1, vEXR, vEVR, vXS = 240, 241, 242, 243, 244, 245, 246, 248
HV, OV, OK_, OQ, WR = 160, 224, 240, 248, 128
PK, XS, HR = 80, 160, 240


def srd(n):
    return "s[%d:%d]" % (n, n + 3)


def v(n, c=1):
    return "v%d" % n if c == 1 else "v[%d:%d]" % (n, n + c - 1)


def a(n, c=1):
    return "a%d" % n if c == 1 else "a[%d:%d]" % (n, n + c - 1)


def mfma(d, A, B, C):
    return "v_mfma_f32_32x32x16_bf16 %s, %s, %s, %s" % (d, A, B, C)


p = Prog()
tail = Prog()
nst = [1]
prev = ["start"]
lab = [0]


def stamp(name, lvl=None):
    if name == SPINAT:
        p("s_waitcnt lgkmcnt(0)")
        p("L_spin:")
        p("s_memrealtime s[4:5]")
        p("s_waitcnt lgkmcnt(0)")
        p("s_sub_u32 s4, s4, s%d" % sST0)
        p("s_cmp_lt_u32 s4, %d" % (SPINUS * 100))
        p("s_cbranch_scc1 L_spin")
    if not STAMPS or (name != "end" and not (STAMPS == 1 and lvl is None) and STAMPS != (lvl or cur_lvl[0])):
        return
    i = nst[0]
    nst[0] += 1
    assert i < 31
    p("v_writelane_b32 v7, s4, %d ; stamp %s" % (i - 1, prev[0]), shadow=True)
    p("v_writelane_b32 v7, s%d, %d" % (sST0, 31 + i), shadow=True)
    p("s_memrealtime s[4:5]", shadow=True)
    p("s_memtime s[%d:%d]" % (sST0, sST0 + 1), shadow=True)
    prev[0] = name
    if name == "end":
        p("s_waitcnt lgkmcnt(0)")
        p("v_writelane_b32 v7, s4, %d ; stamp end" % i)
        p("v_writelane_b32 v7, s%d, %d" % (sST0, 32 + i))


cur_lvl = [9]
napc = [0]


def poll_ld(vaddr, srdn, soff):
    return "buffer_load_dword v%d, v%d, %s, %s offen sc1" % (vP, vaddr, srd(srdn), "0" if soff is None else "s%d" % soff)


def apoll_issue(vaddr, srdn, soff=None):
    return G(poll_ld(vaddr, srdn, soff))


def apoll_check(vaddr, srdn, soff=None, need=1):
    lab[0] += 1
    L = "L_ap%d" % lab[0]
    tail(f"""
{L}_s:
{"s_bitset1_b32 s101, %d" % napc[0] if STAMPS else ""}
s_mov_b32 s{sSPIN}, 0
{L}:
{poll_ld(vaddr, srdn, soff)}
s_add_u32 s{sSPIN}, s{sSPIN}, 1
s_bitcmp1_b32 s{sSPIN}, 20
s_waitcnt vmcnt(0)
s_cbranch_scc1 {L}_r
v_cmp_gt_u32 vcc, {need}, v{vP}
s_cbranch_vccnz {L}
s_branch {L}_r
""")
    napc[0] += 1
    return G(f"""
v_cmp_gt_u32 vcc, {need}, v{vP}
s_cbranch_vccnz {L}_s
{L}_r:
""")


def bpoll_check(vaddr, srdn, soff=None, need=1):
    lab[0] += 1
    L = "L_bp%d" % lab[0]
    return G(f"""
s_mov_b32 s{sSPIN}, 0
{L}:
s_waitcnt vmcnt(0)
v_cmp_gt_u32 vcc, {need}, v{vP}
s_add_u32 s{sSPIN}, s{sSPIN}, 1
s_bitcmp1_b32 s{sSPIN}, 20
{poll_ld(vaddr, srdn, soff)}
s_cbranch_scc1 {L}_x
s_cbranch_vccnz {L}
{L}_x:
""") + (G(f"s_lshl_b32 s100, s100, 8\ns_add_u32 s100, s100, s{sSPIN}") if STAMPS else [])


def flag_store(soff, vval):
    lab[0] += 1
    L = "L_fl%d" % lab[0]
    tail(f"""
{L}:
buffer_store_dword v{vval}, v{vZ}, {srd(SWS)}, s{soff} offen sc1
s_branch {L}_r
""")
    return G(f"""
s_cmp_lg_u32 s{sSLOW}, 0
s_mov_b64 exec, 1
s_cbranch_scc1 {L}
buffer_store_dword v{vval}, v{vZ}, {srd(SWS)}, s{soff} offen
{L}_r:
s_mov_b64 exec, -1
""")


SELF = E("SELF", "00000")
HROT = I("HROT", 0)


def self_touch(k, vdst, vaddr, soff, n):
    if SELF[k] != "1":
        return []
    return G(f"""
s_mov_b64 exec, {(1 << n) - 1}
buffer_load_dword v{vdst}, v{vaddr}, {srd(SWS)}, {"0" if soff is None else "s%d" % soff} offen sc1
s_mov_b64 exec, -1
""")


def W(tag):
    g = Prog()
    g.wait_vm(tag)
    return g.ins


def WD(tag=None):
    g = Prog()
    g.wait_ds(tag)
    return g.ins


BAR = lambda: G("s_barrier")
flat = lambda l: sum(l, [])


def split_dma(group):
    out, cur = [], []
    for i in group:
        cur.append(i)
        if i.cls == "vmem":
            out.append(cur)
            cur = []
    assert not cur
    return out


def weave(atoms, groups, start, step):
    out, k, cnt = [], 0, 0
    for at in atoms:
        while k < len(groups) and cnt >= start + k * step:
            out.extend(groups[k])
            k += 1
        out.extend(at)
        cnt += len(at)
    return out + flat(groups[k:])


singles = lambda ins: [[i] for i in ins]

p("""
s_load_dwordx2 s[8:9], s[0:1], 0
s_load_dwordx2 s[32:33], s[0:1], 80
s_cmpk_ge_u32 s2, 256
s_cbranch_scc1 L_end
""")
if SPINAT:
    p("s_memrealtime s[%d:%d]" % (sST0, sST0 + 1))
if STAMPS:
    p("s_memrealtime s[4:5]")
    p("s_memtime s[%d:%d]" % (sST0, sST0 + 1))
p(f"""
s_getpc_b64 s[{SKV}:{SKV + 1}]
L_pc0:
s_mov_b32 s{SKV + 2}, L_cold-L_pc0
s_mov_b32 s{SKV + 3}, 0x20000
s_lshr_b32 s{t0}, s2, 3
v_lshl_add_u32 v{vP}, s{t0}, 8, v0
v_lshlrev_b32 v{vP}, 2, v{vP}
buffer_load_dword v{vP}, v{vP}, {srd(SKV)}, 0 offen
s_load_dwordx2 s[12:13], s[0:1], 8
v_lshrrev_b32 v1, 6, v0
s_and_b32 s{t3}, s2, 7
v_readfirstlane_b32 s{sW}, v1
v_and_b32 v{vLN}, 63, v0
s_and_b32 s{sJ}, s{t0}, 7
s_lshr_b32 s{t2}, s{t0}, 3
s_lshl2_add_u32 s{sRB}, s{t3}, s{t2}
s_mov_b32 s{SX + 3}, 0x20000
v_lshrrev_b32 v{vR8}, 3, v{vLN}
v_and_b32 v{vC8}, 7, v{vLN}
s_lshl_b32 s{t2}, s{sW}, 14
v_lshl_add_u32 v{vX0}, v{vR8}, 10, s{t2}
v_lshl_add_u32 v{vX0}, v{vC8}, 4, v{vX0}
v_add_u32 v{vX1}, 8192, v{vX0}
s_lshl2_add_u32 s{sGW}, s{t0}, s{sW}
s_lshl_b32 s{t0}, s{sRB}, 16
s_lshl_b32 s{t1}, s{sJ}, 7
s_mov_b32 s{t4}, s{t1}
s_sub_u32 s{SX + 2}, {2048 * 1024}, s{t0}
s_waitcnt lgkmcnt(0)
""")
stamp("karg")
p(f"s_add_u32 s{SX}, s{SX}, s{t0}")
p(f"s_addc_u32 s{SX + 1}, s{SX + 1}, 0")


def x_load(i):
    g = Prog()
    if i:
        g(f"s_add_u32 s{t4}, s{t4}, 128")
        g(f"s_and_b32 s{t4}, s{t4}, 0x380")
    g(f"buffer_load_dwordx4 {v(XR + i * 8, 4)}, v{vX0}, {srd(SX)}, s{t4} offen {XAUX}")
    g(f"buffer_load_dwordx4 {v(XR + i * 8 + 4, 4)}, v{vX1}, {srd(SX)}, s{t4} offen {XAUX}")
    return split_dma(g.ins)


p.extend(flat(x_load(0) + x_load(1)))
p("""
s_load_dwordx2 s[16:17], s[0:1], 16
s_load_dwordx2 s[20:21], s[0:1], 32
s_load_dwordx2 s[40:41], s[0:1], 40
s_load_dwordx2 s[24:25], s[0:1], 48
s_load_dwordx2 s[44:45], s[0:1], 56
s_load_dwordx2 s[28:29], s[0:1], 64
s_load_dwordx2 s[36:37], s[0:1], 72
""")

su = []


def S(text):
    su.extend(singles(G(text)))


def SA(text):
    su.append(G(text))


S(f"""
s_mov_b32 s{SWQ + 2}, {512 * 3072}
s_mov_b32 s{SWQ + 3}, 0x20000
s_lshr_b32 s{sRT}, s{sW}, 1
s_and_b32 s{sLO}, s{sW}, 1
s_lshl_b32 s{sW4K}, s{sW}, 12
s_lshl3_add_u32 s{sVID}, s{sRB}, s{sJ}
s_and_b32 s{sJJ}, s{sVID}, 15
s_lshl1_add_u32 s{t2}, s2, s{sRT}
s_mul_i32 s{t2}, s{t2}, 24
s_lshl3_add_u32 s{t3}, s{sLO}, s{t2}
v_add_lshl_u32 v{vTA}, v{vLN}, s{t3}, 7
s_lshl2_add_u32 s{t3}, s{sLO}, s{t2}
v_add_lshl_u32 v{vTB}, v{vLN}, s{t3}, 7
""")
NPRE = len(su)
for n, sz in ((SWS, WS_SIZE), (SWO, 512 * 1024), (SW1, 512 * 2752), (SW2, 1376 * 1024), (SDBG, 256), (SB1, 2752), (SB2, 1024)):
    S(f"s_mov_b32 s{n + 2}, {sz}\ns_mov_b32 s{n + 3}, 0x20000")
S(f"""
v_lshlrev_b32 v{vL16}, 4, v{vLN}
v_and_b32 v{vTK}, 31, v{vLN}
v_lshrrev_b32 v{vHI}, 5, v{vLN}
v_mov_b32 v{vZ}, 0
v_mov_b32 v{ST}, 0
v_mov_b32 v{ST + 1}, 0
v_mov_b32 v{ST + 2}, 0
v_mov_b32 v{ST + 3}, 0
s_lshl_b32 s{sFKV}, s{sVID}, 7
s_lshr_b32 s{sGF}, s{sVID}, 4
s_lshl_b32 s{sGF}, s{sGF}, 10
s_add_u32 s{sGF}, s{sGF}, {WS_GF}
v_lshl_add_u32 v40, v{vLN}, 7, s{sFKV}
s_sub_u32 s{t2}, s{sGF}, 256
v_add_u32 v41, s{t2}, v{vL16}
v_cmp_gt_u32 vcc, 16, v{vLN}
s_or_b32 s{t2}, s{sJJ}, s{sW}
s_mov_b32 s{sLD + 1}, 0
v_cndmask_b32 v40, v41, v40, vcc
""")
su.append(G(f"""
s_cmp_eq_u32 s{t2}, 0
s_cselect_b32 s{sLD}, 1, 0
s_cselect_b64 exec, -1, 0
""") + G(f"buffer_store_dwordx4 {v(ST, 4)}, v40, {srd(SWS)}, 0 offen sc1", cond=True) + G("s_mov_b64 exec, -1"))
S(f"""
v_lshrrev_b32 v10, 2, v{vLN}
v_and_b32 v10, 4, v10
v_xor_b32 v10, v10, v{vC8}
v_lshl_add_u32 v10, v10, 4, s{t1}
v_lshl_add_u32 v{vWO}, v{vR8}, 10, v10
v_add_u32 v{vWO + 1}, {1 * 7168}, v{vWO}
v_add_u32 v{vWO + 2}, {2 * 7168}, v{vWO}
v_add_u32 v{vWO + 3}, {3 * 7168}, v{vWO}
v_lshl_add_u32 v10, v{vR8}, 11, v{vWO}
s_mul_i32 s{t2}, s{sW}, 49152
v_add_u32 v{vKV + 2}, s{t2}, v10
v_add_u32 v{vKV}, 1024, v{vKV + 2}
v_add_u32 v{vKV + 1}, 24576, v{vKV + 2}
v_add_u32 v{vKV + 3}, 23552, v{vKV + 2}
s_mul_i32 s{t2}, s{sLO}, 98304
v_add_u32 v{vQ}, s{t2}, v10
v_add_u32 v{vQ + 1}, {1 * 23552}, v{vQ}
v_add_u32 v{vQ + 2}, {2 * 23552}, v{vQ}
v_add_u32 v{vQ + 3}, {3 * 23552}, v{vQ}
s_mov_b32 s{sONE}, 0x3f803f80
s_mov_b32 s{sMSK}, 0xffff0000
s_mov_b32 s{sVM}, 0xffff
s_mov_b32 s{sVM + 1}, 0xffff
s_min_u32 s{sTW}, s{sW}, 2
s_mul_i32 s{sW3K}, s{sW}, 3072
s_mul_i32 s{sKO[0]}, s{sJ}, 196608
""")
for n in range(1, 8):
    S(f"s_add_u32 s{t2}, s{sJ}, {n}\ns_and_b32 s{t2}, s{t2}, 7\ns_mul_i32 s{sKO[n]}, s{t2}, 196608")
S(f"s_add_u32 s{t0}, s{t0}, s{t1}")
SA(f"""
s_add_u32 s{SOUT}, s{SOUT}, s{t0}
s_addc_u32 s{SOUT + 1}, s{SOUT + 1}, 0
s_sub_u32 s{SOUT + 2}, {2048 * 1024}, s{t0}
s_mov_b32 s{SOUT + 3}, 0x20000
s_mov_b64 s[{SKV}:{SKV + 1}], s[{SWS}:{SWS + 1}]
""")
SA(f"""
s_cmp_eq_u32 s{sW}, 0
s_cselect_b64 s[{sF1}:{sF1 + 1}], 1, 0
s_getreg_b32 s{t2}, hwreg(HW_REG_XCC_ID, 0, 4)
s_lshl1_add_u32 s{t2}, s{t2}, 1
v_mov_b32 v{vFL}, s{t2}
""")
for i in range(16):
    S(f"v_accvgpr_write_b32 a{OV + i}, s{sONE}")
msk = G(f"""
v_lshlrev_b32 v42, 2, v{vHI}
v_sub_u32 v42, v{vTK}, v42
v_cvt_f32_i32 v42, v42
v_mov_b32 v43, {f2u(1e30)}
""")
for r in range(16):
    msk += G(f"v_fmaak_f32 v{CA + r}, v42, v43, {f2u((0.5 - ((r & 3) + 8 * (r >> 2))) * 1e30)}")
for r in range(16):
    msk += G(f"v_min_f32 v{CC + r}, 0, v{CA + r}\nv_min_f32_e64 v{CA + r}, 0, -v{CA + r}")
for b in range(4):
    SA(f"s_cmp_ge_u32 s{sRB}, {4 - b}\ns_cselect_b32 s{sVAL[b]}, {WS_SIZE}, 0")
    S(mfma(a(HV + 16 * b, 16), v(ST, 4), v(ST, 4), a(OV, 16)))
    su.extend(singles(msk[13 * b:13 * b + 13]))
SA(f"s_cmp_lt_u32 s{sRB}, 4\ns_cbranch_scc1 L_head\nL_head_r:")
tail("L_head:")
for b in range(4):
    tail(mfma(a(HV + 16 * b, 16), v(ST, 4), v(ST, 4), "0"))
    if b < 3:
        tail(f"s_cmp_ge_u32 s{sRB}, {3 - b}\ns_cbranch_scc1 L_head_r")
tail("s_branch L_head_r")
S(f"""
v_xor_b32 v41, v{vR8}, v{vC8}
v_lshlrev_b32 v41, 4, v41
v_lshl_add_u32 v{vXW}, v{vC8}, 9, v41
s_lshl_b32 s{t2}, s{sRT}, 12
s_lshl_b32 s{t3}, s{sLO}, 8
s_add_u32 s{t3}, s{t3}, s{t2}
v_add_u32 v{vXW}, s{t3}, v{vXW}
v_xor_b32 v{vXN}, v{vHI}, v{vLN}
v_lshl_add_u32 v{vXN}, v{vXN}, 4, s{t2}
v_xor_b32 v{vXN + 1}, 32, v{vXN}
v_xor_b32 v{vXN + 2}, 64, v{vXN}
v_xor_b32 v{vXN + 3}, 96, v{vXN}
v_bfe_u32 v42, v{vTK}, 1, 3
s_lshl_b32 s{t3}, s{sLO}, 2
v_xor_b32 v42, s{t3}, v42
v_lshl_add_u32 v42, v42, 4, s{t2}
v_lshl_add_u32 v42, v{vTK}, 7, v42
v_lshl_add_u32 v{vXS}, v{vHI}, 3, v42
v_xor_b32 v{vXS + 1}, 16, v{vXS}
v_xor_b32 v{vXS + 2}, 32, v{vXS}
v_xor_b32 v{vXS + 3}, 48, v{vXS}
v_bfe_u32 v42, v{vLN}, 2, 2
v_lshrrev_b32 v43, 1, v42
v_xor_b32 v43, s{sLO}, v43
v_bfe_u32 v41, v{vLN}, 4, 1
v_and_b32 v44, 3, v{vLN}
v_lshlrev_b32 v45, 3, v44
v_lshl_add_u32 v45, v41, 5, v45
v_lshl_add_u32 v43, v43, 6, v45
v_lshl_add_u32 v{vTR}, v42, 7, v43
v_lshl_add_u32 v42, v{vHI}, 2, v42
v_mul_u32_u24 v{vT1}, 192, v42
v_add_u32 v{vT1}, v{vT1}, v45
v_add_u32 v{vT1H}, 0x10000, v{vT1}
v_lshl_add_u32 v{vP1}, v{vHI}, 10, v{vTR}
v_add_u32 v{vP1 + 1}, 0x10000, v{vP1}
v_add_u32 v{vP1 + 2}, 0x20000, v{vP1}
v_lshl_add_u32 v{vTR}, v{vHI}, 9, v{vTR}
s_lshl_b32 s{t2}, s{sLO}, 14
s_add_u32 s{t2}, s{t2}, {WOL}
v_add_u32 v{vWR}, s{t2}, v{vTR}
v_xor_b32 v{vWR + 1}, 64, v{vWR}
s_lshr_b32 s{t2}, s{sVID}, 4
v_min_u32 v{vDB}, 2, v44
v_sub_u32 v{vDB}, s{t2}, v{vDB}
v_max_i32 v{vDB}, 0, v{vDB}
v_lshlrev_b32 v{vDB}, 2, v{vDB}
s_sub_u32 s{t3}, s{sVID}, 32
v_lshl_add_u32 v{vKF}, v44, 3, s{t3}
v_mov_b32 v44, s{sVID}
v_cmp_gt_i32 vcc, 0, v{vKF}
v_and_b32 v{vPL}, 15, v{vLN}
v_lshlrev_b32 v{vVL}, 4, v{vPL}
v_cndmask_b32 v{vKF}, v{vKF}, v44, vcc
v_lshlrev_b32 v{vKF}, 7, v{vKF}
s_and_b32 s{t2}, s{sVID}, 0xf0
v_add_lshl_u32 v{vGK}, v{vPL}, s{t2}, 7
v_lshlrev_b32 v{vPL}, 2, v{vPL}
v_lshl_add_u32 v{vVL}, v{vHI}, 8, v{vVL}
v_lshl_add_u32 v{vVG}, v41, 11, v{vVL}
s_lshl_b32 s{t3}, s{sW3K}, 1
v_add_u32 v{vEXW}, s{t3}, v{vL16}
v_mul_u32_u24 v{vEVW}, 3072, v41
v_add3_u32 v{vEVW}, v{vEVW}, v{vVL}, s{t3}
v_add_u32 v{vEXR}, s{sW3K}, v{vL16}
v_add_u32 v{vEVR}, s{sW3K}, v{vVL}
v_lshrrev_b32 v42, 1, v{vR8}
v_xor_b32 v42, v42, v{vC8}
s_lshl_b32 s{t3}, s{sW}, 11
v_lshl_add_u32 v42, v42, 4, s{t3}
v_lshl_add_u32 v{vXW0}, v{vR8}, 7, v42
v_xor_b32 v{vXW1}, 64, v{vXW0}
s_lshl1_add_u32 s{t2}, s{sRB}, s{sRT}
s_lshl3_add_u32 s{t2}, s{t2}, s{sJ}
s_lshl1_add_u32 s{sD}, s{t2}, s{sLO}
s_lshl_b32 s{sA}, s{sD}, 12
s_add_u32 s{sA}, s{sA}, {WS_KV}
s_lshl4_add_u32 s{sB}, s{sRB}, s{sJ}
s_lshl2_add_u32 s{sB}, s{sB}, s{sW}
s_lshl2_add_u32 s{sFO}, s{sJJ}, s{sW}
s_lshl2_add_u32 s{sFO}, s{sFO}, s{sGF}
v_mov_b32 v{vBIG}, {f2u(2.0 ** 64)}
s_min_u32 s{t0}, s{sJJ}, 11
s_lshl1_add_u32 s{t0}, s{sJJ}, s{t0}
s_lshl_b32 s{t0}, s{t0}, 6
s_mul_i32 s{t2}, s{sW}, 44032
s_add_u32 s{t2}, s{t2}, s{t0}
v_add_u32 v41, s{t2}, v{vL16}
s_movk_i32 s{t2}, 2560
""")
SA(f"s_cmp_lt_u32 s{sJJ}, 11\ns_cselect_b32 s{sE}, 0, 0x40000000")
for i in range(3):
    S(f"""
v_add_u32 v42, {64 * i}, v{vLN}
v_mul_u32_u24 v43, 0x5556, v42
v_lshrrev_b32 v43, 18, v43
v_mad_i32_i24 v42, v43, -12, v42
v_mad_u32_u24 v{vW1 + i}, v43, s{t2}, v41
v_lshrrev_b32 v42, 3, v42
v_mul_lo_u32 v42, v42, s{sE}
v_add_u32 v{vW1 + i}, v{vW1 + i}, v42
""")
S(f"""
v_add_u32 v{vU1}, 45056, v{vL16}
v_add_u32 v{vS2}, s{sE}, v{vL16}
""")


def kv_dma(n):
    g = Prog()
    g(f"s_add_u32 m0, s{sW4K}, {KVSLOT[n]}")
    for i in range(4):
        g(f"buffer_load_dwordx4 v{vKV + i}, {srd(SWQ)}, s{sKO[n]} offen offset:{i * 1024} lds", tag="kv%d" % n)
    return split_dma(g.ins)


def q_dma(n):
    g = Prog()
    g(f"s_add_u32 m0, s{sW4K}, {QSLOT[n]}")
    g(f"s_cmp_eq_u32 s{sRT}, 0")
    g(f"s_cselect_b32 s{t5}, s{sKO[2 * n]}, s{sKO[2 * n + 1]}")
    for i in range(4):
        g(f"buffer_load_dwordx4 v{vQ + i}, {srd(SWQ)}, s{t5} offen offset:{i * 1024} lds", tag="q%d" % n)
    return split_dma(g.ins)


def wo_dma(n):
    g = Prog()
    g(f"s_add_u32 m0, s{sW4K}, {WOL + (n >> 1) * 16384 + (n & 1) * 32768}")
    g(f"s_lshl3_add_u32 s{t5}, s{sW4K}, {n * 131072}")
    for i in range(4):
        g(f"buffer_load_dwordx4 v{vWO + i}, {srd(SWO)}, s{t5} offen offset:{i * 1024} lds", tag="wo%d" % n)
    return split_dma(g.ins)


def w1_dma(n):
    g = Prog()
    g(f"s_add_u32 m0, s{sW3K}, {n * 12288}")
    if HROT:
        g(f"s_lshl{HROT}_add_u32 s{t5}, s{sJ}, {n}" if HROT < 3 else f"s_add_u32 s{t5}, s{sJ}, {n}")
        g(f"s_and_b32 s{t5}, s{t5}, 7")
        g(f"s_mul_i32 s{t5}, s{t5}, {4 * 44032}")
    else:
        g(f"s_mov_b32 s{t5}, {n * 4 * 44032}")
    for i in range(3):
        g(f"buffer_load_dwordx4 v{vW1 + i}, {srd(SW1)}, s{t5} offen offset:{i * 1024} lds", tag="w1")
    return split_dma(g.ins)


def touch(items):
    g = Prog()
    for vd, sidx, n, sh, srdn, off in items:
        if sidx is not None:
            g(f"s_mul_i32 s{t3}, s{sidx}, {n}")
            g(f"v_add_lshl_u32 v{vd}, v{vLN}, s{t3}, {sh}")
    for vd, sidx, n, sh, srdn, off in items:
        g(f"s_mov_b64 exec, {(1 << n) - 1}")
        g(f"buffer_load_dword v{vd}, v{vd}, {srd(srdn)}, 0 offen offset:{off}")
    g("s_mov_b64 exec, -1")
    return g.ins


gw = G(f"s_lshl2_add_u32 s{t2}, s2, s{sW}")
small = G(f"""
s_lshl_b32 s{t2}, s{sLO}, 6
s_add_u32 s{t2}, s{t2}, s{t1}
v_lshl_add_u32 v{vB1}, v{vHI}, 3, s{t2}
""")
for u in range(4):
    small += G(f"buffer_load_dwordx2 {v(B2R + 2 * u, 2)}, v{vB1}, {srd(SB2)}, 0 offen offset:{16 * u}")
small += G(f"""
s_lshl_b32 s{t2}, s{sTW}, 6
s_add_u32 s{t2}, s{t2}, s{t0}
v_lshl_add_u32 v{vB1}, v{vTK}, 1, s{t2}
buffer_load_ushort v{vB1}, v{vB1}, {srd(SB1)}, 0 offen
""")
tok = {"tk": [touch([(vTA, None, 8, 0, SWQ, 1024)])],
       "tq": [touch([(vTA, None, 8, 0, SWQ, 1024), (vTB, None, 4, 0, SWQ, 0)])],
       "tw": [gw + touch([(200, t2, 4, 7, SWO, 0), (202, sGW, 4, 10, SWO, 384)])],
       "cq": [touch([(201, sGW, 12, 10, SWQ, 384)])],
       "to": [gw + touch([(vTB, None, 4, 0, SWQ, 0), (200, t2, 4, 7, SWO, 0)])],
       "c3": [touch([(201, sGW, 12, 10, SWQ, 384), (202, sGW, 4, 10, SWO, 384)])],
       "t1": [gw + touch([(203, t2, 11, 7, SW1, 0)])],
       "t2": [gw + touch([(204, t2, 11, 7, SW2, 0)])],
       "sm": [small]}
for i in range(2, 8):
    tok["x%d" % i] = x_load(i)
for n in range(8):
    tok["k%d" % n] = kv_dma(n)
for n in range(4):
    tok["q%d" % n] = q_dma(n)
ORDER = E("ORDER", "tk,x2,x3,x4,x5,x6,x7,c3,k0,k1,k2,k3,to,sm,k4,k5,k6,k7,t1,t2,q0,q1,q2,q3").split(",")
dm = flat([tok[x] for x in ORDER])
xpos = {i: max(k_ for k_, g in enumerate(dm) if g in tok["x%d" % i]) for i in range(2, 8)}
NF1, NF2 = I("NF1", 4), I("NF2", 5)
tok_ok = ORDER[:3]
NFP = I("NFP", 999)
cut = next((k_ for k_ in range(len(su)) if sum(map(len, su[:k_])) >= NFP), len(su))
print("setup instrs", sum(map(len, su)), file=sys.stderr)
assert cut == len(su) or all(g[-1].tag or g[-1].wr for g in dm[NF1:NF1 + NF2])
p.extend(weave(su[:cut], dm[:NF1], NPRE, I("NFSTEP", 12)))
p.extend(weave(su[cut:], dm[NF1:NF1 + NF2], 0, I("NFS2", 14)))
issued = NF1 + NF2
WOE = I("WOE", 0)
dm = dm[issued:] + (wo_dma(0) + wo_dma(2) if WOE else [])
avail = {"q0": 9, "q1": 9, "q2": 15, "q3": 15, "wo0": 25, "wo2": 25}


def pop_dm(now, n=1):
    out = []
    for _ in range(n):
        if dm and avail.get(dm[0][-1].tag, -1) <= now:
            out += dm.pop(0)
    return out


stamp("setup")

for i in range(8):
    body = []
    for r in range(4):
        for gq in range(2):
            x = XR + i * 8 + gq * 4 + r
            body += G(f"v_dot2c_f32_bf16 v{ST + 2 * gq}, s{sONE}, v{x}\nv_dot2c_f32_bf16 v{ST + 2 * gq + 1}, v{x}, v{x}")
    assert i < 2 or xpos[i] < issued
    take = int(E("NS", "22222111")[i])
    issued += take
    if i == 4:
        stamp("x4", 9)
    p.extend(body[:1] + pop_dm(-1, take) + body[1:])
stamp("stats")
for mod in ("quad_perm:[1,0,3,2]", "quad_perm:[2,3,0,1]", "row_half_mirror"):
    for i in range(4):
        p(f"v_add_f32_dpp v{ST + i}, v{ST + i}, v{ST + i} {mod} row_mask:0xf bank_mask:0xf")
for fmt in ("v_mul_f32 v{s}, %s, v{s}" % f2u(1.0 / 512), "v_mul_f32 v{q}, %s, v{q}" % f2u(1.0 / 512),
            "v_fma_f32 v{q}, -v{s}, v{s}, v{q}", "v_max_f32 v{q}, 0, v{q}", "v_add_f32 v{q}, %s, v{q}" % f2u(1e-5),
            "v_rsq_f32 v{q}, v{q}", "v_mul_f32_e64 v{s}, -v{s}, v{q}"):
    for gq in range(2):
        p(fmt.format(s=ST + 2 * gq, q=ST + 2 * gq + 1))


def ln_half(hf, nld):
    for i in range(4 * hf, 4 * hf + 4):
        for gq in range(2):
            src = XR + i * 8 + gq * 4
            dst = src if i else D0 + gq * 4
            pr = v(ST + 2 * gq, 2)
            for r in range(4):
                p(f"v_lshlrev_b32 v{TMP + 2 * r}, 16, v{src + r}")
                p(f"v_and_b32 v{TMP + 2 * r + 1}, s{sMSK}, v{src + r}")
                if r == 2:
                    p.extend(pop_dm(16 * hf - 1, int(nld[4 * (i & 3) + 2 * gq])))
            for r in range(4):
                p(f"v_pk_fma_f32 {v(TMP + 2 * r, 2)}, {v(TMP + 2 * r, 2)}, {pr}, {pr} op_sel:[0,1,0] op_sel_hi:[1,1,0]")
            p.extend(pop_dm(16 * hf - 1, int(nld[4 * (i & 3) + 2 * gq + 1])))
            for r in range(4):
                p(f"v_cvt_pk_bf16_f32 v{dst + r}, v{TMP + 2 * r}, v{TMP + 2 * r + 1}")
            p(f"ds_write_b128 v{vXW}, {v(dst, 4)} offset:{(i & 3) * 8192 + gq * 128}")


def xn_read(i):
    return G(f"ds_read_b128 {a(4 * i, 4)}, v{vXN + (i & 3)} offset:{((i >> 2) & 3) * 8192 + (i & 3) * 1024}", tag="xnr")


def tr(dst, vb, off, **kw):
    return G(f"ds_read_b64_tr_b16 {dst}, v{vb + (off >> 16)} offset:{off & 0xffff}", **kw)


def kv_read(ks, part):
    base = KVSLOT[ks >> 2] + (ks & 3) * 4096 + part * 2048
    st = WR + (ks & 3) * 8 + part * 4
    return tr(a(st, 2), vP1, base) + tr(a(st + 2, 2), vP1, base + 512)


def q_read(ks):
    base = QSLOT[ks >> 3] + (ks & 7) * 2048
    st = WR + (ks & 7) * 4
    return tr(a(st, 2), vP1, base) + tr(a(st + 2, 2), vP1, base + 512)


NKV = E("NKV", "1" * 32)
for hf in range(2):
    ln_half(hf, E("NLN%d" % hf, ["0001011011011011", "1011011011011010"][hf]))
    k0 = 16 * hf
    stamp("l%d" % hf, 9)
    p.extend(W("kv%d" % (4 * hf + 1)) + WD() + BAR())
    stamp("ln%d" % hf)
    p.extend(xn_read(k0) + kv_read(k0, 0) + kv_read(k0, 1) + xn_read(k0 + 1) + kv_read(k0 + 1, 0) + kv_read(k0 + 1, 1))
    if hf == 0:
        p(f"s_lshr_b32 s{t2}, s{sVID}, 2\ns_mov_b64 exec, s[{sLD}:{sLD + 1}]")
        p(f"buffer_store_dword v{vFL}, v{vZ}, {srd(SDBG)}, s{t2} offen sc1", cond=True)
        p("s_mov_b64 exec, -1")
    else:
        p.extend(apoll_issue(vDB, SDBG))
    p.extend(xn_read(k0 + 2) + kv_read(k0 + 2, 0) + kv_read(k0 + 2, 1))
    for ks in range(k0, k0 + 16):
        nk = ks + 3
        st = WR + (ks & 3) * 8
        pre = []
        if ks == k0 + 5:
            pre = W("kv%d" % (4 * hf + 2)) + BAR()
        if ks == k0 + 9:
            pre = W("kv%d" % (4 * hf + 3)) + BAR()
        if ks == 15:
            pre = WD() + BAR()
        if ks == 29:
            pre = W("q1") + BAR()
        p(mfma(v(ACK, 16), a(st, 4), a(4 * ks, 4), v(ACK, 16) if ks else "0"))
        p.extend(pre + pop_dm(ks, int(NKV[ks])))
        if nk < k0 + 16:
            p.extend(kv_read(nk, 0))
        elif hf:
            p.extend(q_read(2 * (nk - 32)))
        p(mfma(v(ACV, 16), a(4 * ks, 4), a(st + 4, 4), v(ACV, 16) if ks else "0"))
        if nk < k0 + 16:
            p.extend(kv_read(nk, 1) + xn_read(nk))
        elif hf:
            p.extend(q_read(2 * (nk - 32) + 1) + pop_dm(ks))
        if ks in (0, 7, 16, 23):
            stamp("k%d" % ks, 9)
    stamp("kv%d" % hf)
assert not dm, len(dm)

cvt = lambda d, s_, n: flat([G(f"v_cvt_pk_bf16_f32 v{d + i}, v{s_ + 2 * i}, v{s_ + 2 * i + 1}") for i in range(n)])
kvst = [G(f"buffer_store_dwordx4 {v(PK + 4 * i, 4)}, v{[vL16, vVG][i >> 1]}, {srd(SWS)}, s{sA} offen offset:{[0, 2048, 1024, 1536][i]} sc1", tag="kvst")
        for i in range(4)]
exw = [G(f"ds_write_b128 v{vEXW}, {v(PK, 4)} offset:1024"),
       G(f"ds_write_b128 v{vEXW}, {v(PK + 4, 4)} offset:{3072 + 1024}"),
       G(f"ds_write_b128 v{vEVW}, {v(PK + 8, 4)} offset:2048"),
       G(f"ds_write_b128 v{vEVW}, {v(PK + 12, 4)} offset:{2048 + 512}"),
       G(f"ds_write_b128 v{vXW0}, {v(XR, 4)} offset:{XRES}"),
       G(f"ds_write_b128 v{vXW1}, {v(XR + 4, 4)} offset:{XRES + 1024}")]
misc = G(f"""
s_mov_b32 s{sC[0]}, {f2u(0.25 * math.log2(math.e))}
s_lshl_b32 s{t4}, s{sB}, 11
s_add_u32 s{t4}, s{t4}, {WS_KV - 8 * 65536}
s_lshl_b32 s{sA}, s{sB}, 10
s_add_u32 s{sA}, s{sA}, {WS_O}
s_add_u32 s{sB}, s{sA}, 32768
s_mul_i32 s{sW96}, s{sW}, 98304
s_lshl_b32 s{sW64}, s{sW}, 16
s_and_b32 s{sPO}, s{sFO}, 0xffffff80
s_lshl_b32 s{t2}, s{sLO}, 6
s_add_u32 s{sPO}, s{sPO}, s{t2}
s_lshl2_add_u32 s{t2}, s{sRB}, s{sW}
s_lshl_b32 s{sOB}, s{t2}, 14
s_add_u32 s{sOB}, s{sOB}, {WS_O}
s_mul_i32 s{sHHB}, s{t2}, 45056
s_add_u32 s{sHHB}, s{sHHB}, {WS_HH}
""")
heavy = {0: cvt(PK, ACK, 4), 1: kvst[0] + cvt(PK + 4, ACK + 8, 4), 2: kvst[1] + cvt(PK + 8, ACV, 4),
         3: kvst[2] + cvt(PK + 12, ACV + 8, 4), 4: kvst[3]}
for i in range(6):
    heavy[7 + 2 * i] = exw[i]
w1d = flat([w1_dma(n) for n in (3, 4, 5, 6, 7, 0, 1, 2)])
late = ([] if WOE else wo_dma(0) + wo_dma(2)) + wo_dma(1) + wo_dma(3)
nwo = len(late)
FLAGAT = I("FLAGAT", 29)
NQ = E("NQ", "00000000000000000001010101010101")
NQE = E("NQE", "2232")
for _ in range(sum(map(int, NQ + NQE)) - nwo):
    late.append(w1d.pop(0))
assert sum(map(int, NQ + NQE[:3])) <= nwo + 6 and len(late) <= nwo + 15 and sum(map(int, NQ + NQE)) >= nwo
for ks in range(32):
    for _ in range(int(NQ[ks])):
        assert ks > 6 and (ks > 18 or late[0][-1].tag != "w1")
        heavy.setdefault(ks, []).extend(late.pop(0))
nq = 6
for ks in range(32):
    p(mfma(v(ACQ, 16), a(WR + (ks & 7) * 4, 4), a(4 * ks, 4), v(ACQ, 16) if ks else "0"))
    if ks == 6:
        p.extend(W("q3") + BAR())
    if ks == 18:
        p("s_barrier")
    if ks == FLAGAT:
        p.extend(apoll_check(vDB, SDBG) + W("kvst") + BAR())
        p(f"s_mov_b64 exec, s[{sF1}:{sF1 + 1}]")
        p(f"buffer_store_dword v{vFL}, v{vZ}, {srd(SWS)}, s{sFKV} offen sc1", cond=True)
        p("s_mov_b64 exec, -1")
    n_rd = 2 if ks not in heavy else (1 if nq - ks <= 3 else 0)
    for _ in range(n_rd):
        if nq < 32 and nq <= ks + 7:
            assert nq < 16 or ks >= 6
            p.extend(q_read(nq))
            nq += 1
    p.extend(heavy.get(ks, []))
    if ks >= 24 and ks not in heavy:
        p.extend(misc[:4])
        misc = misc[4:]
    if ks in (7, 15, 23, 31):
        stamp("q%d" % ks, 9)
assert nq == 32
popn = lambda l, n: flat([l.pop(0) for _ in range(n)])
p.extend(misc + popn(late, int(NQE[0])))
for u in range(2):
    for i in range(4 * u, 4 * u + 4):
        p(f"v_pk_mul_f32 {v(ACQ + 2 * i, 2)}, {v(ACQ + 2 * i, 2)}, s[{sC[0]}:{sC[1]}] op_sel_hi:[1,0]")
    p.extend(cvt(PK + 4 * u, ACQ + 8 * u, 4))
    p(f"ds_write_b128 v{vEXW}, {v(PK + 4 * u, 4)} offset:{3072 * u}")
    p.extend(popn(late, int(NQE[1 + u])))
p.extend(WD() + BAR())
stamp("q")
for rt in range(2):
    p(f"ds_read_b128 {a(OQ + 4 * rt, 4)}, v{vEXR} offset:{rt * 12288}")
    p(f"ds_read_b128 {a(OK_ + 4 * rt, 4)}, v{vEXR} offset:{rt * 12288 + 1024}")
p(f"s_mov_b64 exec, s[{sVM}:{sVM + 1}]")
for rt in range(2):
    for u in range(2):
        p(f"ds_read_b128 {a(OV + 8 * rt + 4 * u, 4)}, v{vEVR} offset:{rt * 12288 + 2048 + u * 512}")
p("s_mov_b64 exec, -1")
for u in range(4):
    p(f"ds_read_b64 {v(XS + 2 * u, 2)}, v{vXS + u} offset:{XRES}")
wor = []
for ks in range(16):
    for b in range(2):
        for h in range(2):
            wor += tr(a((ks * 2 + b) * 4 + 2 * h, 2), vWR + b, (ks >> 3) * 32768 + (ks & 7) * 2048 + h * 1024)
KPI = I("KPI", 8)
if WOE:
    p.extend(flat(late) + wor[:KPI] + apoll_issue(vKF, SWS) + wor[KPI:32])
    wor = wor[32:]
else:
    p.extend(flat(late) + apoll_issue(vKF, SWS))
p(f"""
v_mov_b32 v{vFL}, 1
s_mov_b32 s{sC[0]}, {f2u(2.0 ** -64)}
v_min_u32 v78, 5, v{vLN}
v_lshlrev_b32 v78, 7, v78
""")

SB, PB, OA, OPK = [80, 96], [112, 120], [128, 144], [72, 64]


def kfrag(t):
    return a(OK_ + 4 * t[1], 4) if t[0] == "o" else v(HK + 4 * t[1], 4)


def vfrag(t, u):
    return a((OV if t[0] == "o" else HV) + 8 * t[1] + 4 * u, 4)


steps = [(0, ("o", 0), CC), (1, ("o", 0), None), (1, ("o", 1), CC)]
if I("Q0F", 1):
    steps += [(0, ("h", i), None if i else CA) for i in range(7, -1, -1)]
    steps += [(1, ("h", i), None if i > 1 else CA) for i in range(7, 0, -1)]
else:
    for i in range(7, 3, -1):
        steps += [(0, ("h", i), None), (1, ("h", i), None)]
    steps += [(0, ("h", i), None if i else CA) for i in range(3, -1, -1)]
    steps += [(1, ("h", i), None if i > 1 else CA) for i in range(3, 0, -1)]
LAST0 = max(n for n, s_ in enumerate(steps) if s_[0] == 0)


def s_mfma(n):
    q, t, c = steps[n]
    return mfma(v(SB[n & 1], 16), kfrag(t), a(OQ + 4 * q, 4), v(c, 16) if c else "0")


p.extend(WD())
stamp("pre", 9)
p(s_mfma(0))
p.extend(bpoll_check(vKF, SWS))
stamp("kvpoll")


def halo(i):
    g = Prog()
    if i & 1:
        g(f"s_mov_b32 s{SKV + 2}, s{sVAL[i >> 1]}")
    g(f"s_add_u32 s{t3}, s{t4}, {i * 65536}")
    g(f"buffer_load_dwordx4 {v(HK + 4 * i, 4)}, v{vL16}, {srd(SKV)}, s{t3} offen sc1")
    g2 = Prog()
    g2(f"s_mov_b64 exec, s[{sVM}:{sVM + 1}]")
    g2(f"buffer_load_dwordx4 {a(HV + 8 * i, 4)}, v{vVL}, {srd(SKV)}, s{t3} offen offset:1024 sc1")
    g2(f"buffer_load_dwordx4 {a(HV + 8 * i + 4, 4)}, v{vVL}, {srd(SKV)}, s{t3} offen offset:1536 sc1")
    g2("s_mov_b64 exec, -1")
    return [g.ins, g2.ins]


def w2_lds(pos):
    return WIN + (pos % 12) * 4096 if pos < 32 else (pos - 32) * 4096


def w2_dma(i):
    g = Prog()
    g(f"s_add_u32 m0, s{sW4K}, {w2_lds(4 * i)}")
    if i & 3 < 3:
        g(f"s_add_u32 s{t5}, s{sW96}, {(12 * (i & 3) + (i >> 2)) * 32768}")
    else:
        g(f"s_add_u32 s{t5}, s{sW64}, {(35 + (i >> 2)) * 32768}")
    for k_ in range(4):
        g(f"buffer_load_dwordx4 v{vWO + k_}, {srd(SW2)}, s{t5} offen offset:{k_ * 1024} lds", tag="w2_%d" % i)
    return split_dma(g.ins)


SKEW5 = I("SKEW5", 6)


def w2_reg(pos):
    if pos < 16:
        return 128 + 8 * pos
    if pos < 20:
        return 32 + 8 * (pos - 16)
    return 128 + 8 * ((pos - 20) & 15)


def w2_read(pos):
    off, dst = w2_lds(pos), w2_reg(pos)
    g = []
    for b in (1, 0):
        for h in range(2):
            if pos < 32:
                g += tr(a(dst + 4 * b + 2 * h, 2), vWR + b, off - WIN + h * 1024, tag="w2r")
            else:
                g += tr(a(dst + 4 * b + 2 * h, 2), vW2L + b, off + h * 1024, tag="w2r")
    return g


def o_epilogue(qq, pk):
    q_ = Prog()
    q_(f"v_rcp_f32 v{OA[qq] + 8}, v{OA[qq] + 8}")
    if pk:
        for i in range(4):
            q_(f"v_pk_mul_f32 {v(OA[qq] + 2 * i, 2)}, {v(OA[qq] + 2 * i, 2)}, {v(OA[qq] + 8, 2)} op_sel_hi:[1,0]")
    else:
        for i in range(8):
            q_(f"v_mul_f32 v{OA[qq] + i}, v{OA[qq] + i}, v{OA[qq] + 8}")
    q_.extend(cvt(OPK[qq], OA[qq], 4))
    q_(f"buffer_store_dwordx4 {v(OPK[qq], 4)}, v{vL16}, {srd(SWS)}, s{[sA, sB][qq]} offen sc1", tag="ost")
    return q_.ins


hl = flat([halo(i) for i in range(7, -1, -1)])
NHP = I("NHP", 3)
p.extend(flat(hl[:NHP]))
hl = hl[NHP:]
p("s_barrier")
pts = [[] for _ in range(54)]
for i, g in enumerate(hl):
    pts[i] += g
for i in range(8):
    pts[i] += wor[4 * i:4 * i + 4]
nxt = len(hl)
pts[nxt] += apoll_issue(vGK, SWS)
pts[nxt + 1] += G(f"buffer_load_dword v78, v78, {srd(SWS)}, s{sGF} offen")
e0 = o_epilogue(0, False)
pts[3 * LAST0 + 4] += G(f"v_med3_f32 v77, v{OA[0] + 8}, s{sC[0]}, v{vBIG}\nv_cmp_neq_f32 s[0:1], v77, v{OA[0] + 8}") + e0[:-1]
pts[max(I("OST", 47), 3 * LAST0 + 5)] += e0[-1:]
w2g = [w2_dma(i) for i in range(11)]
osync = w2g[0] + w2g[1]
C3P = I("C3P", 9)
dmas = w1d[:C3P] + [touch([(79, sGW, 11, 10, SW2, 384)])] + w1d[C3P:] + (osync if WOE else [])
if "t2" not in ORDER:
    dmas.insert(I("T2P", 0), G(f"""
s_lshr_b32 s{t3}, s{sVID}, 4
s_mul_i32 s{t3}, s{t3}, 5
s_add_u32 s{t3}, s{t3}, s{sJJ}
s_lshl2_add_u32 s{t3}, s{t3}, s{sW}
s_sub_u32 s{t3}, s{t3}, 44
s_mul_i32 s{t3}, s{t3}, 35
v_add_lshl_u32 v76, v{vLN}, s{t3}, 7
s_cmp_ge_u32 s{sJJ}, 11
s_cselect_b32 exec_lo, -1, 0
s_cselect_b32 exec_hi, 7, 0
""") + G(f"buffer_load_dword v76, v76, {srd(SW2)}, 0 offen", cond=True) + G("s_mov_b64 exec, -1"))
DSTART, DEND = nxt + 2, I("DEND", 46)
for i, g in enumerate(dmas):
    pts[DSTART + (i * (DEND - DSTART)) // len(dmas)] += g
seen = set()
pend = None
for n in range(18):
    q, t, c = steps[n]
    S_, P_ = SB[n & 1], PB[n & 1]
    ex = lambda lo, hi: [p(f"v_exp_f32 v{S_ + r}, v{S_ + r}") for r in range(lo, hi)]
    ex(0, 2)
    if pend:
        p(pend)
        p.extend(pts[3 * n - 1])
    ex(2, 6)
    if n + 1 < 18:
        p(s_mfma(n + 1))
    if n in (0, 2, 5, 8, 11, 14):
        stamp("a%d" % n, 9)
    p.extend(pts[3 * n])
    ex(6, 9)
    p.extend(cvt(P_, S_, 4))
    ex(9, 11)
    p(mfma(v(OA[q], 16), vfrag(t, 0), v(P_, 4), v(OA[q], 16) if q in seen else "0"))
    seen.add(q)
    p.extend(pts[3 * n + 1])
    ex(11, 16)
    p.extend(cvt(P_ + 4, S_ + 8, 4))
    pend = mfma(v(OA[q], 16), vfrag(t, 1), v(P_ + 4, 4), v(OA[q], 16))
p(pend)
p.extend(pts[53])
p.extend(apoll_check(vGK, SWS))
p(f"""
v_readfirstlane_b32 s{t2}, v{vP}
s_lshl_b32 s{t3}, s{sTW}, 6
v_add_u32 v{vCA}, s{t3}, v{vT1}
v_add_u32 v{vCA + 1}, s{t3}, v{vT1H}
v_cmp_ne_u32 vcc, s{t2}, v{vP}
v_mov_b32 v{vCS}, 0
v_mov_b32 v{vCS + 1}, 0
s_and_b32 s{sSLOW}, vcc_lo, 0xffff
""")
if FORCE_SLOW:
    p(f"s_mov_b32 s{sSLOW}, 1")
p(f"v_med3_f32 v77, v{OA[1] + 8}, s{sC[0]}, v{vBIG}\nv_cmp_neq_f32 vcc, v77, v{OA[1] + 8}")
p.extend(o_epilogue(1, True))
p("s_or_b64 vcc, vcc, s[0:1]")
p("s_branch L_fallback" if FORCE_FB else "s_cbranch_vccnz L_fallback")
p("L_fbret:")
stamp("attn")
cur_lvl[0] = 8
stamp("attn8", 8)
w2a = G(f"""
s_lshl_b32 s{t2}, s{sLO}, 11
v_add_u32 v{vW2L}, s{t2}, v{vTR}
v_xor_b32 v{vW2L + 1}, 64, v{vW2L}
v_add_u32 v{vWR}, {WIN}, v{vW2L}
v_add_u32 v{vWR + 1}, {WIN}, v{vW2L + 1}
""")
if WOE:
    p.extend(w2a + W("w2_1") + WD() + BAR())
    p.extend(flat(w2g[2]) + flat([w2_read(pos) for pos in range(8)]))
else:
    p.extend(W("w1") + WD() + BAR())
    p.extend(flat(osync[:3]) + wor[32:] + flat(osync[3:]) + w2a)
if SELF[0] == "1":
    p(f"v_lshlrev_b32 v76, 7, v{vC8}\nv_lshl_add_u32 v76, v{vR8}, 15, v76")
stamp("opre", 8)
p.extend(W("ost") + flag_store(sFO, vFL) + self_touch(0, vS, 76, sA, 16))
stamp("oack", 8)
for i in range(8):
    p(f"v_lshlrev_b32 v{HR + 2 * i}, 16, v{XS + i}\nv_and_b32 v{HR + 2 * i + 1}, s{sMSK}, v{XS + i}")

CSR = 176


def cs_read(b):
    g = []
    for ks in range(4 * b, 4 * b + 4):
        for h in range(2):
            g += tr(v(CSR + 16 * (b & 3) + 4 * (ks & 3) + 2 * h, 2), vCA, ks * 3072 + h * 1536)
    return g


def cs_dot(b):
    return flat([G(f"v_dot2c_f32_bf16 v{vCS + (r & 1)}, s{sONE}, v{CSR + 16 * (b & 3) + r}") for r in range(16)])


p.extend(apoll_issue(vPL, SWS, sPO))
p.extend(flat([cs_read(b) for b in range(4)]))
stamp("ocs", 8)
p.extend(bpoll_check(vPL, SWS, sPO))
stamp("opoll")

OF = 64


def stream_load(dst, sbase, n):
    g = Prog()
    if n and n % 4 == 0:
        g(f"s_add_u32 s{sbase}, s{sbase}, 4096")
    g(f"buffer_load_dwordx4 {dst}, v{vL16}, {srd(SWS)}, s{sbase} offen offset:{(n & 3) * 1024} sc1")
    return g.ins


LA3 = I("LA3", 9)
for ks in range(LA3):
    p.extend(stream_load(v(OF + 4 * ks, 4), sOB, ks))
    if 4 <= ks < 8:
        p.extend(cs_dot(ks - 4))
late3 = G(f"""
s_add_u32 s{t2}, s{sW4K}, {EX3}
v_add_u32 v{vEA}, s{t2}, v{vL16}
v_xor_b32 v{vEB}, 4096, v{vEA}
s_and_b32 s{sFH}, s{sD}, 63
s_lshl2_add_u32 s{sFH}, s{sFH}, s{sGF}
s_add_u32 s{sFH}, s{sFH}, 256
s_lshl_b32 s{sE}, s{sD}, 8
s_add_u32 s{sE}, s{sE}, {WS_STAT}
s_lshl_b32 s{sD}, s{sD}, 11
s_add_u32 s{sD}, s{sD}, {WS_H}
s_lshl_b32 s{sPH}, s{sW}, 6
s_add_u32 s{sPH}, s{sPH}, s{sGF}
s_add_u32 s{sPH}, s{sPH}, 256
s_lshl2_add_u32 s{sFHH}, s{sJJ}, s{sPH}
s_add_u32 s{sFHH}, s{sFHH}, 256
s_and_b32 s{sPHH}, s{sFH}, 0xffffffc0
s_add_u32 s{sPHH}, s{sPHH}, 256
s_lshr_b32 s{sT4}, s{sRB}, 1
s_lshl2_add_u32 s{sT4}, s{sT4}, s{sW}
s_mul_i32 s{sHH}, s{sT4}, 88
s_add_u32 s{sHH}, s{sHH}, s{sJJ}
s_lshl_b32 s{sHH}, s{sHH}, 10
s_add_u32 s{sHH}, s{sHH}, {WS_HH}
s_lshl_b32 s{sA}, s{sT4}, 12
s_add_u32 s{sA}, s{sA}, {WS_STAT}
s_lshl_b32 s{sB}, s{sT4}, 15
s_add_u32 s{sB}, s{sB}, {WS_H}
v_lshlrev_b32 v{vGK}, 2, v{vLN}
""")
ld3 = [stream_load(v(OF + 4 * ks, 4), sOB, ks) for ks in range(LA3, 16)]
hsync = ([] if WOE else w2g[2]) + w2g[3] + w2g[4] + w2g[5]
N3 = I("N3", 6 if WOE else 8)
assert 4 <= N3 <= 8
ld3 += [hsync.pop(0) for _ in range(N3)]
KEEP, SEND, RECV = 128, 144, 160
r1 = flat([w2_read(pos) for pos in (range(8, 12) if WOE else range(8))]) + flat([cs_read(b) for b in range(4, 8)])
SKEW3 = I("SKEW3", 0)
seq = []
for ks in range(16 - SKEW3):
    seq += [(1, ks), (0, ks)]
seq += [(1, ks) for ks in range(16 - SKEW3, 16)] + [(0, ks) for ks in range(16 - SKEW3, 16)]
xw = [G(f"ds_write_b128 v{vEA}, {v(SEND + 4 * i, 4)} offset:{i * 1024}") for i in range(4)]
for n, (ch, ks) in enumerate(seq):
    acc = [KEEP, SEND][ch]
    p(mfma(v(acc, 16), a((ks * 2 + ch) * 4, 4), v(OF + 4 * ks, 4), v(acc, 16) if ks else [v(HR, 16), "0"][ch]))
    if n == 2:
        p("s_barrier")
    if n % 2 == 0 and ld3:
        if not WOE and ld3[0][-1].tag == "w2_3" and ld3[0][0].cls == "salu":
            assert len(r1) <= 32
            p.extend(WD("w2r") + BAR())
        p.extend(ld3.pop(0) + late3[:2])
        late3 = late3[2:]
    elif n >= 2 and r1:
        p.extend(r1[:4])
        r1 = r1[4:]
    elif late3:
        p.extend(late3[:6])
        late3 = late3[6:]
    if n >= 33 - SKEW3 and xw and SKEW3 > 2:
        p.extend(xw.pop(0))
    if n in (1, 15, 31):
        stamp("w%d" % (n // 2), 8)
p.extend(r1)
assert not ld3 and not late3
p.extend(flat(xw) + WD() + BAR())
stamp("wx", 8)
for i in range(4):
    p(f"ds_read_b128 {v(RECV + 4 * i, 4)}, v{vEB} offset:{i * 1024}")
for u in range(2):
    for i in range(4 * u, 4 * u + 4):
        p(f"v_pk_add_f32 {v(HR + 2 * i, 2)}, {v(KEEP + 2 * i, 2)}, {v(RECV + 2 * i, 2)}")
    p.extend(cvt(PK + 4 * u, HR + 8 * u, 4))
    p(f"buffer_store_dwordx4 {v(PK + 4 * u, 4)}, v{vL16}, {srd(SWS)}, s{sD} offen offset:{u * 1024} sc1", tag="hst")
p(f"v_pk_add_f32 {v(vS, 2)}, {v(HR, 2)}, {v(HR + 2, 2)}")
p(f"v_pk_mul_f32 {v(vS + 2, 2)}, {v(HR, 2)}, {v(HR, 2)}")
for i in range(1, 8):
    if i > 1:
        p(f"v_pk_add_f32 {v(vS, 2)}, {v(vS, 2)}, {v(HR + 2 * i, 2)}")
    p(f"v_pk_fma_f32 {v(vS + 2, 2)}, {v(HR + 2 * i, 2)}, {v(HR + 2 * i, 2)}, {v(vS + 2, 2)}")
p(f"""
v_add_f32 v{vS}, v{vS}, v{vS + 1}
v_add_f32 v{vS + 2}, v{vS + 2}, v{vS + 3}
v_mov_b32 v{vF2}, 2
v_mov_b32 v{vF3}, 3
v_permlane32_swap_b32 v{vS}, v{vS + 2}
v_add_f32 v{vS}, v{vS}, v{vS + 2}
""")
p(f"buffer_store_dword v{vS}, v{vGK}, {srd(SWS)}, s{sE} offen sc1", tag="hst")
stamp("wo")
NH1, NH2 = I("NH1", 4), I("NH2", 0)
rest = hsync[NH1 + NH2:] + flat(w2g[6:11])
hsync = hsync[:NH1 + NH2]
assert len(rest) <= 24 and (WOE or len(rest) == 24)
p.extend(flat([cs_dot(b) for b in range(4, 8)]))
p(f"""
v_lshlrev_b32 v{vCB}, 16, v{vB1}
v_cmp_gt_u32 vcc, 32, v{vLN}
v_lshlrev_b32 v{vCW}, 2, v{vTK}
v_add_f32 v{vCS}, v{vCS}, v{vCS + 1}
v_mov_b32 v{vCS + 1}, v{vCS}
v_lshl_add_u32 v{vCW}, v{vHI}, 9, v{vCW}
s_lshl_b32 s{t2}, s{sTW}, 7
s_add_u32 s{t2}, s{t2}, {EX3}
v_permlane32_swap_b32 v{vCS}, v{vCS + 1}
v_add_f32 v{vCS}, v{vCS}, v{vCS + 1}
v_add_u32 v{vCW}, s{t2}, v{vCW}
v_cndmask_b32 v{vCS}, v{vCB}, v{vCS}, vcc
""")
if SELF[1] == "1":
    p(f"""
s_sub_u32 s{t2}, s{sE}, 2048
v_lshl_add_u32 v64, v{vLN}, 7, s{t2}
v_cmp_gt_u32 vcc, 16, v{vLN}
v_lshl_add_u32 v65, v{vLN}, 7, s{sD}
s_nop 0
v_cndmask_b32 v64, v64, v65, vcc
""")
p.extend(flat(hsync[:NH1]))
stamp("hpre", 8)
p.extend(W("hst") + flag_store(sFH, vFL) + self_touch(1, 64, 64, None, 18))
stamp("hack", 8)
p.extend(flat(hsync[NH1:]))
p("s_barrier")
p.extend(apoll_issue(vPL, SWS, sPH))
p(f"ds_write_b32 v{vCW}, v{vCS}")
if not WOE:
    p.extend(flat([w2_read(pos) for pos in range(8, 12)]))
AC4 = 192


def w1_read(ks, t):
    dst = (ks & 3) * 8 + t * 4 if t < 2 else (ks & 7) * 4
    off = ks * 3072 + t * 64
    ad = lambda o: (vT1, o) if o < 65536 else (vT1H, o - 65536)
    return tr(a(dst, 2), *ad(off)) + tr(a(dst + 2, 2), *ad(off + 1536))


p.extend(flat([w1_read(ks, t) for ks in range(3) for t in range(2)]))
for i in range(8):
    p(f"""
v_lshlrev_b32 v{vS + 2}, 16, v{B2R + i}
v_and_b32 v{vS + 3}, s{sMSK}, v{B2R + i}
v_pk_add_f32 {v(HR + 2 * i, 2)}, {v(HR + 2 * i, 2)}, {v(vS + 2, 2)}
""")
p.extend(bpoll_check(vPL, SWS, sPH))
stamp("hpoll")

hf_ = lambda ks: a(64 + 4 * ks, 4) if ks < 16 else v(64 + 4 * ks, 4)
SP = 48
LA4 = I("LA4", 9)
ld4 = [stream_load(hf_(ks), sB, ks) for ks in range(32)]
if HROT:
    ld4 = []
    for ks in range(32):
        g = Prog()
        if ks % 4 == 0:
            g(f"s_lshl{HROT}_add_u32 s{t4}, s{sJ}, {ks >> 2}" if HROT < 3 else f"s_add_u32 s{t4}, s{sJ}, {ks >> 2}")
            g(f"s_and_b32 s{t4}, s{t4}, 7")
            g(f"s_lshl_b32 s{t4}, s{t4}, 12")
            g(f"s_add_u32 s{t4}, s{t4}, s{sB}")
        g(f"buffer_load_dwordx4 {hf_(ks)}, v{vL16}, {srd(SWS)}, s{t4} offen offset:{(ks & 3) * 1024} sc1")
        ld4.append(g.ins)
for i in range(4):
    ld4.insert(I("SPOS", 10) + 2 * i, G(f"buffer_load_dwordx4 {v(SP + 4 * i, 4)}, v{vL16}, {srd(SWS)}, s{sA} offen offset:{1024 * i} sc1"))
for ks in range(LA4):
    p.extend(ld4.pop(0))
    if ks == 4:
        p("s_barrier")
    if 4 <= ks < 8:
        p.extend(w2_read(2 * ks + 4) + w2_read(2 * ks + 5))
c1 = -2.0 * math.sqrt(2.0 / math.pi) * math.log2(math.e)
CB = [64, 224, 192]
CS_, B1_ = [64, 96, 64], [80, 224, 80]
E_, PKD = 96, [112, 120, 112]
fa = G(f"""
v_and_b32 v{vBP}, 1, v{vLN}
v_bfe_u32 v{vS + 2}, v{vLN}, 1, 1
v_lshl_add_u32 v{vBP}, v{vBP}, 1, v{vS + 2}
v_bfe_u32 v{vS + 2}, v{vLN}, 2, 3
v_lshl_add_u32 v{vBP}, v{vBP}, 4, v{vS + 2}
v_lshlrev_b32 v{vBP}, 2, v{vBP}
v_lshlrev_b32 v{vCB}, 4, v{vHI}
v_add_u32 v{vCB}, {EX3}, v{vCB}
v_mov_b32 v{vEB}, {f2u(c1)}
s_mov_b32 s{sC[0]}, {f2u(c1 * 0.044715)}
v_mul_u32_u24 v{vBIG}, 45056, v{vR8}
v_lshl_add_u32 v{vBIG}, v{vC8}, 7, v{vBIG}
""")


def cb_read(t):
    g = []
    for u in range(4):
        g += G(f"ds_read_b128 {v(CS_[t] + 4 * u, 4)}, v{vCB} offset:{t * 128 + u * 32}")
        g += G(f"ds_read_b128 {v(B1_[t] + 4 * u, 4)}, v{vCB} offset:{512 + t * 128 + u * 32}")
    return g


stat = []
for i in range(1, 4):
    for e in range(4):
        stat += G(f"v_add_f32 v{SP + e}, v{SP + e}, v{SP + 4 * i + e}")
stat += G(f"""
s_mov_b32 s{t3}, {f2u(1e-5)}
v_permlane32_swap_b32 v{SP}, v{SP + 1}
v_permlane32_swap_b32 v{SP + 2}, v{SP + 3}
v_add_f32 v{SP}, v{SP}, v{SP + 1}
v_add_f32 v{SP + 2}, v{SP + 2}, v{SP + 3}
v_add_u32 v56, 45056, v{vS2}
v_permlane16_swap_b32 v{SP}, v{SP + 2}
v_add_f32 v{SP}, v{SP}, v{SP + 2}
v_mul_f32 v{SP}, {f2u(1.0 / 512)}, v{SP}
ds_bpermute_b32 v{vS}, v{vBP}, v{SP}
ds_bpermute_b32 v{vS + 2}, v{vBP}, v{SP} offset:32
""")
stat2 = G(f"""
v_fma_f32 v{vS + 2}, -v{vS}, v{vS}, v{vS + 2}
v_max_f32 v{vS + 2}, 0, v{vS + 2}
v_add_f32 v{vS + 3}, s{t3}, v{vS + 2}
v_rsq_f32 v{vS + 3}, v{vS + 3}
v_mul_f32 v{vS + 2}, v{vS + 2}, v{vS + 3}
v_fma_f32 v{vS + 2}, v{vS + 2}, v{vS + 3}, s{t3}
v_rsq_f32 v{vS + 2}, v{vS + 2}
v_mul_f32 v{vS + 1}, v{vS + 2}, v{vS + 3}
v_mul_f32_e64 v{vS}, -v{vS}, v{vS + 1}
""")
fillA = {}
cbr = cb_read(0) + cb_read(1)
ST0 = I("ST0", 16)
for i in range(6):
    fillA[(1 + i, 1)] = fa[2 * i:2 * i + 2]
for i in range(8):
    fillA[(7 + i, 1)] = cbr[2 * i:2 * i + 2]
for i in range(12):
    fillA[(ST0 + i, 1)] = stat[2 * i:2 * i + 2]
NA = I("NA", 8)
for ks in range(32):
    for t in range(2):
        p(mfma(v(AC4 + 16 * t, 16), a((ks & 3) * 8 + t * 4, 4), hf_(ks), v(AC4 + 16 * t, 16) if ks else "0"))
        if ks == 6 and t == 0:
            p("s_barrier")
        if t == 1 and ld4 and ld4[0][-1].wr & {"v48", "v52", "v56", "v60"}:
            p.extend(ld4.pop(0))
        if t == 0:
            if ld4:
                p.extend(ld4.pop(0))
            elif NA:
                p.extend(rest.pop(0))
                NA -= 1
        if ks + 3 < 32:
            p.extend(w1_read(ks + 3, t))
        else:
            p.extend(w1_read(2 * (ks - 29) + t, 2))
        p.extend(fillA.get((ks, t), []))
    if ks in (0, 15):
        stamp("f%d" % ks, 8)
assert not ld4
p.extend(stat2)
stamp("w1a")
AR = lambda n: hf_(n % 32)
hhl = [stream_load(AR(n), sHHB, n) for n in range(43)]


pend_st = []


def gelu(t, bprime, extra):
    Z, cs, b1 = AC4 + 16 * t, CS_[t], B1_[t]
    x = lambda k_: p.extend(extra.get(k_, []))
    if bprime:
        for i in range(8):
            b_ = v(b1 + 2 * i, 2)
            p(f"v_pk_fma_f32 {b_}, {v(cs + 2 * i, 2)}, {v(vS, 2)}, {b_} op_sel_hi:[1,0,1]")
    x(0)
    for i in range(8):
        z = v(Z + 2 * i, 2)
        p(f"v_pk_fma_f32 {z}, {z}, {v(vS, 2)}, {v(b1 + 2 * i, 2)} op_sel:[0,1,0] op_sel_hi:[1,1,1]")
    x(1)
    for i in range(8):
        p(f"v_pk_mul_f32 {v(E_ + 2 * i, 2)}, {v(Z + 2 * i, 2)}, {v(Z + 2 * i, 2)}")
    x(2)
    for i in range(8):
        e = v(E_ + 2 * i, 2)
        p(f"v_pk_fma_f32 {e}, {e}, s[{sC[0]}:{sC[1]}], {v(vEB, 2)} op_sel_hi:[1,0,0]")
    x(3)
    for i in range(8):
        e = v(E_ + 2 * i, 2)
        p(f"v_pk_mul_f32 {e}, {e}, {v(Z + 2 * i, 2)}")
    for i in range(16):
        if i % 4 == 0:
            x(4 + i // 4)
        p(f"v_exp_f32 v{E_ + i}, v{E_ + i}")
    x(8)
    for i in range(8):
        e = v(E_ + 2 * i, 2)
        p(f"v_pk_add_f32 {e}, {e}, 1.0 op_sel_hi:[1,0]")
    for u in range(2):
        for i in range(8 * u, 8 * u + 8):
            if i % 4 == 0:
                x(9 + i // 4)
            p(f"v_rcp_f32 v{E_ + i}, v{E_ + i}")
        for i in range(4 * u, 4 * u + 4):
            e = v(E_ + 2 * i, 2)
            p(f"v_pk_mul_f32 {e}, {e}, {v(Z + 2 * i, 2)}")
        p.extend(cvt(PKD[t] + 4 * u, E_ + 8 * u, 4))
        pend_st.extend(G(f"buffer_store_dwordx4 {v(PKD[t] + 4 * u, 4)}, v{([vL16, vU1] if t < 2 else [vS2, 56])[u]}, {srd(SWS)}, s{sHH} offen sc1", tag="hhst%d" % t))
        if t < 2 and u == 1:
            pend_st.extend(G(f"s_add_u32 s{sHH}, s{sHH}, 16384"))
        if E("STB", "111111")[2 * t + u] == "1":
            p.extend(pend_st)
            pend_st.clear()


def take(pat, lim):
    d = {}
    for k_, ch in enumerate(pat):
        for _ in range(int(ch)):
            if rest and int(rest[0][-1].tag[3:]) <= lim:
                d.setdefault(k_, []).extend(rest.pop(0))
    return d


for i in range(8):
    b_ = v(B1_[1] + 2 * i, 2)
    p(f"v_pk_fma_f32 {b_}, {v(CS_[1] + 2 * i, 2)}, {v(vS, 2)}, {b_} op_sel_hi:[1,0,1]")
gelu(0, True, take(E("G0", "0101010100000"), 7))
stamp("g0", 8)
gelu(1, False, take(E("G1", "0000000010100"), 7))
stamp("gelu01")
fillB = {}
cbr = cb_read(2)
for i in range(4):
    fillB[i] = cbr[2 * i:2 * i + 2]
for i in range(8):
    fillB[6 + i] = flat([G(f"v_fmac_f32 v{B1_[2] + r}, v{CS_[2] + r}, v{vS}") for r in (2 * i, 2 * i + 1)])
outa = G(f"""
s_add_u32 s{t2}, s{sW4K}, {EX5}
v_add_u32 v{vEA}, s{t2}, v{vL16}
s_lshl_b32 s{t2}, s{sLO}, 2
v_add_u32 v{vCW}, s{t2}, v{vHI}
v_xor_b32 v{vCW}, v{vCW}, v{vC8}
s_lshl_b32 s{t2}, s{sRT}, 12
v_lshl_add_u32 v{vCW}, v{vCW}, 4, s{t2}
v_lshl_add_u32 v{vCW}, v{vTK}, 7, v{vCW}
v_xor_b32 v{vCA}, 32, v{vCW}
v_xor_b32 v{vCA + 1}, v{vR8}, v{vC8}
s_lshl_b32 s{t2}, s{sW}, 11
v_lshl_add_u32 v{vCA + 1}, v{vCA + 1}, 4, s{t2}
v_lshl_add_u32 v{vCA + 1}, v{vR8}, 7, v{vCA + 1}
v_xor_b32 v{vGK}, 4096, v{vEA}
""")
FB1, FB2, PB0 = I("FB1", 9), I("FB2", 28), I("PB0", 30)
NB = E("NB", "00000000000010101010101010101010")
HB = E("HB", "0" * 32)
PBC = I("PBC", 99)
npre = 0
for ks in range(32):
    p(mfma(v(AC4 + 32, 16), a((ks & 7) * 4, 4), hf_(ks), v(AC4 + 32, 16) if ks else "0"))
    if ks in (12, 17):
        p("s_barrier")
    if ks == FB1:
        p(f"s_sub_u32 s{t2}, s{sHH}, 32768")
        p.extend(W("hhst0") + flag_store(sFHH, vFL) + self_touch(2, 57, vBIG, t2, 16))
    if ks == FB2:
        p(f"s_sub_u32 s{t2}, s{sHH}, 16384")
        p.extend(W("hhst1") + flag_store(sFHH, vF2) + self_touch(3, 58, vBIG, t2, 16))
    if ks == PB0:
        p.extend(apoll_issue(vPL, SWS, sPHH))
    if ks == PBC:
        p.extend(apoll_check(vPL, SWS, sPHH, 1))
    p.extend(flat(take(NB[ks], 7 if ks < 12 else (9 if ks < 17 else 10)).values()))
    for _ in range(int(HB[ks])):
        assert ks >= PBC and npre < ks
        p.extend(hhl[npre])
        npre += 1
    if ks + 6 < 32:
        p.extend(w1_read(ks + 6, 2))
    p.extend(fillB.get(ks, []))
stamp("w1b")
LA5 = I("LA5", 9)
ex2 = take(E("G2", "1100000000000"), 10)
assert not rest, len(rest)
HP = I("HP", 5)
if PBC > 31:
    ex2.setdefault(HP, []).extend(apoll_check(vPL, SWS, sPHH, 1))
else:
    HP = 0
for k_, ch in enumerate(E("H2", "0000021111110")):
    for _ in range(int(ch)):
        assert k_ >= HP
        ex2.setdefault(k_, []).extend(hhl[npre])
        npre += 1
p.extend(outa[:8])
gelu(2, False, ex2)
stamp("gelu2")

KEEP, SEND, RECV = 192, 208, 64
seq = []
for pos in range(43 - SKEW5):
    seq += [(1, pos), (0, pos)]
seq += [(1, pos) for pos in range(43 - SKEW5, 43)] + [(0, pos) for pos in range(43 - SKEW5, 43)]
xw = [G(f"ds_write_b128 v{vEA}, {v(SEND + 4 * i, 4)} offset:{i * 1024}") for i in range(4)]
nl = npre
nr = 20
F3 = I("F3", 12)
outa = outa[8:]
for n, (ch, pos) in enumerate(seq):
    acc = [KEEP, SEND][ch]
    p(mfma(v(acc, 16), a(w2_reg(pos) + 4 * ch, 4), AR(pos), v(acc, 16) if pos else [v(HR, 16), "0"][ch]))
    if n == 2 * F3:
        p.extend(W("hhst2") + flag_store(sFHH, vF3) + self_touch(4, 59, vBIG, sHH, 16))
    if n == 2 * F3 + 2:
        p("s_barrier")
    if n % 2 == 0 or nl < n // 2 + LA5:
        if nl < 43 and nl < n // 2 + I("LM5", 13) and n // 2 >= {16: I("CK2", 7), 32: I("CK3", 26)}.get(nl, 0):
            if nl in (16, 32):
                p.extend(apoll_check(vPL, SWS, sPHH, 2 if nl == 16 else 3))
            p.extend(hhl[nl])
            nl += 1
            if nl in (max(I("PI2", 10), npre + 1), I("PI3", 28)):
                p.extend(apoll_issue(vPL, SWS, sPHH))
    if n % 2 == 1 or nl == 43:
        if n > 2 * F3 + 2 and nr < 43 and nr - 20 < n // 2:
            assert nr < 36 or nr - 16 < min(n // 2, 43 - SKEW5)
            p.extend(w2_read(nr))
            nr += 1
        elif outa:
            p.extend(outa[:3])
            outa = outa[3:]
    assert nr >= min(43, pos + 2) and nl >= min(43, pos + 2), (n, nr, nl)
    if n >= 87 - SKEW5 and xw:
        p.extend(xw.pop(0))
    if n in (1, 21, 43, 65):
        stamp("p%d" % (n // 2), 8)
stamp("w2")
p.extend(flat(xw) + WD() + BAR())
for i in range(4):
    p(f"ds_read_b128 {v(RECV + 4 * i, 4)}, v{vGK} offset:{i * 1024}")
for u in range(2):
    for i in range(4 * u, 4 * u + 4):
        p(f"v_pk_add_f32 {v(KEEP + 2 * i, 2)}, {v(KEEP + 2 * i, 2)}, {v(RECV + 2 * i, 2)}")
    p.extend(cvt(80 + 4 * u, KEEP + 8 * u, 4))
    p(f"v_permlane32_swap_b32 v{80 + 4 * u}, v{80 + 4 * u + 2}")
    p(f"v_permlane32_swap_b32 v{80 + 4 * u + 1}, v{80 + 4 * u + 3}")
    p(f"ds_write_b128 v{[vCW, vCA][u]}, {v(80 + 4 * u, 4)} offset:{OTL}")
p.extend(WD() + BAR())
for u in range(2):
    p(f"ds_read_b128 {v(88 + 4 * u, 4)}, v{vCA + 1} offset:{OTL + 1024 * u}")
for u in range(2):
    p(f"buffer_store_dwordx4 {v(88 + 4 * u, 4)}, v{[vX0, vX1][u]}, {srd(SOUT)}, 0 offen sc1")
if SPINAT == "end":
    stamp("end")
if STAMPS:
    stamp("st", 8)
    p("s_waitcnt vmcnt(0)")
    stamp("end")
    p(f"""
s_lshl2_add_u32 s{t2}, s2, s{sW}
s_lshl_b32 s{t2}, s{t2}, 8
s_add_u32 s{t2}, s{t2}, {WS_ST}
v_writelane_b32 v7, s101, 31
v_writelane_b32 v7, s100, 63
v_lshlrev_b32 v22, 2, v{vLN}
buffer_store_dword v7, v22, {srd(SWS)}, s{t2} offen
""")
p("s_endpgm")
p("s_waitcnt vmcnt(0) lgkmcnt(0)")
p.extend(tail)
p("L_cold:")

p("L_fallback:")
p("s_waitcnt vmcnt(0)")
p("s_nop 15")
MX = 78
for q in range(2):
    mine = [(t, c) for (qq, t, c) in steps if qq == q]
    p(f"v_mov_b32 v{MX}, 0xff7fffff")
    for t, c in mine:
        p(mfma(v(SB[0], 16), kfrag(t), a(OQ + 4 * q, 4), v(c, 16) if c else "0"))
        p(f"v_max3_f32 v77, v{SB[0]}, v{SB[0] + 1}, v{SB[0] + 2}")
        for r in range(3, 15, 2):
            p(f"v_max3_f32 v77, v77, v{SB[0] + r}, v{SB[0] + r + 1}")
        p(f"v_max_f32 v77, v77, v{SB[0] + 15}")
        if t[0] == "h":
            p(f"s_cmp_eq_u32 s{sVAL[t[1] >> 1]}, 0\ns_cselect_b32 s{t2}, 0xf149f2ca, 0\nv_add_f32 v77, s{t2}, v77")
        p(f"v_max_f32 v{MX}, v{MX}, v77")
    p(f"v_mov_b32 v77, v{MX}\nv_permlane32_swap_b32 v{MX}, v77\nv_max_f32 v{MX}, v{MX}, v77")
    first_ = True
    for t, c in mine:
        S_, P_ = SB[0], PB[0]
        p(mfma(v(S_, 16), kfrag(t), a(OQ + 4 * q, 4), v(c, 16) if c else "0"))
        for fmt in ("v_sub_f32 v{r}, v{r}, v%d" % MX, "v_min_f32 v{r}, 0, v{r}", "v_exp_f32 v{r}, v{r}"):
            for r in range(16):
                p(fmt.format(r=S_ + r))
        p.extend(cvt(P_, S_, 8))
        for u in range(2):
            p(mfma(v(OA[q], 16), vfrag(t, u), v(P_ + 4 * u, 4), "0" if first_ else v(OA[q], 16)))
            first_ = False
p("s_waitcnt vmcnt(0)")
p.extend(o_epilogue(0, True) + o_epilogue(1, True))
p("s_waitcnt vmcnt(0)")
p("s_branch L_fbret")
p("L_end:")

waited = set()
for i in p.ins:
    if i.cls == "wait_vm":
        waited.add(i.tag)
    elif i.cls == "vmem" and i.tag in waited and i.tag != "ost":
        raise SystemExit("load issued after its wait: " + i.tag)
ABL = E("ABL", "")
if ABL:
    keep = []
    for i in p.ins:
        if i.text.startswith("s_cbranch_vccnz L_fallback"):
            continue
        if "dma" in ABL and i.cls == "vmem" and "m0" in i.rd:
            continue
        if "ld" in ABL and i.cls == "vmem" and i.mn == "buffer_load_dwordx4" and "m0" not in i.rd:
            continue
        keep.append(i)
    p.ins = keep
body, ins, nops = finalize(p, align=I("ALIGN", 1))
print("instructions:", sum(1 for i in ins if i.cls not in ("label", "none")), "nop states:", nops, file=sys.stderr)

ref = open("sequential_preLN__sliding_block__mixer_channel_mlp__prompt.s.ref").read()
head = []
for line in ref.split("\n"):
    if not line.startswith(";"):
        break
    if "@launch" in line:
        line = "; @launch grid=(256,1,1) block=(256,1,1) lds=163840"
    head.append(line)
out = "\n".join(head) + f"""
.amdgcn_target "amdgcn-amd-amdhsa--gfx950"
.text
.globl {NAME}
.p2align 8
.type {NAME},@function
{NAME}:
{body}    s_endpgm
.section .rodata,"a"
.p2align 6
.amdhsa_kernel {NAME}
  .amdhsa_next_free_vgpr 512
  .amdhsa_next_free_sgpr 102
  .amdhsa_accum_offset 256
  .amdhsa_group_segment_fixed_size 0
  .amdhsa_kernarg_size 88
  .amdhsa_user_sgpr_count 2
  .amdhsa_user_sgpr_kernarg_segment_ptr 1
  .amdhsa_system_sgpr_workgroup_id_x 1
.end_amdhsa_kernel
"""
open(sys.argv[1] if len(sys.argv) > 1 else "out.s", "w").write(out)
```

```python
import sys, os, struct, math
sys.path.insert(0, os.path.dirname(os.path.abspath(__file__)))
from asmgen import *

NAME = "sequential_preLN__sliding_block__mixer_channel_mlp__prompt_kernel"
E = lambda k, d: os.environ.get(k, d)
I = lambda k, d: int(os.environ.get(k, d))
STAMPS = I("STAMPS", 0)
FORCE_FB = I("FORCE_FB", 0)
FORCE_SLOW = I("FORCE_SLOW", 0)
SPINAT = E("SPINAT", "")
SPINUS = I("SPINUS", 30)
XAUX = E("XAUX", "nt")


def f2u(x):
    return "0x%08x" % struct.unpack("<I", struct.pack("<f", x))[0]


WS_GF = 0x8000
WS_STAT = 0x40000
WS_KV = 0x100000
WS_O = 0x500000
WS_H = 0x700000
WS_HH = 0x900000
WS_ST = 0x1000000
WS_SIZE = 0x1100000

KVSLOT = [32768 + 16384 * n for n in range(8)]
QSLOT = KVSLOT[:4]
XRES = 24576
WOL = 98304
WIN = 98304
EX3 = 147456
EX5 = 57344
OTL = 49152

SX, SWQ, SWO, SW1, SW2, SOUT, SWS, SDBG, SB1, SB2, SKV = 8, 12, 16, 20, 24, 28, 32, 36, 40, 44, 48
sW, sJ, sRB, sVID, sGF, sJJ, sRT, sLO = 52, 53, 54, 55, 56, 57, 58, 59
sONE, sMSK = 60, 61
t0, t1, t2, t3, t4, t5 = 62, 63, 64, 65, 66, 67
sFKV, sFO, sFH, sFHH = 68, 69, 70, 71
sSPIN = 72
sVAL = [73, 74, 75, 76]
sW4K = 77
sC = [78, 79]
sSLOW, sTW = 80, 81
sST0 = 82
sKO = list(range(84, 92))
sA, sB, sD, sW3K = 92, 93, 94, 95
sVM, sF1, sLD = 96, 98, 100
sGW, sE, sHH = 3, 7, 6
sPO, sPH, sPHH = 84, 85, 86
sW96, sW64, sT4 = 87, 88, 89
sOB, sHHB = 90, 91

vB1, vLN, vL16, vP, vFL, vZ, vX0, vST, vR8, vC8, vX1 = 0, 1, 2, 3, 4, 5, 6, 7, 8, 9, 11
vWO = 12
vF2, vF3 = 16, 17
vCS = 18
vTK, vHI = 20, 21
vBIG = 22
vW1 = 23
vW2L = 26
vU1, vPL = 28, 29
vTR, vT1 = 30, 31
vWR = 32
vT1H, vVL = 34, 35
vS = 36
vGK, vEA, vEB, vBP, vCB, vCW = 40, 41, 42, 43, 44, 45
vCA = 46
B2R = 48
vS2 = 10
XR = 64
ACK, ACV, ACQ = 128, 144, 160
TMP, D0, ST = 160, 168, 176
vKV, vQ, vXW, vXN, vP1, vDB, vKF = 180, 184, 188, 189, 193, 196, 197
vTA, vTB = 198, 199
HK, CC, CA = 176, 208, 224
vVG, vEXW, vEVW, vXW0, vXW1, vEXR, vEVR, vXS = 240, 241, 242, 243, 244, 245, 246, 248
HV, OV, OK_, OQ, WR = 160, 224, 240, 248, 128
PK, XS, HR = 80, 160, 240


def srd(n):
    return "s[%d:%d]" % (n, n + 3)


def v(n, c=1):
    return "v%d" % n if c == 1 else "v[%d:%d]" % (n, n + c - 1)


def a(n, c=1):
    return "a%d" % n if c == 1 else "a[%d:%d]" % (n, n + c - 1)


def mfma(d, A, B, C):
    return "v_mfma_f32_32x32x16_bf16 %s, %s, %s, %s" % (d, A, B, C)


p = Prog()
tail = Prog()
nst = [1]
prev = ["start"]
lab = [0]


def stamp(name, lvl=None):
    if name == SPINAT:
        p("s_waitcnt lgkmcnt(0)")
        p("L_spin:")
        p("s_memrealtime s[4:5]")
        p("s_waitcnt lgkmcnt(0)")
        p("s_sub_u32 s4, s4, s%d" % sST0)
        p("s_cmp_lt_u32 s4, %d" % (SPINUS * 100))
        p("s_cbranch_scc1 L_spin")
    if not STAMPS or (name != "end" and not (STAMPS == 1 and lvl is None) and STAMPS != (lvl or cur_lvl[0])):
        return
    i = nst[0]
    nst[0] += 1
    assert i < 31
    p("v_writelane_b32 v7, s4, %d ; stamp %s" % (i - 1, prev[0]), shadow=True)
    p("v_writelane_b32 v7, s%d, %d" % (sST0, 31 + i), shadow=True)
    p("s_memrealtime s[4:5]", shadow=True)
    p("s_memtime s[%d:%d]" % (sST0, sST0 + 1), shadow=True)
    prev[0] = name
    if name == "end":
        p("s_waitcnt lgkmcnt(0)")
        p("v_writelane_b32 v7, s4, %d ; stamp end" % i)
        p("v_writelane_b32 v7, s%d, %d" % (sST0, 32 + i))


cur_lvl = [9]
napc = [0]


def poll_ld(vaddr, srdn, soff):
    return "buffer_load_dword v%d, v%d, %s, %s offen sc1" % (vP, vaddr, srd(srdn), "0" if soff is None else "s%d" % soff)


def apoll_issue(vaddr, srdn, soff=None):
    return G(poll_ld(vaddr, srdn, soff))


def apoll_check(vaddr, srdn, soff=None, need=1):
    lab[0] += 1
    L = "L_ap%d" % lab[0]
    tail(f"""
{L}_s:
{"s_bitset1_b32 s101, %d" % napc[0] if STAMPS else ""}
s_mov_b32 s{sSPIN}, 0
{L}:
{poll_ld(vaddr, srdn, soff)}
s_add_u32 s{sSPIN}, s{sSPIN}, 1
s_bitcmp1_b32 s{sSPIN}, 20
s_waitcnt vmcnt(0)
s_cbranch_scc1 {L}_r
v_cmp_gt_u32 vcc, {need}, v{vP}
s_cbranch_vccnz {L}
s_branch {L}_r
""")
    napc[0] += 1
    return G(f"""
v_cmp_gt_u32 vcc, {need}, v{vP}
s_cbranch_vccnz {L}_s
{L}_r:
""")


def bpoll_check(vaddr, srdn, soff=None, need=1):
    lab[0] += 1
    L = "L_bp%d" % lab[0]
    return G(f"""
s_mov_b32 s{sSPIN}, 0
{L}:
s_waitcnt vmcnt(0)
v_cmp_gt_u32 vcc, {need}, v{vP}
s_add_u32 s{sSPIN}, s{sSPIN}, 1
s_bitcmp1_b32 s{sSPIN}, 20
{poll_ld(vaddr, srdn, soff)}
s_cbranch_scc1 {L}_x
s_cbranch_vccnz {L}
{L}_x:
""") + (G(f"s_lshl_b32 s100, s100, 8\ns_add_u32 s100, s100, s{sSPIN}") if STAMPS else [])


def flag_store(soff, vval):
    lab[0] += 1
    L = "L_fl%d" % lab[0]
    tail(f"""
{L}:
buffer_store_dword v{vval}, v{vZ}, {srd(SWS)}, s{soff} offen sc1
s_branch {L}_r
""")
    return G(f"""
s_cmp_lg_u32 s{sSLOW}, 0
s_mov_b64 exec, 1
s_cbranch_scc1 {L}
buffer_store_dword v{vval}, v{vZ}, {srd(SWS)}, s{soff} offen
{L}_r:
s_mov_b64 exec, -1
""")


SELF = E("SELF", "00000")
HROT = I("HROT", 0)


def self_touch(k, vdst, vaddr, soff, n):
    if SELF[k] != "1":
        return []
    return G(f"""
s_mov_b64 exec, {(1 << n) - 1}
buffer_load_dword v{vdst}, v{vaddr}, {srd(SWS)}, {"0" if soff is None else "s%d" % soff} offen sc1
s_mov_b64 exec, -1
""")


def W(tag):
    g = Prog()
    g.wait_vm(tag)
    return g.ins


def WD(tag=None):
    g = Prog()
    g.wait_ds(tag)
    return g.ins


BAR = lambda: G("s_barrier")
flat = lambda l: sum(l, [])


def split_dma(group):
    out, cur = [], []
    for i in group:
        cur.append(i)
        if i.cls == "vmem":
            out.append(cur)
            cur = []
    assert not cur
    return out


def weave(atoms, groups, start, step):
    out, k, cnt = [], 0, 0
    for at in atoms:
        while k < len(groups) and cnt >= start + k * step:
            out.extend(groups[k])
            k += 1
        out.extend(at)
        cnt += len(at)
    return out + flat(groups[k:])


singles = lambda ins: [[i] for i in ins]

p("""
s_load_dwordx2 s[8:9], s[0:1], 0
s_load_dwordx2 s[32:33], s[0:1], 80
s_cmpk_ge_u32 s2, 256
s_cbranch_scc1 L_end
""")
if SPINAT:
    p("s_memrealtime s[%d:%d]" % (sST0, sST0 + 1))
if STAMPS:
    p("s_memrealtime s[4:5]")
    p("s_memtime s[%d:%d]" % (sST0, sST0 + 1))
p(f"""
s_getpc_b64 s[{SKV}:{SKV + 1}]
L_pc0:
s_mov_b32 s{SKV + 2}, L_cold-L_pc0
s_mov_b32 s{SKV + 3}, 0x20000
s_lshr_b32 s{t0}, s2, 3
v_lshl_add_u32 v{vP}, s{t0}, 8, v0
v_lshlrev_b32 v{vP}, 2, v{vP}
buffer_load_dword v{vP}, v{vP}, {srd(SKV)}, 0 offen
s_load_dwordx2 s[12:13], s[0:1], 8
v_lshrrev_b32 v1, 6, v0
s_and_b32 s{t3}, s2, 7
v_readfirstlane_b32 s{sW}, v1
v_and_b32 v{vLN}, 63, v0
s_and_b32 s{sJ}, s{t0}, 7
s_lshr_b32 s{t2}, s{t0}, 3
s_lshl2_add_u32 s{sRB}, s{t3}, s{t2}
s_mov_b32 s{SX + 3}, 0x20000
v_lshrrev_b32 v{vR8}, 3, v{vLN}
v_and_b32 v{vC8}, 7, v{vLN}
s_lshl_b32 s{t2}, s{sW}, 14
v_lshl_add_u32 v{vX0}, v{vR8}, 10, s{t2}
v_lshl_add_u32 v{vX0}, v{vC8}, 4, v{vX0}
v_add_u32 v{vX1}, 8192, v{vX0}
s_lshl2_add_u32 s{sGW}, s{t0}, s{sW}
s_lshl_b32 s{t0}, s{sRB}, 16
s_lshl_b32 s{t1}, s{sJ}, 7
s_mov_b32 s{t4}, s{t1}
s_sub_u32 s{SX + 2}, {2048 * 1024}, s{t0}
s_waitcnt lgkmcnt(0)
""")
stamp("karg")
p(f"s_add_u32 s{SX}, s{SX}, s{t0}")
p(f"s_addc_u32 s{SX + 1}, s{SX + 1}, 0")


def x_load(i):
    g = Prog()
    if i:
        g(f"s_add_u32 s{t4}, s{t4}, 128")
        g(f"s_and_b32 s{t4}, s{t4}, 0x380")
    g(f"buffer_load_dwordx4 {v(XR + i * 8, 4)}, v{vX0}, {srd(SX)}, s{t4} offen {XAUX}")
    g(f"buffer_load_dwordx4 {v(XR + i * 8 + 4, 4)}, v{vX1}, {srd(SX)}, s{t4} offen {XAUX}")
    return split_dma(g.ins)


p.extend(flat(x_load(0) + x_load(1)))
p("""
s_load_dwordx2 s[16:17], s[0:1], 16
s_load_dwordx2 s[20:21], s[0:1], 32
s_load_dwordx2 s[40:41], s[0:1], 40
s_load_dwordx2 s[24:25], s[0:1], 48
s_load_dwordx2 s[44:45], s[0:1], 56
s_load_dwordx2 s[28:29], s[0:1], 64
s_load_dwordx2 s[36:37], s[0:1], 72
""")

su = []


def S(text):
    su.extend(singles(G(text)))


def SA(text):
    su.append(G(text))


S(f"""
s_mov_b32 s{SWQ + 2}, {512 * 3072}
s_mov_b32 s{SWQ + 3}, 0x20000
s_lshr_b32 s{sRT}, s{sW}, 1
s_and_b32 s{sLO}, s{sW}, 1
s_lshl_b32 s{sW4K}, s{sW}, 12
s_lshl3_add_u32 s{sVID}, s{sRB}, s{sJ}
s_and_b32 s{sJJ}, s{sVID}, 15
s_lshl1_add_u32 s{t2}, s2, s{sRT}
s_mul_i32 s{t2}, s{t2}, 24
s_lshl3_add_u32 s{t3}, s{sLO}, s{t2}
v_add_lshl_u32 v{vTA}, v{vLN}, s{t3}, 7
s_lshl2_add_u32 s{t3}, s{sLO}, s{t2}
v_add_lshl_u32 v{vTB}, v{vLN}, s{t3}, 7
""")
NPRE = len(su)
for n, sz in ((SWS, WS_SIZE), (SWO, 512 * 1024), (SW1, 512 * 2752), (SW2, 1376 * 1024), (SDBG, 256), (SB1, 2752), (SB2, 1024)):
    S(f"s_mov_b32 s{n + 2}, {sz}\ns_mov_b32 s{n + 3}, 0x20000")
S(f"""
v_lshlrev_b32 v{vL16}, 4, v{vLN}
v_and_b32 v{vTK}, 31, v{vLN}
v_lshrrev_b32 v{vHI}, 5, v{vLN}
v_mov_b32 v{vZ}, 0
v_mov_b32 v{ST}, 0
v_mov_b32 v{ST + 1}, 0
v_mov_b32 v{ST + 2}, 0
v_mov_b32 v{ST + 3}, 0
s_lshl_b32 s{sFKV}, s{sVID}, 7
s_lshr_b32 s{sGF}, s{sVID}, 4
s_lshl_b32 s{sGF}, s{sGF}, 10
s_add_u32 s{sGF}, s{sGF}, {WS_GF}
v_lshl_add_u32 v40, v{vLN}, 7, s{sFKV}
s_sub_u32 s{t2}, s{sGF}, 256
v_add_u32 v41, s{t2}, v{vL16}
v_cmp_gt_u32 vcc, 16, v{vLN}
s_or_b32 s{t2}, s{sJJ}, s{sW}
s_mov_b32 s{sLD + 1}, 0
v_cndmask_b32 v40, v41, v40, vcc
""")
su.append(G(f"""
s_cmp_eq_u32 s{t2}, 0
s_cselect_b32 s{sLD}, 1, 0
s_cselect_b64 exec, -1, 0
""") + G(f"buffer_store_dwordx4 {v(ST, 4)}, v40, {srd(SWS)}, 0 offen sc1", cond=True) + G("s_mov_b64 exec, -1"))
S(f"""
v_lshrrev_b32 v10, 2, v{vLN}
v_and_b32 v10, 4, v10
v_xor_b32 v10, v10, v{vC8}
v_lshl_add_u32 v10, v10, 4, s{t1}
v_lshl_add_u32 v{vWO}, v{vR8}, 10, v10
v_add_u32 v{vWO + 1}, {1 * 7168}, v{vWO}
v_add_u32 v{vWO + 2}, {2 * 7168}, v{vWO}
v_add_u32 v{vWO + 3}, {3 * 7168}, v{vWO}
v_lshl_add_u32 v10, v{vR8}, 11, v{vWO}
s_mul_i32 s{t2}, s{sW}, 49152
v_add_u32 v{vKV + 2}, s{t2}, v10
v_add_u32 v{vKV}, 1024, v{vKV + 2}
v_add_u32 v{vKV + 1}, 24576, v{vKV + 2}
v_add_u32 v{vKV + 3}, 23552, v{vKV + 2}
s_mul_i32 s{t2}, s{sLO}, 98304
v_add_u32 v{vQ}, s{t2}, v10
v_add_u32 v{vQ + 1}, {1 * 23552}, v{vQ}
v_add_u32 v{vQ + 2}, {2 * 23552}, v{vQ}
v_add_u32 v{vQ + 3}, {3 * 23552}, v{vQ}
s_mov_b32 s{sONE}, 0x3f803f80
s_mov_b32 s{sMSK}, 0xffff0000
s_mov_b32 s{sVM}, 0xffff
s_mov_b32 s{sVM + 1}, 0xffff
s_min_u32 s{sTW}, s{sW}, 2
s_mul_i32 s{sW3K}, s{sW}, 3072
s_mul_i32 s{sKO[0]}, s{sJ}, 196608
""")
for n in range(1, 8):
    S(f"s_add_u32 s{t2}, s{sJ}, {n}\ns_and_b32 s{t2}, s{t2}, 7\ns_mul_i32 s{sKO[n]}, s{t2}, 196608")
S(f"s_add_u32 s{t0}, s{t0}, s{t1}")
SA(f"""
s_add_u32 s{SOUT}, s{SOUT}, s{t0}
s_addc_u32 s{SOUT + 1}, s{SOUT + 1}, 0
s_sub_u32 s{SOUT + 2}, {2048 * 1024}, s{t0}
s_mov_b32 s{SOUT + 3}, 0x20000
s_mov_b64 s[{SKV}:{SKV + 1}], s[{SWS}:{SWS + 1}]
""")
SA(f"""
s_cmp_eq_u32 s{sW}, 0
s_cselect_b64 s[{sF1}:{sF1 + 1}], 1, 0
s_getreg_b32 s{t2}, hwreg(HW_REG_XCC_ID, 0, 4)
s_lshl1_add_u32 s{t2}, s{t2}, 1
v_mov_b32 v{vFL}, s{t2}
""")
for i in range(16):
    S(f"v_accvgpr_write_b32 a{OV + i}, s{sONE}")
msk = G(f"""
v_lshlrev_b32 v42, 2, v{vHI}
v_sub_u32 v42, v{vTK}, v42
v_cvt_f32_i32 v42, v42
v_mov_b32 v43, {f2u(1e30)}
""")
for r in range(16):
    msk += G(f"v_fmaak_f32 v{CA + r}, v42, v43, {f2u((0.5 - ((r & 3) + 8 * (r >> 2))) * 1e30)}")
for r in range(16):
    msk += G(f"v_min_f32 v{CC + r}, 0, v{CA + r}\nv_min_f32_e64 v{CA + r}, 0, -v{CA + r}")
for b in range(4):
    SA(f"s_cmp_ge_u32 s{sRB}, {4 - b}\ns_cselect_b32 s{sVAL[b]}, {WS_SIZE}, 0")
    S(mfma(a(HV + 16 * b, 16), v(ST, 4), v(ST, 4), a(OV, 16)))
    su.extend(singles(msk[13 * b:13 * b + 13]))
SA(f"s_cmp_lt_u32 s{sRB}, 4\ns_cbranch_scc1 L_head\nL_head_r:")
tail("L_head:")
for b in range(4):
    tail(mfma(a(HV + 16 * b, 16), v(ST, 4), v(ST, 4), "0"))
    if b < 3:
        tail(f"s_cmp_ge_u32 s{sRB}, {3 - b}\ns_cbranch_scc1 L_head_r")
tail("s_branch L_head_r")
S(f"""
v_xor_b32 v41, v{vR8}, v{vC8}
v_lshlrev_b32 v41, 4, v41
v_lshl_add_u32 v{vXW}, v{vC8}, 9, v41
s_lshl_b32 s{t2}, s{sRT}, 12
s_lshl_b32 s{t3}, s{sLO}, 8
s_add_u32 s{t3}, s{t3}, s{t2}
v_add_u32 v{vXW}, s{t3}, v{vXW}
v_xor_b32 v{vXN}, v{vHI}, v{vLN}
v_lshl_add_u32 v{vXN}, v{vXN}, 4, s{t2}
v_xor_b32 v{vXN + 1}, 32, v{vXN}
v_xor_b32 v{vXN + 2}, 64, v{vXN}
v_xor_b32 v{vXN + 3}, 96, v{vXN}
v_bfe_u32 v42, v{vTK}, 1, 3
s_lshl_b32 s{t3}, s{sLO}, 2
v_xor_b32 v42, s{t3}, v42
v_lshl_add_u32 v42, v42, 4, s{t2}
v_lshl_add_u32 v42, v{vTK}, 7, v42
v_lshl_add_u32 v{vXS}, v{vHI}, 3, v42
v_xor_b32 v{vXS + 1}, 16, v{vXS}
v_xor_b32 v{vXS + 2}, 32, v{vXS}
v_xor_b32 v{vXS + 3}, 48, v{vXS}
v_bfe_u32 v42, v{vLN}, 2, 2
v_lshrrev_b32 v43, 1, v42
v_xor_b32 v43, s{sLO}, v43
v_bfe_u32 v41, v{vLN}, 4, 1
v_and_b32 v44, 3, v{vLN}
v_lshlrev_b32 v45, 3, v44
v_lshl_add_u32 v45, v41, 5, v45
v_lshl_add_u32 v43, v43, 6, v45
v_lshl_add_u32 v{vTR}, v42, 7, v43
v_lshl_add_u32 v42, v{vHI}, 2, v42
v_mul_u32_u24 v{vT1}, 192, v42
v_add_u32 v{vT1}, v{vT1}, v45
v_add_u32 v{vT1H}, 0x10000, v{vT1}
v_lshl_add_u32 v{vP1}, v{vHI}, 10, v{vTR}
v_add_u32 v{vP1 + 1}, 0x10000, v{vP1}
v_add_u32 v{vP1 + 2}, 0x20000, v{vP1}
v_lshl_add_u32 v{vTR}, v{vHI}, 9, v{vTR}
s_lshl_b32 s{t2}, s{sLO}, 14
s_add_u32 s{t2}, s{t2}, {WOL}
v_add_u32 v{vWR}, s{t2}, v{vTR}
v_xor_b32 v{vWR + 1}, 64, v{vWR}
s_lshr_b32 s{t2}, s{sVID}, 4
v_min_u32 v{vDB}, 2, v44
v_sub_u32 v{vDB}, s{t2}, v{vDB}
v_max_i32 v{vDB}, 0, v{vDB}
v_lshlrev_b32 v{vDB}, 2, v{vDB}
s_sub_u32 s{t3}, s{sVID}, 32
v_lshl_add_u32 v{vKF}, v44, 3, s{t3}
v_mov_b32 v44, s{sVID}
v_cmp_gt_i32 vcc, 0, v{vKF}
v_and_b32 v{vPL}, 15, v{vLN}
v_lshlrev_b32 v{vVL}, 4, v{vPL}
v_cndmask_b32 v{vKF}, v{vKF}, v44, vcc
v_lshlrev_b32 v{vKF}, 7, v{vKF}
s_and_b32 s{t2}, s{sVID}, 0xf0
v_add_lshl_u32 v{vGK}, v{vPL}, s{t2}, 7
v_lshlrev_b32 v{vPL}, 2, v{vPL}
v_lshl_add_u32 v{vVL}, v{vHI}, 8, v{vVL}
v_lshl_add_u32 v{vVG}, v41, 11, v{vVL}
s_lshl_b32 s{t3}, s{sW3K}, 1
v_add_u32 v{vEXW}, s{t3}, v{vL16}
v_mul_u32_u24 v{vEVW}, 3072, v41
v_add3_u32 v{vEVW}, v{vEVW}, v{vVL}, s{t3}
v_add_u32 v{vEXR}, s{sW3K}, v{vL16}
v_add_u32 v{vEVR}, s{sW3K}, v{vVL}
v_lshrrev_b32 v42, 1, v{vR8}
v_xor_b32 v42, v42, v{vC8}
s_lshl_b32 s{t3}, s{sW}, 11
v_lshl_add_u32 v42, v42, 4, s{t3}
v_lshl_add_u32 v{vXW0}, v{vR8}, 7, v42
v_xor_b32 v{vXW1}, 64, v{vXW0}
s_lshl1_add_u32 s{t2}, s{sRB}, s{sRT}
s_lshl3_add_u32 s{t2}, s{t2}, s{sJ}
s_lshl1_add_u32 s{sD}, s{t2}, s{sLO}
s_lshl_b32 s{sA}, s{sD}, 12
s_add_u32 s{sA}, s{sA}, {WS_KV}
s_lshl4_add_u32 s{sB}, s{sRB}, s{sJ}
s_lshl2_add_u32 s{sB}, s{sB}, s{sW}
s_lshl2_add_u32 s{sFO}, s{sJJ}, s{sW}
s_lshl2_add_u32 s{sFO}, s{sFO}, s{sGF}
v_mov_b32 v{vBIG}, {f2u(2.0 ** 64)}
s_min_u32 s{t0}, s{sJJ}, 11
s_lshl1_add_u32 s{t0}, s{sJJ}, s{t0}
s_lshl_b32 s{t0}, s{t0}, 6
s_mul_i32 s{t2}, s{sW}, 44032
s_add_u32 s{t2}, s{t2}, s{t0}
v_add_u32 v41, s{t2}, v{vL16}
s_movk_i32 s{t2}, 2560
""")
SA(f"s_cmp_lt_u32 s{sJJ}, 11\ns_cselect_b32 s{sE}, 0, 0x40000000")
for i in range(3):
    S(f"""
v_add_u32 v42, {64 * i}, v{vLN}
v_mul_u32_u24 v43, 0x5556, v42
v_lshrrev_b32 v43, 18, v43
v_mad_i32_i24 v42, v43, -12, v42
v_mad_u32_u24 v{vW1 + i}, v43, s{t2}, v41
v_lshrrev_b32 v42, 3, v42
v_mul_lo_u32 v42, v42, s{sE}
v_add_u32 v{vW1 + i}, v{vW1 + i}, v42
""")
S(f"""
v_add_u32 v{vU1}, 45056, v{vL16}
v_add_u32 v{vS2}, s{sE}, v{vL16}
""")


def kv_dma(n):
    g = Prog()
    g(f"s_add_u32 m0, s{sW4K}, {KVSLOT[n]}")
    for i in range(4):
        g(f"buffer_load_dwordx4 v{vKV + i}, {srd(SWQ)}, s{sKO[n]} offen offset:{i * 1024} lds", tag="kv%d" % n)
    return split_dma(g.ins)


def q_dma(n):
    g = Prog()
    g(f"s_add_u32 m0, s{sW4K}, {QSLOT[n]}")
    g(f"s_cmp_eq_u32 s{sRT}, 0")
    g(f"s_cselect_b32 s{t5}, s{sKO[2 * n]}, s{sKO[2 * n + 1]}")
    for i in range(4):
        g(f"buffer_load_dwordx4 v{vQ + i}, {srd(SWQ)}, s{t5} offen offset:{i * 1024} lds", tag="q%d" % n)
    return split_dma(g.ins)


def wo_dma(n):
    g = Prog()
    g(f"s_add_u32 m0, s{sW4K}, {WOL + (n >> 1) * 16384 + (n & 1) * 32768}")
    g(f"s_lshl3_add_u32 s{t5}, s{sW4K}, {n * 131072}")
    for i in range(4):
        g(f"buffer_load_dwordx4 v{vWO + i}, {srd(SWO)}, s{t5} offen offset:{i * 1024} lds", tag="wo%d" % n)
    return split_dma(g.ins)


def w1_dma(n):
    g = Prog()
    g(f"s_add_u32 m0, s{sW3K}, {n * 12288}")
    if HROT:
        g(f"s_lshl{HROT}_add_u32 s{t5}, s{sJ}, {n}" if HROT < 3 else f"s_add_u32 s{t5}, s{sJ}, {n}")
        g(f"s_and_b32 s{t5}, s{t5}, 7")
        g(f"s_mul_i32 s{t5}, s{t5}, {4 * 44032}")
    else:
        g(f"s_mov_b32 s{t5}, {n * 4 * 44032}")
    for i in range(3):
        g(f"buffer_load_dwordx4 v{vW1 + i}, {srd(SW1)}, s{t5} offen offset:{i * 1024} lds", tag="w1")
    return split_dma(g.ins)


def touch(items):
    g = Prog()
    for vd, sidx, n, sh, srdn, off in items:
        if sidx is not None:
            g(f"s_mul_i32 s{t3}, s{sidx}, {n}")
            g(f"v_add_lshl_u32 v{vd}, v{vLN}, s{t3}, {sh}")
    for vd, sidx, n, sh, srdn, off in items:
        g(f"s_mov_b64 exec, {(1 << n) - 1}")
        g(f"buffer_load_dword v{vd}, v{vd}, {srd(srdn)}, 0 offen offset:{off}")
    g("s_mov_b64 exec, -1")
    return g.ins


gw = G(f"s_lshl2_add_u32 s{t2}, s2, s{sW}")
small = G(f"""
s_lshl_b32 s{t2}, s{sLO}, 6
s_add_u32 s{t2}, s{t2}, s{t1}
v_lshl_add_u32 v{vB1}, v{vHI}, 3, s{t2}
""")
for u in range(4):
    small += G(f"buffer_load_dwordx2 {v(B2R + 2 * u, 2)}, v{vB1}, {srd(SB2)}, 0 offen offset:{16 * u}")
small += G(f"""
s_lshl_b32 s{t2}, s{sTW}, 6
s_add_u32 s{t2}, s{t2}, s{t0}
v_lshl_add_u32 v{vB1}, v{vTK}, 1, s{t2}
buffer_load_ushort v{vB1}, v{vB1}, {srd(SB1)}, 0 offen
""")
tok = {"tk": [touch([(vTA, None, 8, 0, SWQ, 1024)])],
       "tq": [touch([(vTA, None, 8, 0, SWQ, 1024), (vTB, None, 4, 0, SWQ, 0)])],
       "tw": [gw + touch([(200, t2, 4, 7, SWO, 0), (202, sGW, 4, 10, SWO, 384)])],
       "cq": [touch([(201, sGW, 12, 10, SWQ, 384)])],
       "to": [gw + touch([(vTB, None, 4, 0, SWQ, 0), (200, t2, 4, 7, SWO, 0)])],
       "c3": [touch([(201, sGW, 12, 10, SWQ, 384), (202, sGW, 4, 10, SWO, 384)])],
       "t1": [gw + touch([(203, t2, 11, 7, SW1, 0)])],
       "t2": [gw + touch([(204, t2, 11, 7, SW2, 0)])],
       "sm": [small]}
for i in range(2, 8):
    tok["x%d" % i] = x_load(i)
for n in range(8):
    tok["k%d" % n] = kv_dma(n)
for n in range(4):
    tok["q%d" % n] = q_dma(n)
ORDER = E("ORDER", "tk,x2,x3,x4,x5,x6,x7,c3,k0,k1,k2,k3,to,sm,k4,k5,k6,k7,t1,t2,q0,q1,q2,q3").split(",")
dm = flat([tok[x] for x in ORDER])
xpos = {i: max(k_ for k_, g in enumerate(dm) if g in tok["x%d" % i]) for i in range(2, 8)}
NF1, NF2 = I("NF1", 4), I("NF2", 5)
tok_ok = ORDER[:3]
NFP = I("NFP", 999)
cut = next((k_ for k_ in range(len(su)) if sum(map(len, su[:k_])) >= NFP), len(su))
print("setup instrs", sum(map(len, su)), file=sys.stderr)
assert cut == len(su) or all(g[-1].tag or g[-1].wr for g in dm[NF1:NF1 + NF2])
p.extend(weave(su[:cut], dm[:NF1], NPRE, I("NFSTEP", 12)))
p.extend(weave(su[cut:], dm[NF1:NF1 + NF2], 0, I("NFS2", 14)))
issued = NF1 + NF2
WOE = I("WOE", 0)
dm = dm[issued:] + (wo_dma(0) + wo_dma(2) if WOE else [])
avail = {"q0": 9, "q1": 9, "q2": 15, "q3": 15, "wo0": 25, "wo2": 25}


def pop_dm(now, n=1):
    out = []
    for _ in range(n):
        if dm and avail.get(dm[0][-1].tag, -1) <= now:
            out += dm.pop(0)
    return out


stamp("setup")

for i in range(8):
    body = []
    for r in range(4):
        for gq in range(2):
            x = XR + i * 8 + gq * 4 + r
            body += G(f"v_dot2c_f32_bf16 v{ST + 2 * gq}, s{sONE}, v{x}\nv_dot2c_f32_bf16 v{ST + 2 * gq + 1}, v{x}, v{x}")
    assert i < 2 or xpos[i] < issued
    take = int(E("NS", "22222111")[i])
    issued += take
    if i == 4:
        stamp("x4", 9)
    p.extend(body[:1] + pop_dm(-1, take) + body[1:])
stamp("stats")
for mod in ("quad_perm:[1,0,3,2]", "quad_perm:[2,3,0,1]", "row_half_mirror"):
    for i in range(4):
        p(f"v_add_f32_dpp v{ST + i}, v{ST + i}, v{ST + i} {mod} row_mask:0xf bank_mask:0xf")
for fmt in ("v_mul_f32 v{s}, %s, v{s}" % f2u(1.0 / 512), "v_mul_f32 v{q}, %s, v{q}" % f2u(1.0 / 512),
            "v_fma_f32 v{q}, -v{s}, v{s}, v{q}", "v_max_f32 v{q}, 0, v{q}", "v_add_f32 v{q}, %s, v{q}" % f2u(1e-5),
            "v_rsq_f32 v{q}, v{q}", "v_mul_f32_e64 v{s}, -v{s}, v{q}"):
    for gq in range(2):
        p(fmt.format(s=ST + 2 * gq, q=ST + 2 * gq + 1))


def ln_half(hf, nld):
    for i in range(4 * hf, 4 * hf + 4):
        for gq in range(2):
            src = XR + i * 8 + gq * 4
            dst = src if i else D0 + gq * 4
            pr = v(ST + 2 * gq, 2)
            for r in range(4):
                p(f"v_lshlrev_b32 v{TMP + 2 * r}, 16, v{src + r}")
                p(f"v_and_b32 v{TMP + 2 * r + 1}, s{sMSK}, v{src + r}")
                if r == 2:
                    p.extend(pop_dm(16 * hf - 1, int(nld[4 * (i & 3) + 2 * gq])))
            for r in range(4):
                p(f"v_pk_fma_f32 {v(TMP + 2 * r, 2)}, {v(TMP + 2 * r, 2)}, {pr}, {pr} op_sel:[0,1,0] op_sel_hi:[1,1,0]")
            p.extend(pop_dm(16 * hf - 1, int(nld[4 * (i & 3) + 2 * gq + 1])))
            for r in range(4):
                p(f"v_cvt_pk_bf16_f32 v{dst + r}, v{TMP + 2 * r}, v{TMP + 2 * r + 1}")
            p(f"ds_write_b128 v{vXW}, {v(dst, 4)} offset:{(i & 3) * 8192 + gq * 128}")


def xn_read(i):
    return G(f"ds_read_b128 {a(4 * i, 4)}, v{vXN + (i & 3)} offset:{((i >> 2) & 3) * 8192 + (i & 3) * 1024}", tag="xnr")


def tr(dst, vb, off, **kw):
    return G(f"ds_read_b64_tr_b16 {dst}, v{vb + (off >> 16)} offset:{off & 0xffff}", **kw)


def kv_read(ks, part):
    base = KVSLOT[ks >> 2] + (ks & 3) * 4096 + part * 2048
    st = WR + (ks & 3) * 8 + part * 4
    return tr(a(st, 2), vP1, base) + tr(a(st + 2, 2), vP1, base + 512)


def q_read(ks):
    base = QSLOT[ks >> 3] + (ks & 7) * 2048
    st = WR + (ks & 7) * 4
    return tr(a(st, 2), vP1, base) + tr(a(st + 2, 2), vP1, base + 512)


NKV = E("NKV", "1" * 32)
for hf in range(2):
    ln_half(hf, E("NLN%d" % hf, ["0001011011011011", "1011011011011010"][hf]))
    k0 = 16 * hf
    stamp("l%d" % hf, 9)
    p.extend(W("kv%d" % (4 * hf + 1)) + WD() + BAR())
    stamp("ln%d" % hf)
    p.extend(xn_read(k0) + kv_read(k0, 0) + kv_read(k0, 1) + xn_read(k0 + 1) + kv_read(k0 + 1, 0) + kv_read(k0 + 1, 1))
    if hf == 0:
        p(f"s_lshr_b32 s{t2}, s{sVID}, 2\ns_mov_b64 exec, s[{sLD}:{sLD + 1}]")
        p(f"buffer_store_dword v{vFL}, v{vZ}, {srd(SDBG)}, s{t2} offen sc1", cond=True)
        p("s_mov_b64 exec, -1")
    else:
        p.extend(apoll_issue(vDB, SDBG))
    p.extend(xn_read(k0 + 2) + kv_read(k0 + 2, 0) + kv_read(k0 + 2, 1))
    for ks in range(k0, k0 + 16):
        nk = ks + 3
        st = WR + (ks & 3) * 8
        pre = []
        if ks == k0 + 5:
            pre = W("kv%d" % (4 * hf + 2)) + BAR()
        if ks == k0 + 9:
            pre = W("kv%d" % (4 * hf + 3)) + BAR()
        if ks == 15:
            pre = WD() + BAR()
        if ks == 29:
            pre = W("q1") + BAR()
        p(mfma(v(ACK, 16), a(st, 4), a(4 * ks, 4), v(ACK, 16) if ks else "0"))
        p.extend(pre + pop_dm(ks, int(NKV[ks])))
        if nk < k0 + 16:
            p.extend(kv_read(nk, 0))
        elif hf:
            p.extend(q_read(2 * (nk - 32)))
        p(mfma(v(ACV, 16), a(4 * ks, 4), a(st + 4, 4), v(ACV, 16) if ks else "0"))
        if nk < k0 + 16:
            p.extend(kv_read(nk, 1) + xn_read(nk))
        elif hf:
            p.extend(q_read(2 * (nk - 32) + 1) + pop_dm(ks))
        if ks in (0, 7, 16, 23):
            stamp("k%d" % ks, 9)
    stamp("kv%d" % hf)
assert not dm, len(dm)

cvt = lambda d, s_, n: flat([G(f"v_cvt_pk_bf16_f32 v{d + i}, v{s_ + 2 * i}, v{s_ + 2 * i + 1}") for i in range(n)])
kvst = [G(f"buffer_store_dwordx4 {v(PK + 4 * i, 4)}, v{[vL16, vVG][i >> 1]}, {srd(SWS)}, s{sA} offen offset:{[0, 2048, 1024, 1536][i]} sc1", tag="kvst")
        for i in range(4)]
exw = [G(f"ds_write_b128 v{vEXW}, {v(PK, 4)} offset:1024"),
       G(f"ds_write_b128 v{vEXW}, {v(PK + 4, 4)} offset:{3072 + 1024}"),
       G(f"ds_write_b128 v{vEVW}, {v(PK + 8, 4)} offset:2048"),
       G(f"ds_write_b128 v{vEVW}, {v(PK + 12, 4)} offset:{2048 + 512}"),
       G(f"ds_write_b128 v{vXW0}, {v(XR, 4)} offset:{XRES}"),
       G(f"ds_write_b128 v{vXW1}, {v(XR + 4, 4)} offset:{XRES + 1024}")]
misc = G(f"""
s_mov_b32 s{sC[0]}, {f2u(0.25 * math.log2(math.e))}
s_lshl_b32 s{t4}, s{sB}, 11
s_add_u32 s{t4}, s{t4}, {WS_KV - 8 * 65536}
s_lshl_b32 s{sA}, s{sB}, 10
s_add_u32 s{sA}, s{sA}, {WS_O}
s_add_u32 s{sB}, s{sA}, 32768
s_mul_i32 s{sW96}, s{sW}, 98304
s_lshl_b32 s{sW64}, s{sW}, 16
s_and_b32 s{sPO}, s{sFO}, 0xffffff80
s_lshl_b32 s{t2}, s{sLO}, 6
s_add_u32 s{sPO}, s{sPO}, s{t2}
s_lshl2_add_u32 s{t2}, s{sRB}, s{sW}
s_lshl_b32 s{sOB}, s{t2}, 14
s_add_u32 s{sOB}, s{sOB}, {WS_O}
s_mul_i32 s{sHHB}, s{t2}, 45056
s_add_u32 s{sHHB}, s{sHHB}, {WS_HH}
""")
heavy = {0: cvt(PK, ACK, 4), 1: kvst[0] + cvt(PK + 4, ACK + 8, 4), 2: kvst[1] + cvt(PK + 8, ACV, 4),
         3: kvst[2] + cvt(PK + 12, ACV + 8, 4), 4: kvst[3]}
for i in range(6):
    heavy[7 + 2 * i] = exw[i]
w1d = flat([w1_dma(n) for n in (3, 4, 5, 6, 7, 0, 1, 2)])
late = ([] if WOE else wo_dma(0) + wo_dma(2)) + wo_dma(1) + wo_dma(3)
nwo = len(late)
FLAGAT = I("FLAGAT", 29)
NQ = E("NQ", "00000000000000000001010101010101")
NQE = E("NQE", "2232")
for _ in range(sum(map(int, NQ + NQE)) - nwo):
    late.append(w1d.pop(0))
assert sum(map(int, NQ + NQE[:3])) <= nwo + 6 and len(late) <= nwo + 15 and sum(map(int, NQ + NQE)) >= nwo
for ks in range(32):
    for _ in range(int(NQ[ks])):
        assert ks > 6 and (ks > 18 or late[0][-1].tag != "w1")
        heavy.setdefault(ks, []).extend(late.pop(0))
nq = 6
for ks in range(32):
    p(mfma(v(ACQ, 16), a(WR + (ks & 7) * 4, 4), a(4 * ks, 4), v(ACQ, 16) if ks else "0"))
    if ks == 6:
        p.extend(W("q3") + BAR())
    if ks == 18:
        p("s_barrier")
    if ks == FLAGAT:
        p.extend(apoll_check(vDB, SDBG) + W("kvst") + BAR())
        p(f"s_mov_b64 exec, s[{sF1}:{sF1 + 1}]")
        p(f"buffer_store_dword v{vFL}, v{vZ}, {srd(SWS)}, s{sFKV} offen sc1", cond=True)
        p("s_mov_b64 exec, -1")
    n_rd = 2 if ks not in heavy else (1 if nq - ks <= 3 else 0)
    for _ in range(n_rd):
        if nq < 32 and nq <= ks + 7:
            assert nq < 16 or ks >= 6
            p.extend(q_read(nq))
            nq += 1
    p.extend(heavy.get(ks, []))
    if ks >= 24 and ks not in heavy:
        p.extend(misc[:4])
        misc = misc[4:]
    if ks in (7, 15, 23, 31):
        stamp("q%d" % ks, 9)
assert nq == 32
popn = lambda l, n: flat([l.pop(0) for _ in range(n)])
p.extend(misc + popn(late, int(NQE[0])))
for u in range(2):
    for i in range(4 * u, 4 * u + 4):
        p(f"v_pk_mul_f32 {v(ACQ + 2 * i, 2)}, {v(ACQ + 2 * i, 2)}, s[{sC[0]}:{sC[1]}] op_sel_hi:[1,0]")
    p.extend(cvt(PK + 4 * u, ACQ + 8 * u, 4))
    p(f"ds_write_b128 v{vEXW}, {v(PK + 4 * u, 4)} offset:{3072 * u}")
    p.extend(popn(late, int(NQE[1 + u])))
p.extend(WD() + BAR())
stamp("q")
for rt in range(2):
    p(f"ds_read_b128 {a(OQ + 4 * rt, 4)}, v{vEXR} offset:{rt * 12288}")
    p(f"ds_read_b128 {a(OK_ + 4 * rt, 4)}, v{vEXR} offset:{rt * 12288 + 1024}")
p(f"s_mov_b64 exec, s[{sVM}:{sVM + 1}]")
for rt in range(2):
    for u in range(2):
        p(f"ds_read_b128 {a(OV + 8 * rt + 4 * u, 4)}, v{vEVR} offset:{rt * 12288 + 2048 + u * 512}")
p("s_mov_b64 exec, -1")
for u in range(4):
    p(f"ds_read_b64 {v(XS + 2 * u, 2)}, v{vXS + u} offset:{XRES}")
wor = []
for ks in range(16):
    for b in range(2):
        for h in range(2):
            wor += tr(a((ks * 2 + b) * 4 + 2 * h, 2), vWR + b, (ks >> 3) * 32768 + (ks & 7) * 2048 + h * 1024)
KPI = I("KPI", 8)
if WOE:
    p.extend(flat(late) + wor[:KPI] + apoll_issue(vKF, SWS) + wor[KPI:32])
    wor = wor[32:]
else:
    p.extend(flat(late) + apoll_issue(vKF, SWS))
p(f"""
v_mov_b32 v{vFL}, 1
s_mov_b32 s{sC[0]}, {f2u(2.0 ** -64)}
v_min_u32 v78, 5, v{vLN}
v_lshlrev_b32 v78, 7, v78
""")

SB, PB, OA, OPK = [80, 96], [112, 120], [128, 144], [72, 64]


def kfrag(t):
    return a(OK_ + 4 * t[1], 4) if t[0] == "o" else v(HK + 4 * t[1], 4)


def vfrag(t, u):
    return a((OV if t[0] == "o" else HV) + 8 * t[1] + 4 * u, 4)


steps = [(0, ("o", 0), CC), (1, ("o", 0), None), (1, ("o", 1), CC)]
if I("Q0F", 1):
    steps += [(0, ("h", i), None if i else CA) for i in range(7, -1, -1)]
    steps += [(1, ("h", i), None if i > 1 else CA) for i in range(7, 0, -1)]
else:
    for i in range(7, 3, -1):
        steps += [(0, ("h", i), None), (1, ("h", i), None)]
    steps += [(0, ("h", i), None if i else CA) for i in range(3, -1, -1)]
    steps += [(1, ("h", i), None if i > 1 else CA) for i in range(3, 0, -1)]
LAST0 = max(n for n, s_ in enumerate(steps) if s_[0] == 0)


def s_mfma(n):
    q, t, c = steps[n]
    return mfma(v(SB[n & 1], 16), kfrag(t), a(OQ + 4 * q, 4), v(c, 16) if c else "0")


p.extend(WD())
stamp("pre", 9)
p(s_mfma(0))
p.extend(bpoll_check(vKF, SWS))
stamp("kvpoll")


def halo(i):
    g = Prog()
    if i & 1:
        g(f"s_mov_b32 s{SKV + 2}, s{sVAL[i >> 1]}")
    g(f"s_add_u32 s{t3}, s{t4}, {i * 65536}")
    g(f"buffer_load_dwordx4 {v(HK + 4 * i, 4)}, v{vL16}, {srd(SKV)}, s{t3} offen sc1")
    g2 = Prog()
    g2(f"s_mov_b64 exec, s[{sVM}:{sVM + 1}]")
    g2(f"buffer_load_dwordx4 {a(HV + 8 * i, 4)}, v{vVL}, {srd(SKV)}, s{t3} offen offset:1024 sc1")
    g2(f"buffer_load_dwordx4 {a(HV + 8 * i + 4, 4)}, v{vVL}, {srd(SKV)}, s{t3} offen offset:1536 sc1")
    g2("s_mov_b64 exec, -1")
    return [g.ins, g2.ins]


def w2_lds(pos):
    return WIN + (pos % 12) * 4096 if pos < 32 else (pos - 32) * 4096


def w2_dma(i):
    g = Prog()
    g(f"s_add_u32 m0, s{sW4K}, {w2_lds(4 * i)}")
    if i & 3 < 3:
        g(f"s_add_u32 s{t5}, s{sW96}, {(12 * (i & 3) + (i >> 2)) * 32768}")
    else:
        g(f"s_add_u32 s{t5}, s{sW64}, {(35 + (i >> 2)) * 32768}")
    for k_ in range(4):
        g(f"buffer_load_dwordx4 v{vWO + k_}, {srd(SW2)}, s{t5} offen offset:{k_ * 1024} lds", tag="w2_%d" % i)
    return split_dma(g.ins)


SKEW5 = I("SKEW5", 6)


def w2_reg(pos):
    if pos < 16:
        return 128 + 8 * pos
    if pos < 20:
        return 32 + 8 * (pos - 16)
    return 128 + 8 * ((pos - 20) & 15)


def w2_read(pos):
    off, dst = w2_lds(pos), w2_reg(pos)
    g = []
    for b in (1, 0):
        for h in range(2):
            if pos < 32:
                g += tr(a(dst + 4 * b + 2 * h, 2), vWR + b, off - WIN + h * 1024, tag="w2r")
            else:
                g += tr(a(dst + 4 * b + 2 * h, 2), vW2L + b, off + h * 1024, tag="w2r")
    return g


def o_epilogue(qq, pk):
    q_ = Prog()
    q_(f"v_rcp_f32 v{OA[qq] + 8}, v{OA[qq] + 8}")
    if pk:
        for i in range(4):
            q_(f"v_pk_mul_f32 {v(OA[qq] + 2 * i, 2)}, {v(OA[qq] + 2 * i, 2)}, {v(OA[qq] + 8, 2)} op_sel_hi:[1,0]")
    else:
        for i in range(8):
            q_(f"v_mul_f32 v{OA[qq] + i}, v{OA[qq] + i}, v{OA[qq] + 8}")
    q_.extend(cvt(OPK[qq], OA[qq], 4))
    q_(f"buffer_store_dwordx4 {v(OPK[qq], 4)}, v{vL16}, {srd(SWS)}, s{[sA, sB][qq]} offen sc1", tag="ost")
    return q_.ins


hl = flat([halo(i) for i in range(7, -1, -1)])
NHP = I("NHP", 3)
p.extend(flat(hl[:NHP]))
hl = hl[NHP:]
p("s_barrier")
pts = [[] for _ in range(54)]
for i, g in enumerate(hl):
    pts[i] += g
for i in range(8):
    pts[i] += wor[4 * i:4 * i + 4]
nxt = len(hl)
pts[nxt] += apoll_issue(vGK, SWS)
pts[nxt + 1] += G(f"buffer_load_dword v78, v78, {srd(SWS)}, s{sGF} offen")
e0 = o_epilogue(0, False)
pts[3 * LAST0 + 4] += G(f"v_med3_f32 v77, v{OA[0] + 8}, s{sC[0]}, v{vBIG}\nv_cmp_neq_f32 s[0:1], v77, v{OA[0] + 8}") + e0[:-1]
pts[max(I("OST", 47), 3 * LAST0 + 5)] += e0[-1:]
w2g = [w2_dma(i) for i in range(11)]
osync = w2g[0] + w2g[1]
C3P = I("C3P", 9)
dmas = w1d[:C3P] + [touch([(79, sGW, 11, 10, SW2, 384)])] + w1d[C3P:] + (osync if WOE else [])
if "t2" not in ORDER:
    dmas.insert(I("T2P", 0), G(f"""
s_lshr_b32 s{t3}, s{sVID}, 4
s_mul_i32 s{t3}, s{t3}, 5
s_add_u32 s{t3}, s{t3}, s{sJJ}
s_lshl2_add_u32 s{t3}, s{t3}, s{sW}
s_sub_u32 s{t3}, s{t3}, 44
s_mul_i32 s{t3}, s{t3}, 35
v_add_lshl_u32 v76, v{vLN}, s{t3}, 7
s_cmp_ge_u32 s{sJJ}, 11
s_cselect_b32 exec_lo, -1, 0
s_cselect_b32 exec_hi, 7, 0
""") + G(f"buffer_load_dword v76, v76, {srd(SW2)}, 0 offen", cond=True) + G("s_mov_b64 exec, -1"))
DSTART, DEND = nxt + 2, I("DEND", 46)
for i, g in enumerate(dmas):
    pts[DSTART + (i * (DEND - DSTART)) // len(dmas)] += g
seen = set()
pend = None
for n in range(18):
    q, t, c = steps[n]
    S_, P_ = SB[n & 1], PB[n & 1]
    ex = lambda lo, hi: [p(f"v_exp_f32 v{S_ + r}, v{S_ + r}") for r in range(lo, hi)]
    ex(0, 2)
    if pend:
        p(pend)
        p.extend(pts[3 * n - 1])
    ex(2, 6)
    if n + 1 < 18:
        p(s_mfma(n + 1))
    if n in (0, 2, 5, 8, 11, 14):
        stamp("a%d" % n, 9)
    p.extend(pts[3 * n])
    ex(6, 9)
    p.extend(cvt(P_, S_, 4))
    ex(9, 11)
    p(mfma(v(OA[q], 16), vfrag(t, 0), v(P_, 4), v(OA[q], 16) if q in seen else "0"))
    seen.add(q)
    p.extend(pts[3 * n + 1])
    ex(11, 16)
    p.extend(cvt(P_ + 4, S_ + 8, 4))
    pend = mfma(v(OA[q], 16), vfrag(t, 1), v(P_ + 4, 4), v(OA[q], 16))
p(pend)
p.extend(pts[53])
p.extend(apoll_check(vGK, SWS))
p(f"""
v_readfirstlane_b32 s{t2}, v{vP}
s_lshl_b32 s{t3}, s{sTW}, 6
v_add_u32 v{vCA}, s{t3}, v{vT1}
v_add_u32 v{vCA + 1}, s{t3}, v{vT1H}
v_cmp_ne_u32 vcc, s{t2}, v{vP}
v_mov_b32 v{vCS}, 0
v_mov_b32 v{vCS + 1}, 0
s_and_b32 s{sSLOW}, vcc_lo, 0xffff
""")
if FORCE_SLOW:
    p(f"s_mov_b32 s{sSLOW}, 1")
p(f"v_med3_f32 v77, v{OA[1] + 8}, s{sC[0]}, v{vBIG}\nv_cmp_neq_f32 vcc, v77, v{OA[1] + 8}")
p.extend(o_epilogue(1, True))
p("s_or_b64 vcc, vcc, s[0:1]")
p("s_branch L_fallback" if FORCE_FB else "s_cbranch_vccnz L_fallback")
p("L_fbret:")
stamp("attn")
cur_lvl[0] = 8
stamp("attn8", 8)
w2a = G(f"""
s_lshl_b32 s{t2}, s{sLO}, 11
v_add_u32 v{vW2L}, s{t2}, v{vTR}
v_xor_b32 v{vW2L + 1}, 64, v{vW2L}
v_add_u32 v{vWR}, {WIN}, v{vW2L}
v_add_u32 v{vWR + 1}, {WIN}, v{vW2L + 1}
""")
if WOE:
    p.extend(w2a + W("w2_1") + WD() + BAR())
    p.extend(flat(w2g[2]) + flat([w2_read(pos) for pos in range(8)]))
else:
    NO1 = I("NO1", 8)
    p.extend(WD() + BAR())
    p.extend(weave(singles(wor[32:]), osync[:NO1], 0, I("NOS", 2)) + flat(osync[NO1:]) + w2a)
if SELF[0] == "1":
    p(f"v_lshlrev_b32 v76, 7, v{vC8}\nv_lshl_add_u32 v76, v{vR8}, 15, v76")
stamp("opre", 8)
p.extend(W("ost") + flag_store(sFO, vFL) + self_touch(0, vS, 76, sA, 16))
stamp("oack", 8)
for i in range(8):
    p(f"v_lshlrev_b32 v{HR + 2 * i}, 16, v{XS + i}\nv_and_b32 v{HR + 2 * i + 1}, s{sMSK}, v{XS + i}")

CSR = 176


def cs_read(b):
    g = []
    for ks in range(4 * b, 4 * b + 4):
        for h in range(2):
            g += tr(v(CSR + 16 * (b & 3) + 4 * (ks & 3) + 2 * h, 2), vCA, ks * 3072 + h * 1536)
    return g


def cs_dot(b):
    return flat([G(f"v_dot2c_f32_bf16 v{vCS + (r & 1)}, s{sONE}, v{CSR + 16 * (b & 3) + r}") for r in range(16)])


p.extend(apoll_issue(vPL, SWS, sPO))
if not WOE:
    p("s_barrier")
p.extend(flat([cs_read(b) for b in range(4)]))
stamp("ocs", 8)
p.extend(bpoll_check(vPL, SWS, sPO))
stamp("opoll")

OF = 64


def stream_load(dst, sbase, n):
    g = Prog()
    if n and n % 4 == 0:
        g(f"s_add_u32 s{sbase}, s{sbase}, 4096")
    g(f"buffer_load_dwordx4 {dst}, v{vL16}, {srd(SWS)}, s{sbase} offen offset:{(n & 3) * 1024} sc1")
    return g.ins


LA3 = I("LA3", 9)
for ks in range(LA3):
    p.extend(stream_load(v(OF + 4 * ks, 4), sOB, ks))
    if 4 <= ks < 8:
        p.extend(cs_dot(ks - 4))
late3 = G(f"""
s_add_u32 s{t2}, s{sW4K}, {EX3}
v_add_u32 v{vEA}, s{t2}, v{vL16}
v_xor_b32 v{vEB}, 4096, v{vEA}
s_and_b32 s{sFH}, s{sD}, 63
s_lshl2_add_u32 s{sFH}, s{sFH}, s{sGF}
s_add_u32 s{sFH}, s{sFH}, 256
s_lshl_b32 s{sE}, s{sD}, 8
s_add_u32 s{sE}, s{sE}, {WS_STAT}
s_lshl_b32 s{sD}, s{sD}, 11
s_add_u32 s{sD}, s{sD}, {WS_H}
s_lshl_b32 s{sPH}, s{sW}, 6
s_add_u32 s{sPH}, s{sPH}, s{sGF}
s_add_u32 s{sPH}, s{sPH}, 256
s_lshl2_add_u32 s{sFHH}, s{sJJ}, s{sPH}
s_add_u32 s{sFHH}, s{sFHH}, 256
s_and_b32 s{sPHH}, s{sFH}, 0xffffffc0
s_add_u32 s{sPHH}, s{sPHH}, 256
s_lshr_b32 s{sT4}, s{sRB}, 1
s_lshl2_add_u32 s{sT4}, s{sT4}, s{sW}
s_mul_i32 s{sHH}, s{sT4}, 88
s_add_u32 s{sHH}, s{sHH}, s{sJJ}
s_lshl_b32 s{sHH}, s{sHH}, 10
s_add_u32 s{sHH}, s{sHH}, {WS_HH}
s_lshl_b32 s{sA}, s{sT4}, 12
s_add_u32 s{sA}, s{sA}, {WS_STAT}
s_lshl_b32 s{sB}, s{sT4}, 15
s_add_u32 s{sB}, s{sB}, {WS_H}
v_lshlrev_b32 v{vGK}, 2, v{vLN}
""")
ld3 = [stream_load(v(OF + 4 * ks, 4), sOB, ks) for ks in range(LA3, 16)]
hsync = ([] if WOE else w2g[2]) + w2g[3] + w2g[4] + w2g[5]
N3 = I("N3", 6 if WOE else 8)
assert 4 <= N3 <= 8
ld3 += [hsync.pop(0) for _ in range(N3)]
KEEP, SEND, RECV = 128, 144, 160
r1 = flat([w2_read(pos) for pos in (range(8, 12) if WOE else range(8))]) + flat([cs_read(b) for b in range(4, 8)])
SKEW3 = I("SKEW3", 0)
seq = []
for ks in range(16 - SKEW3):
    seq += [(1, ks), (0, ks)]
seq += [(1, ks) for ks in range(16 - SKEW3, 16)] + [(0, ks) for ks in range(16 - SKEW3, 16)]
xw = [G(f"ds_write_b128 v{vEA}, {v(SEND + 4 * i, 4)} offset:{i * 1024}") for i in range(4)]
for n, (ch, ks) in enumerate(seq):
    acc = [KEEP, SEND][ch]
    p(mfma(v(acc, 16), a((ks * 2 + ch) * 4, 4), v(OF + 4 * ks, 4), v(acc, 16) if ks else [v(HR, 16), "0"][ch]))
    if n == 2:
        p("s_barrier")
    if n % 2 == 0 and ld3:
        if not WOE and ld3[0][-1].tag == "w2_3" and ld3[0][0].cls == "salu":
            assert len(r1) <= 32
            p.extend(WD("w2r") + BAR())
        p.extend(ld3.pop(0) + late3[:2])
        late3 = late3[2:]
    elif n >= 2 and r1:
        p.extend(r1[:4])
        r1 = r1[4:]
    elif late3:
        p.extend(late3[:6])
        late3 = late3[6:]
    if n >= 33 - SKEW3 and xw and SKEW3 > 2:
        p.extend(xw.pop(0))
    if n in (1, 15, 31):
        stamp("w%d" % (n // 2), 8)
p.extend(r1)
assert not ld3 and not late3
p.extend(flat(xw) + WD() + BAR())
stamp("wx", 8)
for i in range(4):
    p(f"ds_read_b128 {v(RECV + 4 * i, 4)}, v{vEB} offset:{i * 1024}")
p(f"""
v_and_b32 v{vBP}, 1, v{vLN}
v_bfe_u32 v64, v{vLN}, 1, 1
v_lshl_add_u32 v{vBP}, v{vBP}, 1, v64
v_bfe_u32 v64, v{vLN}, 2, 3
v_lshl_add_u32 v{vBP}, v{vBP}, 4, v64
v_lshlrev_b32 v{vBP}, 2, v{vBP}
v_lshlrev_b32 v{vCW}, 2, v{vTK}
""")
for u in range(2):
    for i in range(4 * u, 4 * u + 4):
        p(f"v_pk_add_f32 {v(HR + 2 * i, 2)}, {v(KEEP + 2 * i, 2)}, {v(RECV + 2 * i, 2)}")
    p.extend(cvt(PK + 4 * u, HR + 8 * u, 4))
    p(f"buffer_store_dwordx4 {v(PK + 4 * u, 4)}, v{vL16}, {srd(SWS)}, s{sD} offen offset:{u * 1024} sc1", tag="hst")
p(f"v_pk_add_f32 {v(vS, 2)}, {v(HR, 2)}, {v(HR + 2, 2)}")
p(f"v_pk_mul_f32 {v(vS + 2, 2)}, {v(HR, 2)}, {v(HR, 2)}")
for i in range(1, 8):
    if i > 1:
        p(f"v_pk_add_f32 {v(vS, 2)}, {v(vS, 2)}, {v(HR + 2 * i, 2)}")
    p(f"v_pk_fma_f32 {v(vS + 2, 2)}, {v(HR + 2 * i, 2)}, {v(HR + 2 * i, 2)}, {v(vS + 2, 2)}")
p(f"""
v_add_f32 v{vS}, v{vS}, v{vS + 1}
v_add_f32 v{vS + 2}, v{vS + 2}, v{vS + 3}
v_mov_b32 v{vF2}, 2
v_mov_b32 v{vF3}, 3
v_permlane32_swap_b32 v{vS}, v{vS + 2}
v_add_f32 v{vS}, v{vS}, v{vS + 2}
""")
p(f"buffer_store_dword v{vS}, v{vGK}, {srd(SWS)}, s{sE} offen sc1", tag="hst")
stamp("wo")
NH1, NH2 = I("NH1", 4), I("NH2", 0)
rest = hsync[NH1 + NH2:] + flat(w2g[6:11])
hsync = hsync[:NH1 + NH2]
assert len(rest) <= 24 and (WOE or len(rest) == 24)
NH0 = I("NH0", 4)
p.extend(weave(singles(flat([cs_dot(b) for b in range(4, 8)])), hsync[:NH0], 0, I("NHS", 8)))
p(f"""
v_lshlrev_b32 v{vCB}, 16, v{vB1}
v_cmp_gt_u32 vcc, 32, v{vLN}
v_add_f32 v{vCS}, v{vCS}, v{vCS + 1}
v_mov_b32 v{vCS + 1}, v{vCS}
v_lshl_add_u32 v{vCW}, v{vHI}, 9, v{vCW}
s_lshl_b32 s{t2}, s{sTW}, 7
s_add_u32 s{t2}, s{t2}, {EX3}
v_permlane32_swap_b32 v{vCS}, v{vCS + 1}
v_add_f32 v{vCS}, v{vCS}, v{vCS + 1}
v_add_u32 v{vCW}, s{t2}, v{vCW}
v_cndmask_b32 v{vCS}, v{vCB}, v{vCS}, vcc
""")
if SELF[1] == "1":
    p(f"""
s_sub_u32 s{t2}, s{sE}, 2048
v_lshl_add_u32 v64, v{vLN}, 7, s{t2}
v_cmp_gt_u32 vcc, 16, v{vLN}
v_lshl_add_u32 v65, v{vLN}, 7, s{sD}
s_nop 0
v_cndmask_b32 v64, v64, v65, vcc
""")
p.extend(flat(hsync[NH0:NH1]))
stamp("hpre", 8)
p.extend(W("hst") + flag_store(sFH, vFL) + self_touch(1, 64, 64, None, 18))
stamp("hack", 8)
p.extend(flat(hsync[NH1:]))
p("s_barrier")
p.extend(apoll_issue(vPL, SWS, sPH))
p(f"ds_write_b32 v{vCW}, v{vCS}")
if not WOE:
    p.extend(flat([w2_read(pos) for pos in range(8, 12)]))
AC4 = 192


def w1_read(ks, t):
    dst = (ks & 3) * 8 + t * 4 if t < 2 else (ks & 7) * 4
    off = ks * 3072 + t * 64
    ad = lambda o: (vT1, o) if o < 65536 else (vT1H, o - 65536)
    return tr(a(dst, 2), *ad(off)) + tr(a(dst + 2, 2), *ad(off + 1536))


p.extend(flat([w1_read(ks, t) for ks in range(3) for t in range(2)]))
for i in range(8):
    p(f"""
v_lshlrev_b32 v{vS + 2}, 16, v{B2R + i}
v_and_b32 v{vS + 3}, s{sMSK}, v{B2R + i}
v_pk_add_f32 {v(HR + 2 * i, 2)}, {v(HR + 2 * i, 2)}, {v(vS + 2, 2)}
""")
p.extend(bpoll_check(vPL, SWS, sPH))
stamp("hpoll")

hf_ = lambda ks: a(64 + 4 * ks, 4) if ks < 16 else v(64 + 4 * ks, 4)
SP = 48
LA4 = I("LA4", 9)
ld4 = [stream_load(hf_(ks), sB, ks) for ks in range(32)]
if HROT:
    ld4 = []
    for ks in range(32):
        g = Prog()
        if ks % 4 == 0:
            g(f"s_lshl{HROT}_add_u32 s{t4}, s{sJ}, {ks >> 2}" if HROT < 3 else f"s_add_u32 s{t4}, s{sJ}, {ks >> 2}")
            g(f"s_and_b32 s{t4}, s{t4}, 7")
            g(f"s_lshl_b32 s{t4}, s{t4}, 12")
            g(f"s_add_u32 s{t4}, s{t4}, s{sB}")
        g(f"buffer_load_dwordx4 {hf_(ks)}, v{vL16}, {srd(SWS)}, s{t4} offen offset:{(ks & 3) * 1024} sc1")
        ld4.append(g.ins)
for i in range(4):
    ld4.insert(I("SPOS", 10) + 2 * i, G(f"buffer_load_dwordx4 {v(SP + 4 * i, 4)}, v{vL16}, {srd(SWS)}, s{sA} offen offset:{1024 * i} sc1"))
for ks in range(LA4):
    p.extend(ld4.pop(0))
    if ks == 4:
        p("s_barrier")
    if 4 <= ks < 8:
        p.extend(w2_read(2 * ks + 4) + w2_read(2 * ks + 5))
c1 = -2.0 * math.sqrt(2.0 / math.pi) * math.log2(math.e)
CB = [64, 224, 192]
CS_, B1_ = [64, 96, 64], [80, 224, 80]
E_, PKD = 96, [112, 120, 112]
fa = G(f"""
v_lshlrev_b32 v{vCB}, 4, v{vHI}
v_add_u32 v{vCB}, {EX3}, v{vCB}
v_mov_b32 v{vEB}, {f2u(c1)}
s_mov_b32 s{sC[0]}, {f2u(c1 * 0.044715)}
v_mul_u32_u24 v{vBIG}, 45056, v{vR8}
v_lshl_add_u32 v{vBIG}, v{vC8}, 7, v{vBIG}
""")


def cb_read(t):
    g = []
    for u in range(4):
        g += G(f"ds_read_b128 {v(CS_[t] + 4 * u, 4)}, v{vCB} offset:{t * 128 + u * 32}")
        g += G(f"ds_read_b128 {v(B1_[t] + 4 * u, 4)}, v{vCB} offset:{512 + t * 128 + u * 32}")
    return g


stat = []
for i in range(1, 4):
    for e in range(4):
        stat += G(f"v_add_f32 v{SP + e}, v{SP + e}, v{SP + 4 * i + e}")
stat += G(f"""
s_mov_b32 s{t3}, {f2u(1e-5)}
v_permlane32_swap_b32 v{SP}, v{SP + 1}
v_permlane32_swap_b32 v{SP + 2}, v{SP + 3}
v_add_f32 v{SP}, v{SP}, v{SP + 1}
v_add_f32 v{SP + 2}, v{SP + 2}, v{SP + 3}
v_add_u32 v56, 45056, v{vS2}
v_permlane16_swap_b32 v{SP}, v{SP + 2}
v_add_f32 v{SP}, v{SP}, v{SP + 2}
v_mul_f32 v{SP}, {f2u(1.0 / 512)}, v{SP}
ds_bpermute_b32 v{vS}, v{vBP}, v{SP}
ds_bpermute_b32 v{vS + 2}, v{vBP}, v{SP} offset:32
""")
stat2 = G(f"""
v_fma_f32 v{vS + 2}, -v{vS}, v{vS}, v{vS + 2}
v_max_f32 v{vS + 2}, 0, v{vS + 2}
v_add_f32 v{vS + 3}, s{t3}, v{vS + 2}
v_rsq_f32 v{vS + 3}, v{vS + 3}
v_mul_f32 v{vS + 2}, v{vS + 2}, v{vS + 3}
v_fma_f32 v{vS + 2}, v{vS + 2}, v{vS + 3}, s{t3}
v_rsq_f32 v{vS + 2}, v{vS + 2}
v_mul_f32 v{vS + 1}, v{vS + 2}, v{vS + 3}
v_mul_f32_e64 v{vS}, -v{vS}, v{vS + 1}
""")
fillA = {}
cbr = cb_read(0) + cb_read(1)
ST0 = I("ST0", 16)
for i in range(3):
    fillA[(1 + i, 1)] = fa[2 * i:2 * i + 2]
for i in range(8):
    fillA[(7 + i, 1)] = cbr[2 * i:2 * i + 2]
for i in range(12):
    fillA[(ST0 + i, 1)] = stat[2 * i:2 * i + 2]
NA = I("NA", 8)
for ks in range(32):
    for t in range(2):
        p(mfma(v(AC4 + 16 * t, 16), a((ks & 3) * 8 + t * 4, 4), hf_(ks), v(AC4 + 16 * t, 16) if ks else "0"))
        if ks == 6 and t == 0:
            p("s_barrier")
        if t == 1 and ld4 and ld4[0][-1].wr & {"v48", "v52", "v56", "v60"}:
            p.extend(ld4.pop(0))
        if t == 0:
            if ld4:
                p.extend(ld4.pop(0))
            elif NA:
                p.extend(rest.pop(0))
                NA -= 1
        if ks + 3 < 32:
            p.extend(w1_read(ks + 3, t))
        else:
            p.extend(w1_read(2 * (ks - 29) + t, 2))
        p.extend(fillA.get((ks, t), []))
    if ks in (0, 15):
        stamp("f%d" % ks, 8)
assert not ld4
p.extend(stat2)
stamp("w1a")
AR = lambda n: hf_(n % 32)
hhl = [stream_load(AR(n), sHHB, n) for n in range(43)]


pend_st = []


def gelu(t, bprime, extra):
    Z, cs, b1 = AC4 + 16 * t, CS_[t], B1_[t]
    x = lambda k_: p.extend(extra.get(k_, []))
    if bprime:
        for i in range(8):
            b_ = v(b1 + 2 * i, 2)
            p(f"v_pk_fma_f32 {b_}, {v(cs + 2 * i, 2)}, {v(vS, 2)}, {b_} op_sel_hi:[1,0,1]")
    x(0)
    for i in range(8):
        z = v(Z + 2 * i, 2)
        p(f"v_pk_fma_f32 {z}, {z}, {v(vS, 2)}, {v(b1 + 2 * i, 2)} op_sel:[0,1,0] op_sel_hi:[1,1,1]")
    x(1)
    for i in range(8):
        p(f"v_pk_mul_f32 {v(E_ + 2 * i, 2)}, {v(Z + 2 * i, 2)}, {v(Z + 2 * i, 2)}")
    x(2)
    for i in range(8):
        e = v(E_ + 2 * i, 2)
        p(f"v_pk_fma_f32 {e}, {e}, s[{sC[0]}:{sC[1]}], {v(vEB, 2)} op_sel_hi:[1,0,0]")
    x(3)
    for i in range(8):
        e = v(E_ + 2 * i, 2)
        p(f"v_pk_mul_f32 {e}, {e}, {v(Z + 2 * i, 2)}")
    for i in range(16):
        if i % 4 == 0:
            x(4 + i // 4)
        p(f"v_exp_f32 v{E_ + i}, v{E_ + i}")
    x(8)
    for i in range(8):
        e = v(E_ + 2 * i, 2)
        p(f"v_pk_add_f32 {e}, {e}, 1.0 op_sel_hi:[1,0]")
    for u in range(2):
        for i in range(8 * u, 8 * u + 8):
            if i % 4 == 0:
                x(9 + i // 4)
            p(f"v_rcp_f32 v{E_ + i}, v{E_ + i}")
        for i in range(4 * u, 4 * u + 4):
            e = v(E_ + 2 * i, 2)
            p(f"v_pk_mul_f32 {e}, {e}, {v(Z + 2 * i, 2)}")
        p.extend(cvt(PKD[t] + 4 * u, E_ + 8 * u, 4))
        pend_st.extend(G(f"buffer_store_dwordx4 {v(PKD[t] + 4 * u, 4)}, v{([vL16, vU1] if t < 2 else [vS2, 56])[u]}, {srd(SWS)}, s{sHH} offen sc1", tag="hhst%d" % t))
        if t < 2 and u == 1:
            pend_st.extend(G(f"s_add_u32 s{sHH}, s{sHH}, 16384"))
        if E("STB", "111111")[2 * t + u] == "1":
            p.extend(pend_st)
            pend_st.clear()


def take(pat, lim):
    d = {}
    for k_, ch in enumerate(pat):
        for _ in range(int(ch)):
            if rest and int(rest[0][-1].tag[3:]) <= lim:
                d.setdefault(k_, []).extend(rest.pop(0))
    return d


for i in range(8):
    b_ = v(B1_[1] + 2 * i, 2)
    p(f"v_pk_fma_f32 {b_}, {v(CS_[1] + 2 * i, 2)}, {v(vS, 2)}, {b_} op_sel_hi:[1,0,1]")
gelu(0, True, take(E("G0", "0101010100000"), 7))
stamp("g0", 8)
gelu(1, False, take(E("G1", "0000000010100"), 7))
stamp("gelu01")
fillB = {}
cbr = cb_read(2)
for i in range(4):
    fillB[i] = cbr[2 * i:2 * i + 2]
for i in range(8):
    fillB[6 + i] = flat([G(f"v_fmac_f32 v{B1_[2] + r}, v{CS_[2] + r}, v{vS}") for r in (2 * i, 2 * i + 1)])
outa = G(f"""
s_add_u32 s{t2}, s{sW4K}, {EX5}
v_add_u32 v{vEA}, s{t2}, v{vL16}
s_lshl_b32 s{t2}, s{sLO}, 2
v_add_u32 v{vCW}, s{t2}, v{vHI}
v_xor_b32 v{vCW}, v{vCW}, v{vC8}
s_lshl_b32 s{t2}, s{sRT}, 12
v_lshl_add_u32 v{vCW}, v{vCW}, 4, s{t2}
v_lshl_add_u32 v{vCW}, v{vTK}, 7, v{vCW}
v_xor_b32 v{vCA}, 32, v{vCW}
v_xor_b32 v{vCA + 1}, v{vR8}, v{vC8}
s_lshl_b32 s{t2}, s{sW}, 11
v_lshl_add_u32 v{vCA + 1}, v{vCA + 1}, 4, s{t2}
v_lshl_add_u32 v{vCA + 1}, v{vR8}, 7, v{vCA + 1}
v_xor_b32 v{vGK}, 4096, v{vEA}
""")
FB1, FB2, PB0 = I("FB1", 9), I("FB2", 28), I("PB0", 30)
NB = E("NB", "00000000000010101010101010101010")
HB = E("HB", "0" * 32)
PBC = I("PBC", 99)
npre = 0
for ks in range(32):
    p(mfma(v(AC4 + 32, 16), a((ks & 7) * 4, 4), hf_(ks), v(AC4 + 32, 16) if ks else "0"))
    if ks in (12, 17):
        p("s_barrier")
    if ks == FB1:
        p(f"s_sub_u32 s{t2}, s{sHH}, 32768")
        p.extend(W("hhst0") + flag_store(sFHH, vFL) + self_touch(2, 57, vBIG, t2, 16))
    if ks == FB2:
        p(f"s_sub_u32 s{t2}, s{sHH}, 16384")
        p.extend(W("hhst1") + flag_store(sFHH, vF2) + self_touch(3, 58, vBIG, t2, 16))
    if ks == PB0:
        p.extend(apoll_issue(vPL, SWS, sPHH))
    if ks == PBC:
        p.extend(apoll_check(vPL, SWS, sPHH, 1))
    p.extend(flat(take(NB[ks], 7 if ks < 12 else (9 if ks < 17 else 10)).values()))
    for _ in range(int(HB[ks])):
        assert ks >= PBC and npre < ks
        p.extend(hhl[npre])
        npre += 1
    if ks + 6 < 32:
        p.extend(w1_read(ks + 6, 2))
    p.extend(fillB.get(ks, []))
stamp("w1b")
LA5 = I("LA5", 9)
ex2 = take(E("G2", "1100000000000"), 10)
assert not rest, len(rest)
HP = I("HP", 5)
if PBC > 31:
    ex2.setdefault(HP, []).extend(apoll_check(vPL, SWS, sPHH, 1))
else:
    HP = 0
for k_, ch in enumerate(E("H2", "0000021111110")):
    for _ in range(int(ch)):
        assert k_ >= HP
        ex2.setdefault(k_, []).extend(hhl[npre])
        npre += 1
PG2 = I("PG2", -1)
if PG2 >= 0:
    assert HP <= PG2
    ex2.setdefault(PG2, []).extend(apoll_issue(vPL, SWS, sPHH))
p.extend(outa[:2] + outa[-1:])
gelu(2, False, ex2)
stamp("gelu2")

KEEP, SEND, RECV = 192, 208, 64
seq = []
for pos in range(43 - SKEW5):
    seq += [(1, pos), (0, pos)]
seq += [(1, pos) for pos in range(43 - SKEW5, 43)] + [(0, pos) for pos in range(43 - SKEW5, 43)]
xw = [G(f"ds_write_b128 v{vEA}, {v(SEND + 4 * i, 4)} offset:{i * 1024}") for i in range(4)]
nl = npre
nr = 20
F3 = I("F3", 12)
for n, (ch, pos) in enumerate(seq):
    acc = [KEEP, SEND][ch]
    p(mfma(v(acc, 16), a(w2_reg(pos) + 4 * ch, 4), AR(pos), v(acc, 16) if pos else [v(HR, 16), "0"][ch]))
    if n == 2 * F3:
        p.extend(W("hhst2") + flag_store(sFHH, vF3) + self_touch(4, 59, vBIG, sHH, 16))
    if n == 2 * F3 + 2:
        p("s_barrier")
    if n % 2 == 0 or nl < n // 2 + LA5:
        if nl < 43 and nl < n // 2 + I("LM5", 13) and n // 2 >= {16: I("CK2", 7), 32: I("CK3", 26)}.get(nl, 0):
            if nl in (16, 32):
                p.extend(apoll_check(vPL, SWS, sPHH, 2 if nl == 16 else 3))
            p.extend(hhl[nl])
            nl += 1
            if nl in (max(I("PI2", 10), npre + 1) if PG2 < 0 else -1, I("PI3", 28)):
                p.extend(apoll_issue(vPL, SWS, sPHH))
    if n % 2 == 1 or nl == 43:
        if n > 2 * F3 + 2 and nr < 43 and nr - 20 < n // 2:
            assert nr < 36 or nr - 16 < min(n // 2, 43 - SKEW5)
            p.extend(w2_read(nr))
            nr += 1
    assert nr >= min(43, pos + 2) and nl >= min(43, pos + 2), (n, nr, nl)
    if n >= 87 - SKEW5 and xw:
        p.extend(xw.pop(0))
    if n in (1, 21, 43, 65):
        stamp("p%d" % (n // 2), 8)
stamp("w2")
p.extend(flat(xw) + WD() + BAR())
for i in range(4):
    p(f"ds_read_b128 {v(RECV + 4 * i, 4)}, v{vGK} offset:{i * 1024}")
p.extend(outa[2:-1])
for u in range(2):
    for i in range(4 * u, 4 * u + 4):
        p(f"v_pk_add_f32 {v(KEEP + 2 * i, 2)}, {v(KEEP + 2 * i, 2)}, {v(RECV + 2 * i, 2)}")
    p.extend(cvt(80 + 4 * u, KEEP + 8 * u, 4))
    p(f"v_permlane32_swap_b32 v{80 + 4 * u}, v{80 + 4 * u + 2}")
    p(f"v_permlane32_swap_b32 v{80 + 4 * u + 1}, v{80 + 4 * u + 3}")
    p(f"ds_write_b128 v{[vCW, vCA][u]}, {v(80 + 4 * u, 4)} offset:{OTL}")
p.extend(WD() + BAR())
for u in range(2):
    p(f"ds_read_b128 {v(88 + 4 * u, 4)}, v{vCA + 1} offset:{OTL + 1024 * u}")
for u in range(2):
    p(f"buffer_store_dwordx4 {v(88 + 4 * u, 4)}, v{[vX0, vX1][u]}, {srd(SOUT)}, 0 offen sc1")
if SPINAT == "end":
    stamp("end")
if STAMPS:
    stamp("st", 8)
    p("s_waitcnt vmcnt(0)")
    stamp("end")
    p(f"""
s_lshl2_add_u32 s{t2}, s2, s{sW}
s_lshl_b32 s{t2}, s{t2}, 8
s_add_u32 s{t2}, s{t2}, {WS_ST}
v_writelane_b32 v7, s101, 31
v_writelane_b32 v7, s100, 63
v_lshlrev_b32 v22, 2, v{vLN}
buffer_store_dword v7, v22, {srd(SWS)}, s{t2} offen
""")
p("s_endpgm")
p("s_waitcnt vmcnt(0) lgkmcnt(0)")
p.extend(tail)
p("L_cold:")

p("L_fallback:")
p("s_waitcnt vmcnt(0)")
p("s_nop 15")
MX = 78
for q in range(2):
    mine = [(t, c) for (qq, t, c) in steps if qq == q]
    p(f"v_mov_b32 v{MX}, 0xff7fffff")
    for t, c in mine:
        p(mfma(v(SB[0], 16), kfrag(t), a(OQ + 4 * q, 4), v(c, 16) if c else "0"))
        p(f"v_max3_f32 v77, v{SB[0]}, v{SB[0] + 1}, v{SB[0] + 2}")
        for r in range(3, 15, 2):
            p(f"v_max3_f32 v77, v77, v{SB[0] + r}, v{SB[0] + r + 1}")
        p(f"v_max_f32 v77, v77, v{SB[0] + 15}")
        if t[0] == "h":
            p(f"s_cmp_eq_u32 s{sVAL[t[1] >> 1]}, 0\ns_cselect_b32 s{t2}, 0xf149f2ca, 0\nv_add_f32 v77, s{t2}, v77")
        p(f"v_max_f32 v{MX}, v{MX}, v77")
    p(f"v_mov_b32 v77, v{MX}\nv_permlane32_swap_b32 v{MX}, v77\nv_max_f32 v{MX}, v{MX}, v77")
    first_ = True
    for t, c in mine:
        S_, P_ = SB[0], PB[0]
        p(mfma(v(S_, 16), kfrag(t), a(OQ + 4 * q, 4), v(c, 16) if c else "0"))
        for fmt in ("v_sub_f32 v{r}, v{r}, v%d" % MX, "v_min_f32 v{r}, 0, v{r}", "v_exp_f32 v{r}, v{r}"):
            for r in range(16):
                p(fmt.format(r=S_ + r))
        p.extend(cvt(P_, S_, 8))
        for u in range(2):
            p(mfma(v(OA[q], 16), vfrag(t, u), v(P_ + 4 * u, 4), "0" if first_ else v(OA[q], 16)))
            first_ = False
p("s_waitcnt vmcnt(0)")
p.extend(o_epilogue(0, True) + o_epilogue(1, True))
p("s_waitcnt vmcnt(0)")
p("s_branch L_fbret")
p("L_end:")

waited = set()
for i in p.ins:
    if i.cls == "wait_vm":
        waited.add(i.tag)
    elif i.cls == "vmem" and i.tag in waited and i.tag != "ost":
        raise SystemExit("load issued after its wait: " + i.tag)
ABL = E("ABL", "")
if ABL:
    keep = []
    for i in p.ins:
        if i.text.startswith("s_cbranch_vccnz L_fallback"):
            continue
        if "dma" in ABL and i.cls == "vmem" and "m0" in i.rd:
            continue
        if "ld" in ABL and i.cls == "vmem" and i.mn == "buffer_load_dwordx4" and "m0" not in i.rd:
            continue
        keep.append(i)
    p.ins = keep
body, ins, nops = finalize(p, align=I("ALIGN", 1))
print("instructions:", sum(1 for i in ins if i.cls not in ("label", "none")), "nop states:", nops, file=sys.stderr)

ref = open("sequential_preLN__sliding_block__mixer_channel_mlp__prompt.s.ref").read()
head = []
for line in ref.split("\n"):
    if not line.startswith(";"):
        break
    if "@launch" in line:
        line = "; @launch grid=(256,1,1) block=(256,1,1) lds=163840"
    head.append(line)
out = "\n".join(head) + f"""
.amdgcn_target "amdgcn-amd-amdhsa--gfx950"
.text
.globl {NAME}
.p2align 8
.type {NAME},@function
{NAME}:
{body}    s_endpgm
.section .rodata,"a"
.p2align 6
.amdhsa_kernel {NAME}
  .amdhsa_next_free_vgpr 512
  .amdhsa_next_free_sgpr 102
  .amdhsa_accum_offset 256
  .amdhsa_group_segment_fixed_size 0
  .amdhsa_kernarg_size 88
  .amdhsa_user_sgpr_count 2
  .amdhsa_user_sgpr_kernarg_segment_ptr 1
  .amdhsa_system_sgpr_workgroup_id_x 1
.end_amdhsa_kernel
"""
open(sys.argv[1] if len(sys.argv) > 1 else "out.s", "w").write(out)
```
